```python
import torch

def _softmax(x, axis=-1):
    return torch.softmax(x, dim=axis)
def _gelu(x):
    return torch.nn.functional.gelu(x, approximate="tanh")
def _silu(x):
    return torch.nn.functional.silu(x)
def _sigmoid(x):
    return torch.sigmoid(x)
def _layernorm(x, axis=-1, eps=1e-5):
    m = x.mean(dim=axis, keepdim=True)
    v = x.var(dim=axis, keepdim=True, unbiased=False)
    return (x - m) / torch.sqrt(v + eps)
def _scatter_add(tgt, idx, src, axis=0):
    return tgt.clone().index_add_(axis, idx, src)
def _segment_sum(src, seg, n):
    out = torch.zeros((n,) + src.shape[1:], dtype=src.dtype)
    return out.index_add_(0, seg, src)
def _pad(x, pw):
    flat = tuple(v for pair in reversed(pw) for v in pair)
    return torch.nn.functional.pad(x, flat)

kernel_name = 'recurrent_scan__sliding_block_cached__glu_gated_glu__prompt'

def setup_inputs():

    _w = (lambda a: (lambda t: t.to(torch.bfloat16) if t.is_floating_point() else t)(torch.as_tensor(a)))
    def _A_setup():
        B, Sq, D = 1, 2048, 512
        Hq, Hkv, Sk, Dh = 32, 8, 2048, 128
        assert Hq % Hkv == 0, (Hq, Hkv)
        return {
            "x": _w((lambda *s: torch.randn(*s, dtype=torch.bfloat16) * 0.05)(B, Sq, D)),
            "k_cache": _w((lambda *s: torch.randn(*s, dtype=torch.bfloat16) * 0.8)(B, Hkv, Sk, Dh)),
            "v_cache": _w((lambda *s: torch.randn(*s, dtype=torch.bfloat16) * 0.2)(B, Hkv, Sk, Dh)),
            "wq": _w((lambda *s: torch.randn(*s, dtype=torch.bfloat16) * 0.8)(D, Hq * Dh) * (D ** -0.5)),
            "wo": _w((lambda *s: torch.randn(*s, dtype=torch.bfloat16) * 0.2)(Hq * Dh, D) * ((Hq * Dh) ** -0.5)),
        }
    _A_in = _A_setup()

    def _B_setup():
        B, S, D, F = 1, 2048, 512, 1792
        return {
            "x": _w((lambda *s: torch.randn(*s, dtype=torch.bfloat16) * 0.05)(B, S, D)),
            "w_gate": _w((lambda *s: torch.randn(*s, dtype=torch.bfloat16) * 0.2)(D, F)),
            "w_up": _w((lambda *s: torch.randn(*s, dtype=torch.bfloat16) * 0.1)(D, F)),
            "w_down": _w((lambda *s: torch.randn(*s, dtype=torch.bfloat16) * 0.1)(F, D)),
        }
    _B_in = _B_setup()

    return {
        "A_x": _A_in["x"],
        "A_k_cache": _A_in["k_cache"],
        "A_v_cache": _A_in["v_cache"],
        "A_wq": _A_in["wq"],
        "A_wo": _A_in["wo"],
        "B_x": _B_in["x"],
        "B_w_gate": _B_in["w_gate"],
        "B_w_up": _B_in["w_up"],
        "B_w_down": _B_in["w_down"],
    }

def reference(A_x, A_k_cache, A_v_cache, A_wq, A_wo, B_x, B_w_gate, B_w_up, B_w_down):
    def _A_ref(x, k_cache, v_cache, wq, wo):
        B, Sq, D = x.shape
        Hq, Dh = 32, 128
        Hkv, Sk = k_cache.shape[1], k_cache.shape[2]
        W = min(4096, max(256, Sk // 4))
        rep = Hq // Hkv
        q = (lambda x, *d: x.permute(*d))((x @ wq).reshape(B, Sq, Hq, Dh), 0, 2, 1, 3)
        k = (lambda x, n, axis: torch.repeat_interleave(x, n, dim=axis))(k_cache[:, :, Sk - W:, :], rep, axis=1)
        v = (lambda x, n, axis: torch.repeat_interleave(x, n, dim=axis))(v_cache[:, :, Sk - W:, :], rep, axis=1)
        scores = torch.einsum("bhqd,bhkd->bhqk", q, k) * (Dh ** -0.5)
        p = _softmax(scores, axis=-1)
        o = torch.einsum("bhqk,bhkd->bhqd", p, v)
        return (lambda x, *d: x.permute(*d))(o, 0, 2, 1, 3).reshape(B, Sq, Hq * Dh) @ wo

    def _B_ref(x, w_gate, w_up, w_down):
        g = torch.einsum("bsd,df->bsf", x, w_gate)
        u = torch.einsum("bsd,df->bsf", x, w_up)
        h = _sigmoid(g) * u
        return torch.einsum("bsf,fd->bsd", h, w_down)

    x = A_x
    xn = _layernorm(x, axis=-1)
    s = _A_ref(xn, A_k_cache, A_v_cache, A_wq, A_wo)
    g = _silu(_B_ref(xn, B_w_gate, B_w_up, B_w_down))
    return x + s * g
```

```python
import re

class Ins:
    __slots__ = ("t", "tag", "need", "cost")
    def __init__(self, t, tag=None, need=None, cost=None):
        self.t = t; self.tag = tag; self.need = need; self.cost = cost
    def __repr__(self): return self.t

class Loop:
    def __init__(self, label, count, body, pre, post):
        self.label = label; self.count = count; self.body = body; self.pre = pre; self.post = post

TRANS = ("v_exp_f32", "v_log_f32", "v_rcp_f32", "v_rsq_f32", "v_sqrt_f32", "v_sin_f32", "v_cos_f32")

def cost_of(t):
    m = t.split()[0]
    if m.startswith(TRANS): return 8
    if m.startswith("v_mfma"): return 8
    if m.startswith("s_nop"): return 4 * (int(t.split()[1]) + 1)
    if m.startswith("buffer_") or m.startswith("global_"): return 8
    if m.startswith("s_"): return 2
    return 4

class Prog:
    def __init__(self):
        self.stack = [[]]
    @property
    def cur(self): return self.stack[-1]
    def e(self, t, tag=None, need=None):
        if isinstance(t, Ins): self.cur.append(t); return
        if isinstance(t, (list, tuple)):
            for x in t: self.e(x)
            return
        for line in t.strip("\n").split("\n"):
            line = line.split(";")[0].strip()
            if line: self.cur.append(Ins(line, tag, need))
    def label(self, name): self.cur.append(Ins(name + ":"))
    def loop_begin(self): self.stack.append([])
    def loop_end(self, label, count, post):
        body = self.stack.pop()
        self.cur.append(Loop(label, count, body, [], [Ins(x) for x in post]))
    def text(self):
        out = []
        def rec(items):
            for it in items:
                if isinstance(it, Loop):
                    out.append(it.label + ":")
                    rec(it.body)
                    for x in it.post: out.append("    " + x.t)
                else:
                    out.append(it.t if it.t.endswith(":") else "    " + it.t)
        rec(self.stack[0])
        return "\n".join(out) + "\n"
    def trace(self):
        out = []
        def rec(items):
            for it in items:
                if isinstance(it, Loop):
                    for _ in range(it.count):
                        rec(it.body)
                        out.extend(it.post)
                elif not it.t.endswith(":"):
                    out.append(it)
        rec(self.stack[0])
        return out

def weave(p, mf, queues):
    n = len(mf)
    slots = [[] for _ in range(n)]
    for items, start, end in queues:
        if not items: continue
        groups = [g if isinstance(g, (list, tuple)) else [g] for g in items]
        costs = [sum(cost_of(x.t if isinstance(x, Ins) else x) for x in g) for g in groups]
        tot = float(sum(costs)); span = end - start
        assert span > 0 and end <= n, (start, end, n)
        acc = 0.0
        for g, c in zip(groups, costs):
            pos = start + int((acc + c * 0.5) / tot * span)
            pos = min(max(pos, start), end - 1)
            slots[pos].extend(g)
            acc += c
    for i in range(n):
        p.e(mf[i])
        for x in slots[i]: p.e(x)

REG = re.compile(r"^(-|abs\()?([vas])(\d+)\)?$")
RNG = re.compile(r"^(-|abs\()?([vas])\[(\d+):(\d+)\]\)?$")
def regs(tok):
    tok = tok.strip()
    m = REG.match(tok)
    if m: return [(m.group(2), int(m.group(3)))]
    m = RNG.match(tok)
    if m: return [(m.group(2), i) for i in range(int(m.group(3)), int(m.group(4)) + 1)]
    if tok in ("vcc", "m0", "exec", "scc"): return [(tok, 0)]
    if tok in ("exec_hi", "exec_lo"): return [("exec", 0)]
    return []
def split_ops(s):
    ops, depth, cur = [], 0, ""
    for ch in s:
        if ch in "[(": depth += 1
        if ch in "])": depth -= 1
        if ch == "," and depth == 0: ops.append(cur.strip()); cur = ""
        else: cur += ch
    if cur.strip(): ops.append(cur.strip())
    return ops

class Dec:
    pass
def decode(t):
    d = Dec()
    parts = t.split(None, 1)
    m = parts[0]; d.m = m
    rest = parts[1] if len(parts) > 1 else ""
    ops = split_ops(rest)
    mods = ""
    if ops:
        sp = ops[-1].split(None, 1)
        if len(sp) > 1 and not ops[-1].startswith("hwreg"):
            ops[-1] = sp[0]; mods = sp[1]
    d.mods = mods; d.ops = ops
    W, R = [], []
    d.cls = "other"
    d.srcC = []; d.srcAB = []
    if m.startswith("v_mfma"):
        d.cls = "mfma"; W = regs(ops[0]); d.srcAB = regs(ops[1]) + regs(ops[2]); d.srcC = regs(ops[3]); R = d.srcAB + d.srcC
        d.passes = 8 if "32x32" in m else 4
    elif m.startswith("v_"):
        d.cls = "valu"
        if m.startswith("v_cmp"):
            W = regs(ops[0]); R = sum((regs(o) for o in ops[1:]), [])
        elif m.startswith("v_permlane") and "swap" in m:
            W = regs(ops[0]) + regs(ops[1]); R = list(W)
        else:
            W = regs(ops[0]); R = sum((regs(o) for o in ops[1:]), [])
            if m.startswith(("v_fmac", "v_dot2c", "v_pk_fmac")): R += W
            if "dpp" in m: R += W
            if m.startswith("v_cndmask") and len(ops) == 3: R += [("vcc", 0)]
    elif m.startswith("buffer_") or m.startswith("global_"):
        d.cls = "vmem"
        if m in ("buffer_wbl2", "buffer_inv"): pass
        elif "lds" in mods.split() or "load_lds" in m:
            R = sum((regs(o) for o in ops), []) + [("m0", 0)]; d.dma = True
        elif "load" in m:
            W = regs(ops[0]); R = sum((regs(o) for o in ops[1:]), [])
        elif "atomic" in m:
            R = sum((regs(o) for o in ops), [])
            if "sc0" in mods.split(): W = regs(ops[0])
        else:
            R = sum((regs(o) for o in ops), []); d.store = regs(ops[0]) if m.startswith("buffer") else regs(ops[1])
    elif m.startswith("ds_"):
        d.cls = "ds"
        if m.startswith(("ds_read", "ds_swizzle", "ds_bpermute")):
            W = regs(ops[0]); R = sum((regs(o) for o in ops[1:]), [])
        else:
            R = sum((regs(o) for o in ops), [])
    elif m.startswith(("s_load", "s_memtime", "s_memrealtime")):
        d.cls = "smem"; W = regs(ops[0]); R = sum((regs(o) for o in ops[1:]), [])
    elif m == "s_waitcnt": d.cls = "wait"
    elif m == "s_nop": d.cls = "nop"
    elif m in ("s_barrier", "s_endpgm", "s_sleep", "s_setprio") or m.startswith(("s_cbranch", "s_branch")): d.cls = "ctl"
    elif m.startswith("s_"):
        d.cls = "salu"
        if m.startswith("s_cmp"): R = sum((regs(o) for o in ops), [])
        else:
            W = regs(ops[0]); R = sum((regs(o) for o in ops[1:]), [])
            if m.startswith(("s_addk", "s_mulk")): R += W
    d.W = set(W); d.R = set(R)
    d.trans = m.startswith(TRANS)
    return d

def check(trace, name=""):
    errs = []
    dec = [decode(i.t) for i in trace]
    pos = []; c = 0
    for i, d in enumerate(dec):
        pos.append(c)
        c += (int(d.ops[0]) + 1) if d.cls == "nop" else 1
    def err(i, j, msg): errs.append(f"{name}: [{j}] {trace[j].t}  ->  [{i}] {trace[i].t} : {msg}")
    vm = []; lg = []
    for i, d in enumerate(dec):
        j = i - 1
        while j >= 0 and pos[i] - pos[j] - (1 if dec[j].cls != "nop" else int(dec[j].ops[0]) + 1) < 20:
            q = dec[j]
            ws = pos[i] - pos[j] - (1 if q.cls != "nop" else int(q.ops[0]) + 1)
            def needs(n, msg):
                if ws < n: err(i, j, f"{msg}: have {ws} need {n}")
            vW = {r for r in q.W if r[0] in "va"}
            if q.cls == "valu":
                if d.cls == "mfma" and vW & d.R: needs(2, "VALU->MFMA")
                if q.trans and d.cls == "valu" and not d.trans and vW & d.R: needs(1, "trans->valu")
                if q.trans and d.cls in ("mfma",) and vW & d.R: needs(2, "trans->mfma")
                if d.m.startswith("v_permlane") and vW & d.R: needs(2, "VALU->permlane")
                if "dpp" in d.m and vW & d.R: needs(2, "VALU->DPP")
                if d.m.startswith(("v_readfirstlane", "v_readlane")) and vW & d.R: needs(1, "VALU->readlane")
                sW = {r for r in q.W if r[0] in ("s", "vcc")}
                if sW & d.R:
                    if d.cls == "vmem": needs(5, "VALU sgpr->VMEM")
                    if d.cls == "valu": needs(2, "VALU sgpr->VALU")
                    if d.cls in ("salu", "ctl"): needs(1, "VALU sgpr->SALU (pad)")
                if ("vcc", 0) in q.W and d.m.startswith("s_cbranch_vcc"): needs(1, "vcc->branch (pad)")
            if q.cls == "mfma":
                n8 = q.passes == 8
                if d.cls == "mfma":
                    if q.W & set(d.srcAB): needs(12 if n8 else 8, "MFMA D->MFMA A/B")
                    if q.W & set(d.srcC) and set(d.srcC) != q.W: needs(10 if n8 else 6, "MFMA D->overlap C")
                    if q.W & d.W and set(d.srcC) != q.W and not (q.W & set(d.srcC)): needs(10 if n8 else 6, "MFMA D WAW (pad)")
                elif d.cls in ("valu", "vmem", "ds"):
                    if q.W & (d.R | d.W): needs(12 if n8 else 8, "MFMA D->VALU/mem")
                    if d.cls == "valu" and set(q.srcC) & d.W: needs(7 if n8 else 3, "MFMA C WAR")
            if q.cls == "salu" and ("m0", 0) in q.W and d.cls == "vmem" and ("m0", 0) in d.R: needs(1, "M0->DMA")
            if q.cls == "vmem" and hasattr(q, "store") and len(q.store) >= 3 and set(q.store) & d.W: needs(2, "store data WAR")
            j -= 1
        touched = d.R | d.W
        for lst, nm in ((vm, "vmcnt"), (lg, "lgkmcnt")):
            for k in lst:
                if trace[k].tag in ("PF", "OPT_PF", "AFS"): continue
                if dec[k].W & touched and not (d.cls == dec[k].cls and nm == "lgkmcnt" and dec[k].W & d.W and not dec[k].W & d.R and False):
                    err(i, k, f"register touched while {nm} load outstanding")
        if d.cls == "wait":
            for mm in re.finditer(r"(vmcnt|lgkmcnt)\((\d+)\)", trace[i].t):
                n = int(mm.group(2))
                if mm.group(1) == "vmcnt":
                    while len(vm) > n: vm.pop(0)
                else:
                    if n == 0: lg.clear()
                    else:
                        ds = [k for k in lg if dec[k].cls == "ds"]
                        drop = set(ds[:max(0, len(ds) - n)])
                        lg[:] = [k for k in lg if k not in drop]
        if trace[i].need:
            for k in vm + lg:
                if trace[k].tag in trace[i].need: err(i, k, f"needed tag {trace[k].tag} still outstanding")
        if d.cls == "vmem":
            vm.append(i)
            if len(vm) > 63: err(i, i, "more than 63 vmem outstanding")
        if d.cls in ("ds", "smem"): lg.append(i)
    return errs

class VmTrack:
    def __init__(self): self.q = []
    def issue(self, tag): self.q.append(tag)
    def count_after(self, tags):
        idx = -1
        for i, t in enumerate(self.q):
            if t in tags: idx = i
        if idx < 0: return None
        n = len(self.q) - 1 - idx
        self.q = self.q[idx + 1:]
        return n

class Wait(Ins):
    __slots__ = ("vm", "lg", "nvm", "nlg")
    def __init__(self, vm=(), lg=()):
        Ins.__init__(self, "s_waitcnt vmcnt(63) lgkmcnt(15)")
        self.vm = set(vm); self.lg = set(lg); self.nvm = 63; self.nlg = 15
        self.need = set(vm) | set(lg)

def resolve(prog):
    tr = prog.trace()
    vmq = []; lgq = []
    for ins in tr:
        if isinstance(ins, Wait):
            for tags, q, attr in ((ins.vm, vmq, "nvm"), (ins.lg, lgq, "nlg")):
                if not tags: continue
                idx = -1
                for k in range(len(q) - 1, -1, -1):
                    if q[k] in tags or "*" in tags: idx = k; break
                if idx >= 0:
                    setattr(ins, attr, min(getattr(ins, attr), len(q) - 1 - idx, 62 if attr == 'nvm' else 14))
            continue
        m = ins.t.split()[0]
        if ins.tag and ins.tag.startswith("OPT"): continue
        if m.startswith(("buffer_", "global_")): vmq.append(ins.tag)
        elif m.startswith("ds_"): lgq.append(ins.tag)
    for ins in tr:
        if isinstance(ins, Wait):
            parts = []
            if ins.nvm < 63: parts.append(f"vmcnt({ins.nvm})")
            if ins.nlg < 15: parts.append(f"lgkmcnt({ins.nlg})")
            ins.t = "s_waitcnt " + " ".join(parts) if parts else "s_nop 0"

from collections import defaultdict
def _is_vmem(x):
    t = x.t if isinstance(x, Ins) else x
    return t.startswith(("buffer_", "global_"))

class Sched:
    def __init__(self, sp=2):
        self.mf = []; self.pre = defaultdict(list); self.fill = defaultdict(list); self.vm = {}
        self.streams = {}; self.sp = sp; self.report = []
    def add(self, mfs):
        b = len(self.mf); self.mf += list(mfs); return b
    def before(self, g, items):
        self.pre[g] += [items] if not isinstance(items, (list, tuple)) else list(items)
    def spread(self, items, start, end):
        groups = [g if isinstance(g, (list, tuple)) else [g] for g in items]
        if not groups: return
        costs = [sum(cost_of(x.t if isinstance(x, Ins) else x) for x in g) for g in groups]
        tot = float(sum(costs)); span = end - start; acc = 0.0
        assert span > 0
        for g, c in zip(groups, costs):
            pos = min(max(start + int((acc + c * 0.5) / tot * span), start), end - 1)
            self.fill[pos].extend(g); acc += c
    def fixed(self, gap, group):
        assert gap not in self.vm, gap
        self.vm[gap] = list(group)
    def queue(self, stream, group, earliest, deadline):
        assert sum(_is_vmem(x) for x in group) == 1, group
        self.streams.setdefault(stream, []).append((list(group), earliest, deadline))
    def _free(self, g):
        return all((g + d) not in self.vm for d in range(-(self.sp - 1), self.sp))
    def emit(self, p):
        n = len(self.mf)
        heads = {k: 0 for k in self.streams}
        for g in range(n):
            if not self._free(g): continue
            best = None
            for k, q in self.streams.items():
                if heads[k] < len(q) and q[heads[k]][1] <= g:
                    if best is None or q[heads[k]][2] < self.streams[best][heads[best]][2]: best = k
            if best is not None:
                it = self.streams[best][heads[best]]
                self.vm[g] = it[0]; heads[best] += 1
                if g > it[2]: self.report.append((best, heads[best] - 1, g, it[2]))
        left = [(k, len(q) - heads[k]) for k, q in self.streams.items() if heads[k] < len(q)]
        assert not left, left
        for g in range(n):
            for x in self.pre.get(g, []):
                if callable(x): x(p)
                else: p.e(x)
            p.e(self.mf[g])
            for x in self.vm.get(g, []): p.e(x)
            for x in self.fill.get(g, []): p.e(x)
        for x in self.pre.get(n, []):
            if callable(x): x(p)
            else: p.e(x)

REUSE = ("D0", "D1", "D2", "D3", "KF", "VF", "G", "PF", "FS", "X", "KK", "none")
def check_tags(trace):
    errs = []; seen = set(); waited = {}
    for i, ins in enumerate(trace):
        if isinstance(ins, Wait):
            for t in ins.need:
                if t in REUSE: continue
                if t not in seen: errs.append(f"wait [{i}] for tag {t} before any such op was issued")
                waited[t] = i
        elif ins.tag:
            seen.add(ins.tag)
            if ins.tag in waited and ins.tag not in REUSE: errs.append(f"op [{i}] {ins.t} with tag {ins.tag} issued after the wait [{waited[ins.tag]}] on it")
    return errs
```

```python
import sys, struct, math
from asmlib import *

NAME = "recurrent_scan__sliding_block_cached__glu_gated_glu__prompt"
WS_XN = 0
XN_BYTES = 2 << 20
WS_FLG = 3 << 20
WS_ACT = 4 << 20
ACT_KS = 368
ACT_BYTES = 64 * ACT_KS * 1024
WS_PART = 32 << 20
PART_BYTES = 8 << 20
WS_DBG = 64 << 20
LOG2E = 1.4426950408889634
def f2u(x): return struct.unpack("<I", struct.pack("<f", x))[0]
QSCALE = f2u(LOG2E / math.sqrt(128.0))
STAMPS = False
OPT = {}
SC = " sc1"

def vr(b, n=1): return f"v{b}" if n == 1 else f"v[{b}:{b+n-1}]"
def ar(b, n=1): return f"a{b}" if n == 1 else f"a[{b}:{b+n-1}]"
def S4(b): return f"s[{b}:{b+3}]"
def lines(s): return [x.strip() for x in s.strip().split("\n") if x.strip()]
def singles(l): return [[x] for x in l]

def srd_l(d, lo, hi, nbytes, add=None):
    out = [f"s_mov_b32 s{d}, s{lo}", f"s_mov_b32 s{d+1}, s{hi}"] if add is None else [f"s_add_u32 s{d}, s{lo}, {add}", f"s_addc_u32 s{d+1}, s{hi}, 0"]
    return out + [f"s_mov_b32 s{d+2}, {nbytes}", f"s_mov_b32 s{d+3}, 0x00020000"]
def srd(p, *a, **k): p.e(srd_l(*a, **k))

def stamp(p, k, ph=0):
    if OPT.get("ph", 0) != ph and k != 0: return
    if STAMPS: p.e(f"{'s_memtime' if OPT.get('cyc') else 's_memrealtime'} s[{76+2*k}:{77+2*k}]")
def stamp_flush(p, n):
    if not STAMPS: return
    p.e("s_load_dwordx2 s[60:61], s[0:1], 88\ns_waitcnt lgkmcnt(0) vmcnt(0)")
    srd(p, 4, 60, 61, 1 << 20, add=WS_DBG)
    p.e(f"s_lshl_b32 s3, s2, 8\ns_lshl_b32 s70, s{S_W}, 6\ns_add_u32 s3, s3, s70\nv_mov_b32 v0, 0")
    for k in range(n):
        p.e(f"v_mov_b32 v2, s{76+2*k}\nbuffer_store_dword v2, v0, s[4:7], s3 offen offset:{4*k}\ns_nop 1")
    p.e("s_waitcnt vmcnt(0)")

def mfma(d, a, b, c): return f"v_mfma_f32_32x32x16_bf16 {d}, {a}, {b}, {c}"

S_X = 4
S_WQ, S_WG, S_WU, S_XN, S_K, S_V, S_ACT = 8, 12, 16, 20, 24, 28, 32
S_WO, S_OUT, S_PT, S_WD = 8, 28, 24, 64
S_W, S_J, S_RB, S_W2K, S_W1K = 36, 37, 38, 39, 40
S_DT, S_DQ, S_GM, S_BT, S_KT, S_VT = 41, 42, 43, 44, 45, 46
S_LOOP, S_FLAG, S_ROT2 = 47, 48, 49
S_C0, S_NL2E = 50, 52
S_T0, S_T1, S_T2 = 54, 55, 56
S_HOFF, S_OOFF, S_PF = 57, 58, 59
S_EP, S_FO = 62, 63
S_FLG, S_DBG = 68, 72
S_W4K = 100
S_ONES = 101
K_SSW, K_SSA, K_SR32, K_CT, K_KQ, K_SPO, K_CNT, K_SST = 45, 46, 47, 48, 49, 50, 51, 59
K_SLD, K_SWO, K_SA, K_SLB = 72, 73, 74, 75
V_AQ, V_AG, V_OQ, V_OG, V_OB0, V_OB1 = 192, 200, 206, 207, 208, 209
V_K, V_V, V_OK0, V_OK1, V_OV, V_ST0, V_ST1 = 210, 218, 222, 223, 224, 225, 226
V_L = 228
V_T = 230
V_PFA, V_PFD, V_FL, V_PR = 252, 253, 254, 255
V_FL2 = 227
K_SGO = 3
K_VSW, K_VSA, K_VL16, K_VL, K_VRB, K_VX = 192, 193, 194, 195, 196, 199
K_VRA, K_VB0, K_VB1, K_VW0, K_VW1, K_VA0, K_VA2 = 210, 216, 217, 218, 219, 220, 222
def QACC(t, b): return (t*2 + b) * 16
def GACC(a, b): return 64 + (a*2 + b) * 16
A_KF, A_VF = 192, 224
def QF(b, s): return ((s >> 1)*2 + b)*8 + (s & 1)*4
def SB(par, b): return 64 + par*32 + b*16
def PB(par, b, u): return 128 + par*16 + b*8 + u*4
def NEGM(b): return 160 + b*16
def OACC(t, b): return (t*2 + b) * 16
SLOT = 16384
KKSLOT = 8 * SLOT
def gslot(t): return (4 + t) * SLOT if t < 6 else (t - 6) * SLOT
def kslot(g): return ((g + 1) % 5) * 32768
LDS_MISC = 9 * SLOT
LDS_EP = LDS_MISC + 32
LDS_LN = LDS_MISC + 64
LDS_FLAG = 3 * SLOT + 8192
LDS_TOTAL = 163840

def flag_store(sy, vd, vz, tag="FS"):
    return [f"v_mov_b32 v{vd}, s{S_EP}", f"v_mov_b32 v{vz}, 0", "s_mov_b64 exec, 1",
            Ins(f"buffer_store_dword v{vd}, v{vz}, {S4(S_FLG)}, s{S_FO} offen offset:{sy*1024} sc1", tag),
            "s_mov_b64 exec, -1"]
def poll_issue(sy, goff, tag, vfl=None):
    return Ins(f"buffer_load_dword v{V_PR}, v{vfl or V_FL}, {S4(S_FLG)}, s{goff} offen offset:{sy*1024} sc1", tag)
def poll_check(p, lbl, sy, goff, tag, cnt, vfl=None):
    p.e(Wait(vm=[tag]))
    p.e(f"v_cmp_ne_u32 vcc, s{S_EP}, v{V_PR}\ns_mov_b32 s{cnt}, 0\ns_cbranch_vccz {lbl}_OK")
    p.label(f"{lbl}_P")
    p.e("s_sleep 2")
    p.e(poll_issue(sy, goff, "OPT_POLL", vfl))
    p.e(f"""
    s_add_u32 s{cnt}, s{cnt}, 1
    s_waitcnt vmcnt(0)
    v_cmp_ne_u32 vcc, s{S_EP}, v{V_PR}
    s_cmp_gt_u32 s{cnt}, 0x40000
    s_cbranch_scc1 {lbl}_OK
    s_cbranch_vccnz {lbl}_P
    """)
    p.label(f"{lbl}_OK")

def setup(p):
    T = V_T; L = T + 1
    p.e("s_cmp_ge_u32 s2, 256\ns_cbranch_scc1 K_END")
    p.e("s_load_dwordx8 s[60:67], s[0:1], 0\ns_load_dwordx4 s[68:71], s[0:1], 48\ns_load_dwordx4 s[72:75], s[0:1], 80")
    stamp(p, 0)
    p.e("s_getpc_b64 s[42:43]")
    p.label("CODE0")
    p.e(f"v_lshlrev_b32 v1, 7, v0\nv_add_u32 v2, 32768, v1\nv_min_u32 v2, CODE_END-CODE0-4, v2")
    p.e(f"global_load_dword v{V_PFD}, v1, s[42:43]", tag="PF")
    p.e(f"global_load_dword v{V_PFD}, v2, s[42:43]", tag="PF")
    p.e(f"""
    v_lshrrev_b32 v{T}, 6, v0
    v_and_b32 v{L}, 63, v0
    v_and_b32 v3, 7, v{L}
    v_readfirstlane_b32 s{S_W}, v{T}
    v_lshrrev_b32 v4, 3, v{L}
    v_lshlrev_b32 v5, 10, v3
    v_lshl_add_u32 v5, v4, 4, v5
    v_lshl_add_u32 v5, v{T}, 8, v5
    s_lshl_b32 s3, s2, 13
    s_and_b32 s{S_T0}, s2, 7
    s_lshr_b32 s{S_T1}, s2, 3
    s_and_b32 s{S_T1}, s{S_T1}, 3
    s_lshr_b32 s{S_RB}, s2, 5
    s_lshl_b32 s{S_J}, s{S_T0}, 2
    s_add_u32 s{S_J}, s{S_J}, s{S_T1}
    s_lshl_b32 s{S_W2K}, s{S_W}, 11
    s_lshl_b32 s{S_W1K}, s{S_W}, 10
    s_lshl_b32 s{S_W4K}, s{S_W}, 12
    s_lshl_b32 s{S_DT}, s{S_T1}, 1
    s_add_u32 s{S_DT}, s{S_DT}, s{S_RB}
    s_and_b32 s{S_DT}, s{S_DT}, 7
    s_lshl_b32 s{S_BT}, s{S_DT}, 12
    s_lshl_b32 s{S_ROT2}, s{S_RB}, 2
    s_add_u32 s{S_ROT2}, s{S_ROT2}, s{S_T1}
    s_lshr_b32 s{S_ROT2}, s{S_ROT2}, 1
    s_lshl_b32 s{S_ROT2}, s{S_ROT2}, 13
    s_waitcnt lgkmcnt(0)
    """)
    srd(p, S_X, 60, 61, 2097152)
    p.e(f"buffer_load_dwordx4 v[8:11], v5, {S4(S_X)}, s3 offen", tag="X")
    p.e(f"buffer_load_dwordx4 v[12:15], v5, {S4(S_X)}, s3 offen offset:128", tag="X")
    srd(p, S_XN, 74, 75, XN_BYTES, add=WS_XN)
    srd(p, S_ACT, 74, 75, ACT_BYTES, add=WS_ACT)
    p.e(f"s_add_u32 s{S_KT}, s74, {WS_FLG}\ns_addc_u32 s{S_VT}, s75, 0")
    p.e(f"s_mov_b32 s{S_DBG+2}, 256\ns_mov_b32 s{S_DBG+3}, 0x00020000")
    p.e(f"s_lshl_b32 s{S_T1}, s{S_T0}, 19\ns_add_u32 s{S_T1}, s{S_T1}, {1536*256}")
    srd(p, S_K, 62, 63, 131072, add=f"s{S_T1}")
    srd(p, S_V, 64, 65, 131072, add=f"s{S_T1}")
    p.e(f"""
    s_memrealtime s[60:61]
    s_lshl_b32 s{S_FO}, s2, 2
    v_and_b32 v{V_FL}, 31, v{L}
    v_lshlrev_b32 v{V_FL}, 2, v{V_FL}
    v_mov_b32 v51, 0
    v_mov_b32 v52, 0
    s_waitcnt lgkmcnt(0)
    s_or_b32 s{S_EP}, s60, 1
    v_mov_b32 v50, s{S_EP}
    s_cmp_lg_u32 s{S_W}, 0
    s_cbranch_scc1 NOEP
    s_mov_b64 exec, 1
    """)
    p.e(f"buffer_atomic_cmpswap v[50:51], v52, {S4(S_DBG)}, 0 offen sc0 sc1", tag="EP")
    p.e("s_mov_b64 exec, -1\ns_branch EPD")
    p.label("NOEP")
    p.e(f"buffer_load_dword v{V_PFD}, v52, {S4(S_K)}, 0 offen", tag="OPT_PF")
    p.label("EPD")
    p.e(f"""
    v_lshrrev_b32 v{T+2}, 4, v{L}
    v_and_b32 v{T+3}, 15, v{L}
    v_lshlrev_b32 v{T+4}, 2, v{T+2}
    v_xor_b32 v{T+4}, v{T+3}, v{T+4}
    v_lshlrev_b32 v{T+4}, 4, v{T+4}
    v_lshl_add_u32 v{T+5}, v{T}, 4, v{T+2}
    v_lshl_add_u32 v{V_OQ}, v{T+5}, 13, v{T+4}
    s_lshl_b32 s{S_T1}, s{S_J}, 8
    s_sub_u32 s{S_T2}, {4194304}, s{S_T1}
    """)
    srd(p, S_WQ, 66, 67, f"s{S_T2}", add=f"s{S_T1}")
    for g in dma_q(0): p.e(g)
    p.e(f"""
    s_lshr_b32 s{S_HOFF}, s{S_T0}, 1
    s_mul_i32 s{S_HOFF}, s{S_HOFF}, 7
    s_and_b32 s{S_T1}, s{S_J}, 7
    s_add_u32 s{S_HOFF}, s{S_HOFF}, s{S_T1}
    s_cmp_eq_u32 s{S_T1}, 7
    s_cselect_b32 s{S_OOFF}, 1, 0
    s_lshl_b32 s{S_T1}, s{S_HOFF}, 7
    s_sub_u32 s{S_T2}, {512*3584}, s{S_T1}
    s_cmp_lg_u32 s{S_OOFF}, 0
    s_cselect_b32 s{S_T2}, 0, s{S_T2}
    """)
    srd(p, S_WG, 68, 69, f"s{S_T2}", add=f"s{S_T1}")
    srd(p, S_WU, 70, 71, f"s{S_T2}", add=f"s{S_T1}")
    srd(p, S_FLG, S_KT, S_VT, 16384)
    p.e(f"""
    v_and_b32 v{T+7}, 7, v{L}
    v_and_b32 v{T+8}, 1, v{T+2}
    v_lshlrev_b32 v{T+8}, 2, v{T+8}
    v_xor_b32 v{T+7}, v{T+7}, v{T+8}
    v_lshlrev_b32 v{T+7}, 4, v{T+7}
    v_lshl_add_u32 v{T+6}, v{T}, 4, v4
    v_mul_u32_u24 v{T+6}, 3584, v{T+6}
    v_add_u32 v{V_OG}, v{T+6}, v{T+7}
    s_mov_b32 s{S_C0}, 0x{QSCALE:08x}
    s_mov_b32 s{S_C0+1}, 0x{QSCALE:08x}
    s_mov_b32 s{S_NL2E}, 0x{f2u(-LOG2E):08x}
    s_mov_b32 s{S_NL2E+1}, 0x{f2u(-LOG2E):08x}
    s_mov_b32 s{S_FLAG}, 0
    s_mov_b32 s{S_ONES}, 0x3f803f80
    s_mov_b32 s{S_KT}, s{S_ROT2}
    s_mov_b32 s{S_VT}, s{S_ROT2}
    v_lshl_add_u32 v{T+5}, v{T}, 3, v{T+2}
    v_lshl_add_u32 v{V_OV}, v{T+5}, 8, v{T+4}
    v_xor_b32 v{T+6}, v{T+3}, v{T+5}
    v_and_b32 v{T+6}, 15, v{T+6}
    v_lshlrev_b32 v{T+6}, 4, v{T+6}
    v_lshl_add_u32 v{V_OK0}, v{T+5}, 8, v{T+6}
    v_add_u32 v{T+7}, 4, v{T+5}
    v_xor_b32 v{T+6}, v{T+3}, v{T+7}
    v_and_b32 v{T+6}, 15, v{T+6}
    v_lshlrev_b32 v{T+6}, 4, v{T+6}
    v_lshl_add_u32 v{V_OK1}, v{T+5}, 8, v{T+6}
    s_lshl_b32 s{S_T2}, s{S_RB}, 3
    s_lshl_b32 s{S_T1}, s{S_W}, 1
    s_add_u32 s{S_T2}, s{S_T2}, s{S_T1}
    s_lshl_b32 s{S_T1}, s{S_T2}, 15
    v_lshlrev_b32 v{T+6}, 4, v{L}
    v_add_u32 v{V_OB0}, s{S_T1}, v{T+6}
    v_add_u32 v{V_OB1}, 32768, v{V_OB0}
    s_mul_i32 s{S_T1}, s{S_T2}, {ACT_KS*1024}
    v_add_u32 v{V_ST0}, s{S_T1}, v{T+6}
    v_add_u32 v{V_ST1}, {ACT_KS*1024}, v{V_ST0}
    v_lshlrev_b32 v{V_PFA}, 7, v{L}
    s_lshl_b32 s{S_HOFF}, s{S_HOFF}, 12
    s_add_u32 s{S_HOFF}, s{S_HOFF}, {256*1024}
    s_cmp_lg_u32 s{S_OOFF}, 0
    s_cselect_b32 s{S_HOFF}, 0x40000000, s{S_HOFF}
    s_lshl_b32 s{S_OOFF}, s{S_J}, 13
    {"s_mov_b32 s%d, 0x40000000" % S_OOFF if OPT.get("nost") else ""}
    {"s_mov_b32 s%d, 0x40000000" % S_HOFF if OPT.get("nost") else ""}
    v_lshrrev_b32 v6, 1, v4
    v_lshlrev_b32 v6, 10, v6
    v_and_b32 v7, 1, v4
    v_lshl_add_u32 v6, v7, 9, v6
    v_lshl_add_u32 v6, v3, 4, v6
    v_lshl_add_u32 v6, v{T}, 13, v6
    v_add_u32 v17, 4096, v6
    v_lshlrev_b32 v16, 4, v3
    v_add_u32 v16, {LDS_LN}, v16
    v_lshl_add_u32 v7, v{T}, 2, v16
    s_lshl_b32 s{S_T1}, s{S_RB}, 6
    v_add_u32 v227, s{S_T1}, v{L}
    v_mul_u32_u24 v227, 3584, v227
    """)
    lds_addrs(p)

def lds_addrs(p):
    T = V_T; L = T + 1
    p.e(f"""
    v_lshrrev_b32 v{T+2}, 5, v{L}
    v_bfe_u32 v{T+3}, v{L}, 4, 1
    v_bfe_u32 v{T+4}, v{L}, 2, 2
    v_and_b32 v{T+5}, 3, v{L}
    v_and_b32 v{T+6}, 1, v{T+5}
    v_lshrrev_b32 v{T+7}, 1, v{T+5}
    v_lshl_add_u32 v{T+6}, v{T+6}, 1, v{T+7}
    v_lshlrev_b32 v{T+7}, 5, v{T+3}
    v_lshl_add_u32 v{T+8}, v{T+6}, 3, v{T+7}
    v_lshl_add_u32 v{T+9}, v{T+5}, 3, v{T+7}
    v_lshl_add_u32 v{T+10}, v{T+2}, 3, v{T+4}
    v_lshl_add_u32 v{T+11}, v{T+2}, 2, v{T+4}
    """)
    for t in range(4):
        p.e(f"""
        v_xor_b32 v{T+12}, {t}, v{T+4}
        v_lshlrev_b32 v{T+12}, 6, v{T+12}
        v_lshl_add_u32 v{T+13}, v{T+10}, 8, v{T+12}
        v_add_u32 v{V_AQ+t}, v{T+13}, v{T+8}
        v_add_u32 v{V_AQ+4+t}, 0x10000, v{V_AQ+t}
        v_lshl_add_u32 v{T+13}, v{T+11}, 8, v{T+12}
        v_add_u32 v{V_V+t}, v{T+13}, v{T+9}
        """)
    p.e(f"v_lshrrev_b32 v{T+14}, 1, v{T+4}")
    for t in range(2):
        p.e(f"""
        v_xor_b32 v{T+12}, {t}, v{T+14}
        v_lshlrev_b32 v{T+12}, 6, v{T+12}
        v_lshl_add_u32 v{T+13}, v{T+10}, 7, v{T+12}
        v_add_u32 v{V_AG+t}, v{T+13}, v{T+9}
        v_add_u32 v{V_AG+2+t}, 0x10000, v{V_AG+t}
        v_add_u32 v{V_AG+4+t}, 0x20000, v{V_AG+t}
        """)
    p.e(f"v_and_b32 v{T+12}, 31, v{L}\nv_and_b32 v{T+13}, 15, v{L}")
    for s in range(8):
        p.e(f"""
        v_add_u32 v{T+14}, {2*s}, v{T+2}
        v_xor_b32 v{T+14}, v{T+14}, v{T+13}
        v_lshlrev_b32 v{T+14}, 4, v{T+14}
        v_lshl_add_u32 v{V_K+s}, v{T+12}, 8, v{T+14}
        """)

NW0 = 3
def layernorm(p):
    p.e(f"""
    s_lshr_b32 s{S_T1}, s2, 2
    s_lshl_b32 s{S_T1}, s{S_T1}, 15
    s_and_b32 s{S_T2}, s2, 3
    s_lshl_b32 s{S_T2}, s{S_T2}, 7
    s_add_u32 s3, s{S_T1}, s{S_T2}
    s_mov_b32 s{S_T0}, 0x3b000000
    """)
    p.e(Wait(vm=["X"]))
    for i in range(8):
        p.e(f"v_lshlrev_b32 v{20+2*i}, 16, v{8+i}\nv_and_b32 v{21+2*i}, 0xffff0000, v{8+i}")
    def reduce(src, off):
        p.e(f"""
        s_nop 1
        v_add_f32_dpp v{src}, v{src}, v{src} row_ror:8 row_mask:0xf bank_mask:0xf
        v_mov_b32 v41, v{src}
        s_nop 1
        v_permlane16_swap_b32 v{src}, v41
        v_add_f32 v{src}, v{src}, v41
        v_mov_b32 v41, v{src}
        s_nop 1
        v_permlane32_swap_b32 v{src}, v41
        v_add_f32 v{src}, v{src}, v41
        ds_write_b32 v7, v{src} offset:{off}
        s_waitcnt lgkmcnt(0)
        s_barrier
        ds_read_b128 v[44:47], v16 offset:{off}
        s_waitcnt lgkmcnt(0)
        v_add_f32 v44, v44, v45
        v_add_f32 v46, v46, v47
        v_add_f32 v40, v44, v46
        """)
    p.e("v_add_f32 v36, v20, v21\nv_add_f32 v37, v22, v23")
    for i in range(2, 8, 2):
        p.e(f"v_add_f32 v36, v36, v{20+2*i}\nv_add_f32 v37, v37, v{21+2*i}\nv_add_f32 v36, v36, v{22+2*i}\nv_add_f32 v37, v37, v{23+2*i}")
    p.e("v_add_f32 v36, v36, v37")
    reduce(36, 0)
    p.e(f"v_mul_f32 v48, s{S_T0}, v40")
    p.e("v_mov_b32 v36, 0\nv_mov_b32 v37, 0")
    for i in range(8):
        p.e(f"v_sub_f32 v38, v{20+2*i}, v48\nv_sub_f32 v39, v{21+2*i}, v48\nv_fmac_f32 v36, v38, v38\nv_fmac_f32 v37, v39, v39")
    p.e("v_add_f32 v36, v36, v37")
    reduce(36, 128)
    p.e(f"""
    v_mul_f32 v49, s{S_T0}, v40
    v_cvt_pk_bf16_f32 v49, v49, v49
    v_and_b32 v49, 0xffff0000, v49
    v_add_f32 v49, 0x{f2u(1e-5):08x}, v49
    v_cvt_pk_bf16_f32 v49, v49, v49
    v_and_b32 v49, 0xffff0000, v49
    v_sqrt_f32 v49, v49
    v_cvt_pk_bf16_f32 v48, v48, v48
    v_cvt_pk_bf16_f32 v49, v49, v49
    v_and_b32 v48, 0xffff0000, v48
    v_and_b32 v49, 0xffff0000, v49
    v_rcp_f32 v49, v49
    """)
    for i in range(8):
        a, b = 20 + 2*i, 21 + 2*i
        p.e(f"""
        v_sub_f32 v{a}, v{a}, v48
        v_sub_f32 v{b}, v{b}, v48
        v_cvt_pk_bf16_f32 v38, v{a}, v{b}
        v_lshlrev_b32 v{a}, 16, v38
        v_and_b32 v{b}, 0xffff0000, v38
        v_mul_f32 v{a}, v{a}, v49
        v_mul_f32 v{b}, v{b}, v49
        v_cvt_pk_bf16_f32 v{8+i}, v{a}, v{b}
        """)
        if i == 3: p.e(f"buffer_store_dwordx4 v[8:11], v6, {S4(S_XN)}, s3 offen{SC}")
    p.e(f"s_lshl_b32 s{S_T0}, s{S_RB}, 7\nv_mov_b32 v53, {LDS_EP}")
    p.e(f"buffer_store_dwordx4 v[12:15], v17, {S4(S_XN)}, s3 offen{SC}", tag="XST")
    p.e(Wait(vm=["XST"]))
    p.e("s_barrier")
    p.e(f"""
    s_cmp_lg_u32 s{S_W}, 0
    s_cbranch_scc1 SY1_D
    v_readfirstlane_b32 s{S_T1}, v50
    s_nop 0
    s_cmp_eq_u32 s{S_T1}, 0
    s_cselect_b32 s{S_EP}, s{S_EP}, s{S_T1}
    """)
    p.e(flag_store(0, 54, 55, "OPT_FS"))
    p.e("ds_write_b32 v53, v54")
    p.label("SY1_D")
    p.e("s_load_dwordx2 s[60:61], s[0:1], 32\ns_load_dwordx2 s[64:65], s[0:1], 64")
    for t in range(1, NW0):
        for g in dma_q(t): p.e(g)
    p.e(f"s_cmp_lg_u32 s{S_W}, 0\ns_cbranch_scc1 SY1_W")
    p.e(poll_issue(0, S_T0, "OPT_P1"))
    p.e("s_waitcnt vmcnt(0)")
    poll_check(p, "SY1", 0, S_T0, "none", S_T2)
    p.label("SY1_W")
    p.e("s_waitcnt vmcnt(0) lgkmcnt(0)\ns_barrier")

def dma_q(t):
    tag = f"W{t}"; g = []
    for ii in range(4):
        pre = [f"s_lshl_b32 s{S_DQ}, s{S_DT}, 19", f"s_add_u32 m0, s{S_W4K}, {t*SLOT}", f"s_add_u32 s{S_DT}, s{S_DT}, 1"] if ii == 0 else \
              [f"s_add_u32 m0, s{S_W4K}, {t*SLOT}", f"s_add_u32 s{S_DQ}, s{S_DQ}, {32768-1024}"]
        g.append(pre + [Ins(f"buffer_load_dwordx4 v{V_OQ}, {S4(S_WQ)}, s{S_DQ} offen offset:{ii*1024} lds", tag)])
    g[-1].append(f"s_and_b32 s{S_DT}, s{S_DT}, 7")
    return g
def dma_g(tag):
    return [[f"s_mul_i32 s{S_DQ}, s{S_DT}, {64*3584}", f"s_mov_b32 m0, s{S_GM}", f"s_add_u32 s{S_DT}, s{S_DT}, 1",
             Ins(f"buffer_load_dwordx4 v{V_OG}, {S4(S_WG)}, s{S_DQ} offen lds", tag)],
            [f"s_add_u32 m0, s{S_GM}, 8192", f"s_and_b32 s{S_DT}, s{S_DT}, 7",
             Ins(f"buffer_load_dwordx4 v{V_OG}, {S4(S_WU)}, s{S_DQ} offen lds", tag)],
            [f"s_add_u32 m0, s{S_GM}, 8192", f"s_add_u32 s{S_DQ}, s{S_DQ}, {8*3584-1024}",
             Ins(f"buffer_load_dwordx4 v{V_OG}, {S4(S_WU)}, s{S_DQ} offen offset:1024 lds", tag)],
            [f"s_mov_b32 m0, s{S_GM}", f"s_add_u32 s{S_GM}, s{S_GM}, {SLOT}",
             Ins(f"buffer_load_dwordx4 v{V_OG}, {S4(S_WG)}, s{S_DQ} offen offset:1024 lds", tag)]]
def dma_k(ldsoff, tag):
    return [[f"s_add_u32 m0, s{S_W2K}, {ldsoff}", f"s_nop 0",
             Ins(f"buffer_load_dwordx4 v{V_OK0}, {S4(S_K)}, s{S_KT} offen lds", tag)],
            [f"s_add_u32 m0, s{S_W2K}, {ldsoff}", f"s_nop 0",
             Ins(f"buffer_load_dwordx4 v{V_OK1}, {S4(S_K)}, s{S_KT} offen offset:1024 lds", tag),
             f"s_add_u32 s{S_KT}, s{S_KT}, 8192", f"s_and_b32 s{S_KT}, s{S_KT}, 0x1ffff"]]
def dma_v(ldsoff, tag):
    return [[f"s_add_u32 m0, s{S_W2K}, {ldsoff}", f"s_nop 0",
             Ins(f"buffer_load_dwordx4 v{V_OV}, {S4(S_V)}, s{S_VT} offen lds", tag)],
            [f"s_add_u32 m0, s{S_W2K}, {ldsoff}", f"s_nop 0",
             Ins(f"buffer_load_dwordx4 v{V_OV}, {S4(S_V)}, s{S_VT} offen offset:1024 lds", tag),
             f"s_add_u32 s{S_VT}, s{S_VT}, 8192", f"s_and_b32 s{S_VT}, s{S_VT}, 0x1ffff"]]
def dma_d(pp):
    sl = (pp % 4) * SLOT; tag = f"D{pp%4}"
    return dma_v(sl, tag) + dma_k(sl + 8192, tag)
def dma_kk(): return dma_k(KKSLOT, "KK") + dma_k(KKSLOT + 8192, "KK")

def BR1(s, b): return 32 + (s % 16)*8 + b*4
def BR2(s, b): return 160 + (s % 12)*8 + b*4
def AB1(par, a): return par*16 + a*4
def AB2(par, a): return 128 + par*16 + a*4
def bload(s, ring, pre):
    u = s & 3; tag = f"{pre}{s}"
    SC = "" if OPT.get("nosc") else " sc1"
    g = [[Ins(f"buffer_load_dwordx4 {ar(ring(s,0),4)}, v{V_OB0}, {S4(S_XN)}, s{S_BT} offen offset:{u*1024}{SC}", tag)],
         [Ins(f"buffer_load_dwordx4 {ar(ring(s,1),4)}, v{V_OB1}, {S4(S_XN)}, s{S_BT} offen offset:{u*1024}{SC}", tag)]]
    if u == 3 and not OPT.get("bfix"): g[1] += [f"s_add_u32 s{S_BT}, s{S_BT}, 4096", f"s_and_b32 s{S_BT}, s{S_BT}, 0x7fff"]
    return g
def areads_q(s):
    t, u = s >> 2, s & 3
    sl = t * SLOT; hi = sl // 65536; sl -= hi * 65536
    return [Ins(f"ds_read_b64_tr_b16 {ar(AB1(s&1,a)+2*e,2)}, v{V_AQ+4*hi+a} offset:{sl+(16*u+4*e)*256}", f"A{s}") for a in range(4) for e in range(2)]
def areads_g(s):
    t, u = s >> 2, s & 3
    sl = gslot(t); hi = sl // 65536; sl -= hi * 65536
    return [Ins(f"ds_read_b64_tr_b16 {ar(AB2(s&1,a)+2*e,2)}, v{V_AG+2*hi+(a&1)} offset:{sl+(a>>1)*8192+(16*u+4*e)*128}", f"AG{s}") for a in range(4) for e in range(2)]
def kreads(off, tag):
    return [Ins(f"ds_read_b128 {ar(A_KF+4*s,4)}, v{V_K+s} offset:{off}", tag) for s in range(8)]
def kreads_hi(off, tag, tmp):
    return [[f"v_add_u32 v{tmp+(s&3)}, 0x20000, v{V_K+s}",
             Ins(f"ds_read_b128 {ar(A_KF+4*s,4)}, v{tmp+(s&3)} offset:{off-131072}", tag)] for s in range(8)]
def vreads(sl, tag):
    return [Ins(f"ds_read_b64_tr_b16 {ar(A_VF+(u*4+t)*4+2*e,2)}, v{V_V+t} offset:{sl+(16*u+8*e)*256}", tag) for u in range(2) for t in range(4) for e in range(2)]

def p1q(p):
    NB0 = OPT.get("nb0", 6)
    for s in range(NB0):
        for g in bload(s, BR1, "B"): p.e(g)
    for x in areads_q(0): p.e(x)
    p.e("ds_read_b32 v54, v53", tag="EPR")
    p.e(f"""
    s_mov_b32 s{S_WD+2}, {1792*1024}
    s_mov_b32 s{S_WD+3}, 0x00020000
    s_waitcnt lgkmcnt(0)
    v_readfirstlane_b32 s{S_EP}, v54
    """)
    sc = Sched()
    for s in range(32):
        t, u = s >> 2, s & 3
        mf = []
        for a in range(4):
            for b in range(2):
                d = vr(QACC(a, b), 16)
                mf.append(mfma(d, ar(AB1(s & 1, a), 4), ar(BR1(s, b), 4), d if s else "0"))
        g0 = sc.add(mf)
        if u == 3: sc.before(g0, [Wait(vm=[f"W{t+1}" if t + 1 < 8 else "KK"], lg=[f"A{s}"]), "s_barrier"])
        sc.before(g0, Wait(vm=[f"B{s}"], lg=[f"A{s}"]))
        if s == 0: sc.before(g0, lambda p: stamp(p, 1))
        if s % 4 == 0: sc.before(g0, lambda p, s=s: stamp(p, 1 + s // 4, 1))
        sc.spread(areads_q(s + 1) if s + 1 < 32 else kreads_hi(KKSLOT, "KF", V_T), g0, g0 + 4)
        if s >= NB0:
            for x in bload(s, BR1, "B"): sc.queue("B", x, max(0, 8*(s - 16) + 7), 8*s - 48)
    for t in range(NW0, 8):
        for x in dma_q(t): sc.queue("W", x, 0, 8*(4*t - 1) - 64)
    for x in dma_kk(): sc.queue("KV", x, 64, 8*31 - 64)
    for i in range(2):
        for x in dma_d(i): sc.queue("KV", x, 8*(4*i + 3), 250)
    sc.fixed(OPT.get("pfg", 100), [Ins(f"buffer_load_dword v{V_PFD}, v227, {S4(S_WG)}, 0 offen", "PF")])
    sc.fixed(OPT.get("pfu", 180), [Ins(f"buffer_load_dword v{V_PFD}, v227, {S4(S_WU)}, 0 offen", "PF")])
    sc.emit(p)
    if sc.report: print("p1q late:", sc.report)

def qconv():
    out = []
    for k in range(64):
        out.append([f"v_pk_mul_f32 v[{2*k}:{2*k+1}], v[{2*k}:{2*k+1}], s[{S_C0}:{S_C0+1}]"])
        out.append([f"v_cvt_pk_bf16_f32 v{k}, v{2*k}, v{2*k+1}"])
    res = [out[0]]
    for k in range(64):
        if k + 1 < 64: res.append(out[2*(k+1)])
        res.append(out[2*k+1])
    return res

def qk_mf(par, first_c):
    mf = []
    for s in range(8):
        for b in range(2):
            d = vr(SB(par, b), 16)
            mf.append(mfma(d, ar(A_KF + 4*s, 4), vr(QF(b, s), 4), d if s else first_c(b)))
    return mf
def pv_mf(par):
    mf = []
    for u in range(2):
        for t in range(4):
            for b in range(2):
                d = ar(OACC(t, b), 16)
                mf.append(mfma(d, ar(A_VF + (u*4+t)*4, 4), vr(PB(par, b, u), 4), d))
    return mf
def softmax_items(par):
    out = []
    for u in range(2):
        for b in range(2):
            for i in range(0, 8, 2):
                r = SB(par, b) + 8*u + i
                out.append([f"v_exp_f32 v{r}, v{r}"])
                out.append([f"v_exp_f32 v{r+1}, v{r+1}"])
                if OPT.get("dot2"):
                    out.append(["s_nop 0"] if False else [f"v_cvt_pk_bf16_f32 v{PB(par,b,u)+i//2}, v{r}, v{r+1}"])
                    out.append([f"v_dot2c_f32_bf16 v{V_L+b}, s{S_ONES}, v{PB(par,b,u)+i//2}"])
                else:
                    out.append([f"v_add_f32 v{V_L+b}, v{V_L+b}, v{r}"])
                    out.append([f"v_add_f32 v{V_L+b}, v{V_L+b}, v{r+1}"])
                    out.append([f"v_cvt_pk_bf16_f32 v{PB(par,b,u)+i//2}, v{r}, v{r+1}"])
    if OPT.get("dot2"):
        e = [out[i:i+2] for i in range(0, 64, 4)]; c = [out[i+2:i+4] for i in range(0, 64, 4)]
        res = list(e[0])
        for k in range(16):
            if k + 1 < 16: res += e[k+1]
            else: res += [["s_nop 0"]]
            res += c[k]
        return res
    return out
HEAD, TAIL = 35, 10
def period(p, pp, qk=True, dma=True, kread=True, nexthead=True, last=False, extra=(), endvm=(), xds=()):
    par = pp & 1; sl = (pp % 4) * SLOT
    sm = softmax_items(par); smn = softmax_items(par ^ 1)
    negm = lambda b: vr(NEGM(b), 16)
    d = (dma_d(pp + 3) if dma else []) + list(extra)
    sc = Sched()
    if qk:
        sc.add(qk_mf(par ^ 1, negm))
        sc.spread(vreads(sl, "VF"), 0, 10); sc.spread(sm[HEAD:len(sm)-TAIL], 0, 16)
    else:
        for x in vreads(sl, "VF"): p.e(x)
        for x in sm[HEAD:len(sm)-TAIL]: p.e(x)
        p.e("s_nop 1")
    g0 = sc.add(pv_mf(par))
    sc.before(g0, Wait(lg=["VF"]))
    sc.spread(sm[len(sm)-TAIL:], g0, g0 + 3)
    if kread: sc.spread(kreads(sl + 8192, "KF"), g0 + 3, g0 + 12)
    if nexthead: sc.spread(smn[:HEAD], g0 + 3, g0 + 16)
    if xds: sc.spread(list(xds), g0 + 3, g0 + 12)
    n = len(sc.mf)
    for k, x in enumerate(d): sc.fixed(1 + (k * (n - 2)) // max(len(d), 1), x)
    sc.emit(p)
    if not last:
        p.e(Wait(vm=[f"D{(pp+1)%4}"] + list(endvm), lg=["KF"])); p.e("s_barrier")

def maxtree(p, par, dst, init=True):
    for b in range(2):
        s0 = SB(par, b)
        if init: p.e(f"v_max3_f32 v{dst+b}, v{s0}, v{s0+1}, v{s0+2}"); rest = list(range(3, 16))
        else: rest = list(range(16))
        while len(rest) >= 2:
            p.e(f"v_max3_f32 v{dst+b}, v{dst+b}, v{s0+rest[0]}, v{s0+rest[1]}"); rest = rest[2:]
        if rest: p.e(f"v_max_f32 v{dst+b}, v{dst+b}, v{s0+rest[0]}")
def negm_from(p, m):
    p.e(f"""
    v_mov_b32 v{m+2}, v{m}
    v_mov_b32 v{m+3}, v{m+1}
    s_nop 1
    v_permlane32_swap_b32 v{m}, v{m+2}
    v_permlane32_swap_b32 v{m+1}, v{m+3}
    v_max_f32 v{m}, v{m}, v{m+2}
    v_max_f32 v{m+1}, v{m+1}, v{m+3}
    """)
    for b in range(2):
        for i in range(16): p.e(f"v_sub_f32 v{NEGM(b)+i}, 0, v{m+b}")

def attention(p):
    T = V_T
    p.label("K2_ATT")
    p.e(Wait(lg=["KF"]))
    zero = [f"v_accvgpr_write_b32 a{i}, 0" for i in range(128)]
    sc = Sched(); sc.add(qk_mf(0, lambda b: "0")); sc.spread(zero, 0, 16)
    for k, x in enumerate(dma_d(2)): sc.fixed(1 + 4*k, x)
    sc.emit(p)
    for g in kreads_hi(KKSLOT + 8192, "KF", T + 8): p.e(g)
    p.e(f"v_mov_b32 v{V_L}, 0\nv_mov_b32 v{V_L+1}, 0\ns_add_u32 s{S_GM}, s{S_W2K}, {gslot(0)}")
    p.e(f"s_cmp_lg_u32 s{S_FLAG}, 0\ns_cbranch_scc1 K2_HAVEM")
    maxtree(p, 0, T)
    negm_from(p, T)
    p.label("K2_HAVEM")
    for b in range(2):
        for i in range(16): p.e(f"v_add_f32 v{SB(0,b)+i}, v{SB(0,b)+i}, v{NEGM(b)+i}")
    for x in softmax_items(0)[:HEAD]: p.e(x)
    p.e(Wait(vm=["D0"], lg=["KF"])); p.e("s_barrier")
    p.e(f"s_mov_b32 s{S_LOOP}, 0")
    stamp(p, 3)
    p.e(f"""
    s_lshr_b32 s{S_T0}, s2, 3
    s_lshl_b32 s{S_T0}, s{S_T0}, 2
    s_add_u32 s{S_T0}, s{S_T0}, s{S_W}
    s_and_b32 s{S_PF}, s2, 3
    s_lshl_b32 s{S_PF}, s{S_PF}, 7
    s_add_u32 s{S_PF}, s{S_PF}, s{S_T0}
    s_lshl_b32 s{S_PF}, s{S_PF}, 13
    s_lshl_b32 s{S_T0}, s{S_T0}, 14
    s_and_b32 s{S_T1}, s2, 1
    s_lshl_b32 s{S_T1}, s{S_T1}, 7
    s_add_u32 s{S_T0}, s{S_T0}, s{S_T1}
    v_lshrrev_b32 v{T+2}, 9, v{V_PFA}
    v_bfe_u32 v{T+3}, v{V_PFA}, 7, 2
    v_lshlrev_b32 v{T+2}, 10, v{T+2}
    v_lshl_add_u32 v{T+2}, v{T+3}, 8, v{T+2}
    """)
    pfo = [[Ins(f"buffer_load_dword v{V_PFD}, v{V_PFA}, {S4(S_WO)}, s{S_PF} offen", "PF")]]
    pfd = [[Ins(f"buffer_load_dword v{V_PFD}, v{T+2}, {S4(S_WD)}, s{S_T0} offen", "PF")]]
    period(p, 0)
    p.loop_begin()
    for i in range(1, 5): period(p, i, extra=dma_g("G") if i in (1, 3) else (pfo if i == 2 else pfd))
    p.loop_end("K2_LOOP", 3, [f"s_add_u32 s{S_LOOP}, s{S_LOOP}, 1", f"s_cmp_lt_u32 s{S_LOOP}, 3", "s_cbranch_scc1 K2_LOOP"])
    period(p, 13, dma=False, extra=bload(0, BR2, "C") + bload(1, BR2, "C") + bload(2, BR2, "C") + bload(3, BR2, "C"))
    g6 = dma_g("G6"); g6[0] = [f"s_mov_b32 s{S_GM}, s{S_W2K}"] + g6[0]
    period(p, 14, dma=False, kread=False, extra=g6 + dma_g("G7"), endvm=["G"])
    period(p, 15, qk=False, dma=False, kread=False, nexthead=False, last=True,
           extra=bload(4, BR2, "C") + bload(5, BR2, "C") + bload(6, BR2, "C") + bload(7, BR2, "C"), xds=areads_g(0))

V_LI = 48
def oepi_head(p):
    T = V_T
    p.e(f"""
    v_mov_b32 v{T}, v{V_L}
    v_mov_b32 v{T+1}, v{V_L+1}
    s_nop 1
    v_permlane32_swap_b32 v{V_L}, v{T}
    v_permlane32_swap_b32 v{V_L+1}, v{T+1}
    v_add_f32 v{V_L}, v{V_L}, v{T}
    v_add_f32 v{V_L+1}, v{V_L+1}, v{T+1}
    v_add_f32 v{T+1}, v{V_L}, v{V_L+1}
    s_mov_b32 s{S_T0}, 0x5d800000
    v_cmp_ngt_f32 vcc, s{S_T0}, v{T+1}
    s_nop 1
    s_cmp_lg_u64 vcc, 0
    s_cselect_b32 s{S_T1}, 1, 0
    v_mov_b32 v{T}, s{S_T1}
    v_mov_b32 v{T+1}, {LDS_FLAG}
    v_mov_b32 v{T+2}, s{S_W}
    v_lshl_add_u32 v{T+2}, v{T+2}, 2, v{T+1}
    ds_write_b32 v{T+2}, v{T}
    """)
    p.e(Wait(vm=["G7"])); p.e("s_waitcnt lgkmcnt(0)\ns_barrier")
    p.e(f"""
    ds_read_b128 v[{T+4}:{T+7}], v{T+1}
    s_add_u32 s{S_T2}, s{S_OOFF}, 4096
    s_waitcnt lgkmcnt(0)
    v_or_b32 v{T+4}, v{T+4}, v{T+5}
    v_or3_b32 v{T+4}, v{T+4}, v{T+6}, v{T+7}
    s_nop 0
    v_readfirstlane_b32 s{S_T1}, v{T+4}
    s_nop 0
    s_andn2_b32 s{S_T1}, s{S_T1}, s{S_FLAG}
    s_cmp_lg_u32 s{S_T1}, 0
    s_cbranch_scc1 K2_SLOW
    v_rcp_f32 v{V_LI}, v{V_L}
    v_rcp_f32 v{V_LI+2}, v{V_L+1}
    s_nop 0
    v_mov_b32 v{V_LI+1}, v{V_LI}
    v_mov_b32 v{V_LI+3}, v{V_LI+2}
    """)
def oepi_groups():
    out = []; k = 0
    for t in range(4):
        for b in range(2):
            for uu in range(2):
                o0 = OACC(t, b) + 8*uu
                tmp = (k % 4) * 8; pk = 32 + (k % 4) * 4; k += 1
                g = [f"v_accvgpr_read_b32 v{tmp+i}, a{o0+i}" for i in range(8)]
                g += [f"v_mul_f32 v{tmp+i}, v{tmp+i}, v{V_LI+2*b}" for i in range(8)]
                g += [f"v_cvt_pk_bf16_f32 v{pk+i//2}, v{tmp+i}, v{tmp+i+1}" for i in range(0, 8, 2)]
                off = (2*t + uu) * 1024
                so = S_OOFF if off < 4096 else S_T2
                g.append(Ins(f"buffer_store_dwordx4 v[{pk}:{pk+3}], v{V_ST0+b}, {S4(S_ACT)}, s{so} offen offset:{off % 4096}{SC}", "OST"))
                out.append(g)
    return out

def slowpath():
    p = Prog(); T = V_T
    p.label("K2_SLOW")
    p.e(f"""
    s_mov_b32 s{S_FLAG}, 1
    s_mov_b32 s{S_KT}, 0
    s_mov_b32 s{S_LOOP}, 0
    s_sub_u32 s{S_BT}, s{S_BT}, 8192
    s_and_b32 s{S_BT}, s{S_BT}, 0x7fff
    v_mov_b32 v{T}, 0xff800000
    v_mov_b32 v{T+1}, 0xff800000
    s_waitcnt vmcnt(0) lgkmcnt(0)
    """)
    p.loop_begin()
    p.e("s_barrier")
    for g in dma_k(8192, "X"): p.e(g)
    p.e("s_waitcnt vmcnt(0)\ns_barrier")
    for x in kreads(8192, "KF"): p.e(x)
    p.e("s_waitcnt lgkmcnt(0)")
    for x in qk_mf(0, lambda b: "0"): p.e(x)
    p.e("s_nop 11")
    maxtree(p, 0, T, init=False)
    p.loop_end("K2_SLOWL", 16, [f"s_add_u32 s{S_LOOP}, s{S_LOOP}, 1", f"s_cmp_lt_u32 s{S_LOOP}, 16", "s_cbranch_scc1 K2_SLOWL"])
    negm_from(p, T)
    p.e(f"s_barrier\ns_mov_b32 s{S_KT}, s{S_ROT2}\ns_mov_b32 s{S_VT}, s{S_ROT2}")
    for g in dma_kk(): p.e(g)
    for i in range(2):
        for g in dma_d(i): p.e(g)
    p.e("s_waitcnt vmcnt(0)\ns_barrier")
    for g in kreads_hi(KKSLOT, "KF", T + 8): p.e(g)
    p.e("s_branch K2_ATT")
    return p

def late_setup():
    T = V_T; VL = K_VL
    return lines(f"""
    v_mbcnt_lo_u32_b32 v{VL}, -1, 0
    v_mbcnt_hi_u32_b32 v{VL}, -1, v{VL}
    s_and_b32 s{K_KQ}, s2, 3
    s_lshr_b32 s{S_T0}, s2, 3
    s_and_b32 s{K_CT}, s{S_T0}, 3
    s_lshr_b32 s{K_SR32}, s{S_T0}, 2
    s_lshl_b32 s{K_SR32}, s{K_SR32}, 2
    s_and_b32 s{S_T0}, s2, 4
    s_lshr_b32 s3, s2, 6
    s_add_u32 s3, s3, s{S_T0}
    s_lshl_b32 s3, s3, 7
    s_lshl_b32 s{S_T0}, s{S_T0}, 3
    s_add_u32 s{K_SR32}, s{K_SR32}, s{S_T0}
    v_lshlrev_b32 v{K_VL16}, 4, v{VL}
    v_and_b32 v{T}, 3, v{VL}
    v_bfe_u32 v{T+1}, v{VL}, 2, 1
    v_lshl_add_u32 v{T}, v{T}, 3, v{T+1}
    s_lshl_b32 s{S_T0}, s{K_KQ}, 1
    v_add_u32 v{T}, s{S_T0}, v{T}
    v_lshlrev_b32 v{V_FL2}, 2, v{T}
    v_lshrrev_b32 v{T}, 4, v{VL}
    v_and_b32 v{T+1}, 15, v{VL}
    v_lshlrev_b32 v{T+2}, 2, v{T}
    v_xor_b32 v{T+1}, v{T+1}, v{T+2}
    v_lshlrev_b32 v{T+1}, 4, v{T+1}
    v_lshl_add_u32 v{K_VSW}, v{T}, 10, v{T+1}
    s_lshl_b32 s{S_T0}, s{S_W}, 12
    s_lshl_b32 s{S_T1}, s{K_CT}, 8
    s_add_u32 s{S_T0}, s{S_T0}, s{S_T1}
    v_add_u32 v{K_VSW}, s{S_T0}, v{K_VSW}
    s_add_u32 s{S_T0}, s{K_SR32}, s{S_W}
    s_mul_i32 s{S_T0}, s{S_T0}, {ACT_KS*1024}
    v_add_u32 v{K_VSA}, s{S_T0}, v{K_VL16}
    s_lshl_b32 s{K_SSW}, s{K_KQ}, 20
    s_lshl_b32 s{K_SSA}, s{K_KQ}, 16
    v_lshrrev_b32 v{T}, 5, v{VL}
    v_bfe_u32 v{T+1}, v{VL}, 2, 2
    v_bfe_u32 v{T+2}, v{VL}, 4, 1
    v_and_b32 v{T+3}, 3, v{VL}
    v_and_b32 v{T+4}, 1, v{T+3}
    v_lshrrev_b32 v{T+5}, 1, v{T+3}
    v_lshl_add_u32 v{T+4}, v{T+4}, 1, v{T+5}
    v_lshlrev_b32 v{T+5}, 5, v{T+2}
    v_lshl_add_u32 v{T+4}, v{T+4}, 3, v{T+5}
    v_lshl_add_u32 v{T+5}, v{T}, 2, v{T+1}
    v_lshl_add_u32 v{T+6}, v{T+5}, 8, v{T+4}
    s_and_b32 s{S_T0}, s{S_W}, 1
    s_lshl_b32 s{S_T0}, s{S_T0}, 1
    v_xor_b32 v{T+7}, s{S_T0}, v{T+1}
    v_lshl_add_u32 v{K_VRA}, v{T+7}, 6, v{T+6}
    v_xor_b32 v{T+7}, 1, v{T+7}
    v_lshl_add_u32 v{K_VRA+1}, v{T+7}, 6, v{T+6}
    v_add_u32 v{K_VRA+2}, 0x10000, v{K_VRA}
    v_add_u32 v{K_VRA+3}, 0x10000, v{K_VRA+1}
    v_add_u32 v{K_VRA+4}, 0x20000, v{K_VRA}
    v_add_u32 v{K_VRA+5}, 0x20000, v{K_VRA+1}
    s_and_b32 s{S_T0}, s{S_W}, 2
    s_lshl_b32 s{S_T0}, s{S_T0}, 12
    v_add_u32 v{K_VRB}, s{S_T0}, v{K_VL16}
    v_add_u32 v{K_VRB+1}, 0x10000, v{K_VRB}
    v_add_u32 v{K_VRB+2}, 0x20000, v{K_VRB}
    s_lshl_b32 s{K_SLB}, s{S_W}, 14
    s_add_u32 s{K_SLB}, s{K_SLB}, 65536
    v_lshl_add_u32 v{T+6}, v{T+5}, 7, v{T+4}
    v_add_u32 v{T+6}, s{K_SLB}, v{T+6}
    v_lshrrev_b32 v{T+7}, 1, v{T+1}
    v_lshl_add_u32 v{K_VA0}, v{T+7}, 6, v{T+6}
    v_xor_b32 v{T+7}, 1, v{T+7}
    v_lshl_add_u32 v{K_VA0+1}, v{T+7}, 6, v{T+6}
    v_subrev_u32 v{K_VA2}, 0x10000, v{K_VA0}
    v_subrev_u32 v{K_VA2+1}, 0x10000, v{K_VA0+1}
    s_mul_i32 s{K_SWO}, s{S_W}, {28*16384}
    s_mul_i32 s{K_SA}, s{S_W}, {28*1024}
    s_add_u32 s{K_SA}, s{K_SA}, {256*1024}
    s_and_b32 s{S_T1}, s{K_KQ}, 2
    s_add_u32 s{S_T1}, s{S_T1}, s{K_SR32}
    s_mul_i32 s{S_T0}, s{S_T1}, {ACT_KS*1024}
    v_add_u32 v{K_VB0}, s{S_T0}, v{K_VL16}
    v_add_u32 v{K_VB1}, {ACT_KS*1024}, v{K_VB0}
    s_lshr_b32 s{S_T0}, s{S_W}, 1
    s_add_u32 s{S_T0}, s{S_T0}, s{S_T1}
    s_lshl_b32 s{S_T0}, s{S_T0}, 15
    s_and_b32 s{S_T1}, s{S_W}, 1
    s_lshl_b32 s{S_T1}, s{S_T1}, 6
    s_add_u32 s{S_T0}, s{S_T0}, s{S_T1}
    s_lshl_b32 s{S_T1}, s{K_CT}, 8
    s_and_b32 s{K_SPO}, s{K_KQ}, 1
    s_lshl_b32 s{K_SPO}, s{K_SPO}, 7
    s_add_u32 s{S_T1}, s{S_T1}, s{K_SPO}
    s_add_u32 s{S_T0}, s{S_T0}, s{S_T1}
    v_and_b32 v{T+6}, 31, v{VL}
    v_lshlrev_b32 v{T+6}, 10, v{T+6}
    v_lshl_add_u32 v{T+6}, v{T}, 4, v{T+6}
    v_add_u32 v{K_VX}, s{S_T0}, v{T+6}
    v_lshrrev_b32 v{T+6}, 3, v{VL}
    v_and_b32 v{T+7}, 7, v{VL}
    v_lshlrev_b32 v{T+5}, 2, v{T+2}
    v_xor_b32 v{T+7}, v{T+7}, v{T+5}
    v_lshlrev_b32 v{T+7}, 4, v{T+7}
    v_lshl_add_u32 v{K_VW0}, v{T+6}, 10, v{T+7}
    v_add_u32 v{K_VW0}, s{S_T1}, v{K_VW0}
    v_add_u32 v{K_VW1}, {8192-1024}, v{K_VW0}
    s_lshr_b32 s{S_T0}, s2, 2
    s_lshl_b32 s{K_SPO}, s{S_T0}, 7
    s_add_u32 s{K_SPO}, s{K_SPO}, 4096
    s_lshl_b32 s{S_T0}, s{S_T0}, 17
    s_lshl_b32 s{S_T1}, s{S_W}, 15
    s_add_u32 s{K_SST}, s{S_T0}, s{S_T1}
    s_lshl_b32 s{S_T1}, s{K_KQ}, 13
    s_add_u32 s{K_SST}, s{K_SST}, s{S_T1}
    s_lshl_b32 s{S_T1}, s{K_KQ}, 15
    s_add_u32 s{S_T0}, s{S_T0}, s{S_T1}
    s_lshl_b32 s{S_T1}, s{S_W}, 11
    s_add_u32 s{K_SLD}, s{S_T0}, s{S_T1}
    """)
def ks_sw(g):
    return [[f"s_add_u32 m0, s{S_W1K}, {kslot(g)+st*4096}", "s_nop 0",
             Ins(f"buffer_load_dwordx4 v{K_VSW}, {S4(S_WO)}, s{K_SSW} offen lds", f"sw{g}"), f"s_add_u32 s{K_SSW}, s{K_SSW}, 16384"] for st in range(4)]
def ks_sa(g):
    out = [[f"s_add_u32 m0, s{S_W4K}, {kslot(g)+16384}", "s_nop 0",
            Ins(f"buffer_load_dwordx4 v{K_VSA}, {S4(S_ACT)}, s{K_SSA} offen offset:{st*1024}{SC} lds", f"sa{g}")] for st in range(4)]
    out[-1].append(f"s_add_u32 s{K_SSA}, s{K_SSA}, 4096")
    return out
def FA(par, nt): return par*16 + nt*4
def FB(par, b): return par*16 + 8 + b*4
def ks_rd(i):
    g, st = i // 4, i % 4
    sl = kslot(g); hi = sl // 65536; sl -= hi * 65536
    out = [Ins(f"ds_read_b64_tr_b16 {ar(FA(i&1,nt)+2*e,2)}, v{K_VRA+2*hi+nt} offset:{sl+st*4096+e*2048}", f"f{i}") for nt in range(2) for e in range(2)]
    out += [Ins(f"ds_read_b128 {ar(FB(i&1,b),4)}, v{K_VRB+hi} offset:{sl+16384+b*4096+st*1024}", f"f{i}") for b in range(2)]
    return out
def BR3(i, b): return 128 + (i % 14)*8 + b*4
def AB3(par, nt): return 240 + par*8 + nt*4
def kbo(i): return (i % 8) * 2048 - (65536 if (i % 16) >= 8 else 0)
def kb_wl(i):
    return [[f"s_add_u32 m0, s{K_SLB}, {kbo(i) & 0xffffffff}", "s_nop 0", Ins(f"buffer_load_dwordx4 v{K_VW0}, {S4(S_WD)}, s{K_SWO} offen lds", f"w{i}")],
            [f"s_add_u32 m0, s{K_SLB}, {kbo(i) & 0xffffffff}", "s_nop 0", Ins(f"buffer_load_dwordx4 v{K_VW1}, {S4(S_WD)}, s{K_SWO} offen offset:1024 lds", f"w{i}"),
             f"s_add_u32 s{K_SWO}, s{K_SWO}, 16384"]]
def kb_bl(i):
    return [[Ins(f"buffer_load_dwordx4 {ar(BR3(i,0),4)}, v{K_VB0}, {S4(S_ACT)}, s{K_SA} offen{SC}", f"b{i}")],
            [Ins(f"buffer_load_dwordx4 {ar(BR3(i,1),4)}, v{K_VB1}, {S4(S_ACT)}, s{K_SA} offen{SC}", f"b{i}"), f"s_add_u32 s{K_SA}, s{K_SA}, 1024"]]
def kb_rd(i):
    return [Ins(f"ds_read_b64_tr_b16 {ar(AB3(i&1,nt)+2*e,2)}, v{(K_VA0 if (i % 16) < 8 else K_VA2)+nt} offset:{(i%8)*2048+e*1024}", f"a{i}") for nt in range(2) for e in range(2)]

def hepi_groups():
    T = V_T; out = []; k = 0
    for t in range(2):
        for b in range(2):
            for uu in range(2):
                g0 = GACC(t, b) + 8*uu; u0 = GACC(t + 2, b) + 8*uu
                pk = u0; k += 1
                g = [f"v_pk_mul_f32 v[{g0+i}:{g0+i+1}], v[{g0+i}:{g0+i+1}], s[{S_NL2E}:{S_NL2E+1}]" for i in range(0, 8, 2)]
                g += [f"v_exp_f32 v{g0+i}, v{g0+i}" for i in range(8)]
                g += [f"v_add_f32 v{g0+i}, 1.0, v{g0+i}" for i in range(8)]
                g += [f"v_rcp_f32 v{g0+i}, v{g0+i}" for i in range(8)]
                g += ["s_nop 0"] + [f"v_pk_mul_f32 v[{g0+i}:{g0+i+1}], v[{g0+i}:{g0+i+1}], v[{u0+i}:{u0+i+1}]" for i in range(0, 8, 2)]
                g += [f"v_cvt_pk_bf16_f32 v{pk+i//2}, v{g0+i}, v{g0+i+1}" for i in range(0, 8, 2)]
                g.append(Ins(f"buffer_store_dwordx4 v[{pk}:{pk+3}], v{V_ST0+b}, {S4(S_ACT)}, s{S_HOFF} offen offset:{(2*t+uu)*1024}{SC}", "HST"))
                out.append(g)
    return out

class Sched2(Sched):
    def __init__(self, dense_from): Sched.__init__(self); self.dense = dense_from
    def _free(self, g):
        if g >= self.dense: return g not in self.vm
        return Sched._free(self, g)

def late(p):
    OSP = OPT.get("osp", 8); OBAR = OPT.get("obar", 18); HFIRST = OPT.get("hfirst", 4)
    HSP = OPT.get("hsp", 0); HBAR = OPT.get("hbar", 14); SYH = OPT.get("syh", 47)
    PSP = OPT.get("psp", 2); PFL = OPT.get("pfl", 14); PPI = OPT.get("ppi", 25)
    KS0, KB0 = 256, 512
    NSA0 = 5
    sc = Sched2(OPT.get("dense", KB0 - 8))
    FT = V_T + 20
    p.e("s_load_dwordx2 s[60:61], s[0:1], 88\ns_load_dwordx2 s[72:73], s[0:1], 72")
    for s in range(32):
        mf = []
        for a in range(4):
            for b in range(2):
                d = vr(GACC(a, b), 16)
                mf.append(mfma(d, ar(AB2(s & 1, a), 4), ar(BR2(s, b), 4), d if s else "0"))
        g0 = sc.add(mf)
        if s - 1 in (6, 14, 22, 30) or s - 1 == OBAR:
            vm = (["OST"] if s - 1 == OBAR else [])
            sc.before(g0, [Wait(vm=vm, lg=[f"AG{s}"]), "s_barrier"])
        sc.before(g0, Wait(vm=[f"C{s}"], lg=[f"AG{s}"]))
        if s % 4 == 0: sc.before(g0, lambda p, s=s: stamp(p, 1 + s // 4, 2))
        if s == 1: sc.before(g0, ["s_waitcnt lgkmcnt(0)"] + srd_l(S_PT, 60, 61, PART_BYTES, add=WS_PART) + srd_l(S_OUT, 72, 73, 2097152))
        if s == OBAR + 1: sc.fixed(g0, flag_store(1, FT, FT + 1))
        if s + 1 < 32: sc.spread(areads_g(s + 1), g0, g0 + 4)
        if s >= 8:
            for x in bload(s, BR2, "C"): sc.queue("C", x, max(0, 8*(s - 12) + 7), 8*s - 40)
    for k, grp in enumerate(oepi_groups()):
        e = 5 + OSP*k
        sc.spread(grp[:-1], max(0, e - OSP), e); sc.fixed(e, [grp[-1]])
    assert 5 + OSP*15 < 8*OBAR
    sc.spread(late_setup(), 8, 56)
    for i in range(64):
        g, st = i // 4, i % 4
        mf = []
        for b in range(2):
            for nt in range(2):
                d = vr((nt + 2*b) * 16, 16)
                mf.append(mfma(d, ar(FA(i & 1, nt), 4), ar(FB(i & 1, b), 4), "0" if i == 0 else d))
        g0 = sc.add(mf)
        if i == 0:
            def mid(p):
                stamp(p, 5); stamp(p, 9, 2)
                hg = [x[:-1] if HSP else x for x in hepi_groups()]
                p.e("s_nop 7")
                for k in range(HFIRST):
                    if k == HFIRST - OPT.get("hpoll", 2): p.e(poll_issue(1, K_SGO, "PO", V_FL2))
                    p.e(hg[k])
                stamp(p, 1, 3)
                poll_check(p, "SYO", 1, K_SGO, "PO", K_CNT, V_FL2)
                stamp(p, 6)
                vq = sum((ks_sa(g) for g in range(NSA0)), [])
                hs = sum(hg[HFIRST:], [])
                first = OPT.get("safirst", 4)
                for x in vq[:first]: p.e(x)
                vq = vq[first:]
                for k, x in enumerate(hs):
                    p.e(x)
                    if k % 10 == 5 and vq: p.e(vq.pop(0))
                for x in vq: p.e(x)
                p.e(Wait(vm=["sw0", "sa0"])); p.e("s_barrier")
                for x in ks_rd(0): p.e(x)
            sc.before(g0, mid)
        if st == 3 and g + 1 < 16:
            sc.before(g0, [Wait(vm=[f"sw{g+1}", f"sa{g+1}"] + (["HST"] if i - 1 == HBAR else []), lg=[f"f{i}"]), "s_barrier"])
        if i == HBAR + 1: sc.fixed(g0, flag_store(2, FT, FT + 1))
        if i == SYH - 5: sc.fixed(g0, [poll_issue(2, 3, "PH")])
        if i == SYH: sc.before(g0, lambda p: (stamp(p, 7), poll_check(p, "SYH", 2, 3, "PH", K_CNT)))
        sc.before(g0, Wait(lg=[f"f{i}"]))
        if i % 8 == 0: sc.before(g0, lambda p, i=i: stamp(p, 2 + i // 8, 3))
        sc.spread(ks_rd(i + 1) if i + 1 < 64 else [Wait(vm=["w0"])] + kb_rd(0), g0, g0 + 2)
    for g in range(16):
        free = {0: 56, 1: 56, 2: 120, 3: 184, 4: 248}.get(g, KS0 + 4*(4*(g - 5) + 3))
        need = 248 if g == 0 else KS0 + 4*(4*(g - 1) + 3)
        for x in ks_sw(g): sc.queue("sw", x, free, need - 40)
        if g >= NSA0:
            for x in ks_sa(g): sc.queue("sa", x, max(free, KS0), need - 44)
    if HSP:
        for k, grp in enumerate(hepi_groups()): sc.fixed(KS0 + 2 + HSP*k, [grp[-1]])
    assert 2 + HSP*7 < 4*HBAR
    for i in range(28):
        mf = []
        for b in range(2):
            for nt in range(2):
                d = vr(64 + (nt + 2*b) * 16, 16)
                mf.append(mfma(d, ar(AB3(i & 1, nt), 4), ar(BR3(i, b), 4), "0" if i == 0 else d))
        g0 = sc.add(mf)
        if i == 0: sc.before(g0, lambda p: (stamp(p, 8), stamp(p, 10, 3)))
        if i % 4 == 0: sc.before(g0, lambda p, i=i: stamp(p, 1 + i // 4, 4))
        if i + 1 < 28: sc.before(g0, [Wait(vm=[f"w{i+1}", f"b{i}"])] + kb_rd(i + 1))
        else: sc.before(g0, Wait(vm=[f"b{i}"]))
        if i == PFL:
            sc.before(g0, lines(f"""
            s_lshl_b32 s{S_FO}, s{S_W}, 4
            s_add_u32 s{S_FO}, s{S_FO}, s{K_SPO}
            s_lshl_b32 s{S_T0}, s{K_KQ}, 2
            s_add_u32 s{S_FO}, s{S_FO}, s{S_T0}
            s_lshl_b32 s{S_T0}, s{K_KQ}, 4
            s_add_u32 s{K_SPO}, s{K_SPO}, s{S_T0}
            v_and_b32 v{V_FL}, 12, v{V_FL}
            """) + [Wait(vm=["PSS"])])
            sc.fixed(g0, flag_store(0, FT, FT + 1))
        if i == PPI: sc.fixed(g0, [poll_issue(0, K_SPO, "PP")])
        sc.before(g0, Wait(lg=[f"a{i}"]))
        if i == 0: sc.before(g0, "s_barrier")
        for x in kb_wl(i): sc.queue("w", x, KS0 + 4*51 if i < 8 else (KB0 if i < 16 else KB0 + 4*(i - 16)), KB0 + 4*(i - 1) - 40)
        for x in kb_bl(i): sc.queue("b", x, KS0 + 4*SYH if i < 14 else KB0 + 4*(i - 14) + 3, KB0 + 4*i - 40)
    for k in range(8):
        r = 8*k; pk = 128 + 4*k; e = KB0 + OPT.get('ps0', 6) + PSP*k
        grp = [f"v_cvt_pk_bf16_f32 v{pk+i}, v{r+2*i}, v{r+2*i+1}" for i in range(4)]
        if k == 4: grp.append(f"s_add_u32 s{K_SST}, s{K_SST}, 4096")
        sc.spread(grp, e - 2, e)
        sc.fixed(e, [Ins(f"buffer_store_dwordx4 v[{pk}:{pk+3}], v{K_VL16}, {S4(S_PT)}, s{K_SST} offen offset:{(k%4)*1024}{SC}", "PSS")])
    sc.queue("x", [Ins(f"buffer_load_dwordx4 v[176:179], v{K_VX}, {S4(S_X)}, 0 offen", "X")], KB0 + 64, 700)
    sc.queue("x", [Ins(f"buffer_load_dwordx4 v[180:183], v{K_VX}, {S4(S_X)}, 0 offen offset:32", "X")], KB0 + 64, 700)
    sc.emit(p)
    if sc.report: print("late:", len(sc.report), sc.report[:60])
    stamp(p, 9); stamp(p, 8, 4)
    T = V_T
    poll_check(p, "SYP", 0, K_SPO, "PP", K_CNT)
    stamp(p, 10)
    for src in range(4):
        p.e(f"buffer_load_dwordx4 v[{144+8*src}:{147+8*src}], v{K_VL16}, {S4(S_PT)}, s{K_SLD} offen{SC}", tag=f"PL{src}")
        p.e(f"buffer_load_dwordx4 v[{148+8*src}:{151+8*src}], v{K_VL16}, {S4(S_PT)}, s{K_SLD} offen offset:1024{SC}", tag=f"PL{src}")
        p.e(f"s_add_u32 s{K_SLD}, s{K_SLD}, 8192")
    p.e(f"""
    v_add_u32 v{T}, s{K_SLB}, v{K_VL16}
    s_add_u32 s{S_T0}, s{S_W4K}, 65536
    v_add_u32 v{T+1}, s{S_T0}, v{K_VL16}
    """)
    for order in range(16):
        r = 64 + 4*order
        p.e(f"ds_write_b128 v{T}, v[{r}:{r+3}] offset:{order*1024}")
    p.e("s_waitcnt lgkmcnt(0)\ns_barrier")
    for sw_ in range(4):
        for rg in range(4):
            d = 64 + sw_*16 + rg*4
            p.e(f"ds_read_b128 v[{d}:{d+3}], v{T+1} offset:{sw_*16384+rg*1024}", tag=f"R{sw_}")
    def pk(op, d, a, b): return f"v_pk_{op}_f32 v[{d}:{d+1}], v[{a}:{a+1}], {b}"
    for i in range(8): p.e(f"v_lshlrev_b32 v{48+2*i}, 16, v{176+i}\nv_and_b32 v{49+2*i}, 0xffff0000, v{176+i}")
    p.e(Wait(lg=["R1"]))
    for i in range(0, 16, 2): p.e(pk("add", 64+i, 64+i, f"v[{80+i}:{81+i}]"))
    p.e("s_waitcnt lgkmcnt(0)")
    for i in range(0, 16, 2): p.e(pk("add", 96+i, 96+i, f"v[{112+i}:{113+i}]"))
    for i in range(0, 16, 2): p.e(pk("add", 64+i, 64+i, f"v[{96+i}:{97+i}]"))
    for i in range(0, 16, 2): p.e(pk("mul", 16+i, 64+i, f"s[{S_NL2E}:{S_NL2E+1}]"))
    for i in range(16): p.e(f"v_exp_f32 v{16+i}, v{16+i}")
    for i in range(16): p.e(f"v_add_f32 v{16+i}, 1.0, v{16+i}")
    for i in range(16): p.e(f"v_rcp_f32 v{16+i}, v{16+i}")
    for i in range(0, 16, 2): p.e(pk("mul", 64+i, 64+i, f"v[{16+i}:{17+i}]"))
    for src in range(4):
        p.e(Wait(vm=[f"PL{src}"]))
        d = 0 if src == 0 else 16
        for i in range(8): p.e(f"v_lshlrev_b32 v{d+2*i}, 16, v{144+8*src+i}\nv_and_b32 v{d+2*i+1}, 0xffff0000, v{144+8*src+i}")
        if src:
            for i in range(0, 16, 2): p.e(pk("add", i, i, f"v[{16+i}:{17+i}]"))
    for i in range(0, 16, 2): p.e(f"v_pk_fma_f32 v[{i}:{i+1}], v[{i}:{i+1}], v[{64+i}:{65+i}], v[{48+i}:{49+i}]")
    for i in range(8): p.e(f"v_cvt_pk_bf16_f32 v{32+i}, v{2*i}, v{2*i+1}")
    p.e(f"""
    buffer_store_dwordx4 v[32:35], v{K_VX}, {S4(S_OUT)}, 0 offen
    buffer_store_dwordx4 v[36:39], v{K_VX}, {S4(S_OUT)}, 0 offen offset:32
    """)
    stamp(p, 11)

def gen():
    p = Prog()
    setup(p)
    layernorm(p)
    p1q(p)
    stamp(p, 2); stamp(p, 9, 1)
    srd(p, S_WO, 60, 61, 4096*1024)
    p.e("s_nop 3")
    for g in qconv(): p.e(g)
    attention(p)
    stamp(p, 4)
    oepi_head(p)
    late(p)
    stamp_flush(p, 12)
    p.label("K_END")
    p.e("s_endpgm")
    return p, slowpath()

KD = """.section .rodata,"a"
.p2align 6
.amdhsa_kernel {name}
  .amdhsa_next_free_vgpr 512
  .amdhsa_next_free_sgpr 102
  .amdhsa_accum_offset 256
  .amdhsa_group_segment_fixed_size 0
  .amdhsa_kernarg_size 96
  .amdhsa_user_sgpr_count 2
  .amdhsa_user_sgpr_kernarg_segment_ptr 1
  .amdhsa_system_sgpr_workgroup_id_x 1
.end_amdhsa_kernel
"""
HEADER = open("cdna_kernels/" + NAME + ".s.ref").read().split("; Override launch")[0]

def build(out):
    k, slow = gen()
    errs = []
    for nm, pr in (("k", k), ("slow", slow)):
        resolve(pr)
        errs += check(pr.trace(), nm)
        if nm == 'k': errs += check_tags(pr.trace())
    for e in errs[:40]: print("HAZARD", e)
    if errs: print(len(errs), "problems")
    nm = NAME + "_kernel"
    s = HEADER + f"; @launch grid=(256,1,1) block=(256,1,1) lds={LDS_TOTAL}\n"
    s += '.amdgcn_target "amdgcn-amd-amdhsa--gfx950"\n.text\n'
    s += f".globl {nm}\n.p2align 8\n.type {nm},@function\n{nm}:\n{k.text()}{slow.text()}CODE_END:\n"
    s += KD.format(name=nm)
    open(out, "w").write(s)
    return len(errs)

if __name__ == "__main__":
    out = sys.argv[1] if len(sys.argv) > 1 else "cdna_kernels/" + NAME + ".s"
    STAMPS = "stamps" in sys.argv[2:]
    for a in sys.argv[2:]:
        if "=" in a: OPT[a.split("=")[0]] = int(a.split("=")[1])
    if OPT.get("dot2"): HEAD, TAIL = 28, 9
    sys.exit(1 if build(out) else 0)
```

```python
import sys, struct, math
from asmlib import *

NAME = "recurrent_scan__sliding_block_cached__glu_gated_glu__prompt"
WS_XN = 0
XN_BYTES = 2 << 20
WS_FLG = 3 << 20
WS_ACT = 4 << 20
ACT_KS = 368
ACT_BYTES = 64 * ACT_KS * 1024
WS_PART = 32 << 20
PART_BYTES = 8 << 20
WS_DBG = 64 << 20
LOG2E = 1.4426950408889634
def f2u(x): return struct.unpack("<I", struct.pack("<f", x))[0]
QSCALE = f2u(LOG2E / math.sqrt(128.0))
STAMPS = False
OPT = {}
SC = " sc1"

def vr(b, n=1): return f"v{b}" if n == 1 else f"v[{b}:{b+n-1}]"
def ar(b, n=1): return f"a{b}" if n == 1 else f"a[{b}:{b+n-1}]"
def S4(b): return f"s[{b}:{b+3}]"
def lines(s): return [x.strip() for x in s.strip().split("\n") if x.strip()]
def singles(l): return [[x] for x in l]

def srd_l(d, lo, hi, nbytes, add=None):
    out = [f"s_mov_b32 s{d}, s{lo}", f"s_mov_b32 s{d+1}, s{hi}"] if add is None else [f"s_add_u32 s{d}, s{lo}, {add}", f"s_addc_u32 s{d+1}, s{hi}, 0"]
    return out + [f"s_mov_b32 s{d+2}, {nbytes}", f"s_mov_b32 s{d+3}, 0x00020000"]
def srd(p, *a, **k): p.e(srd_l(*a, **k))

def stamp(p, k, ph=0):
    if OPT.get("ph", 0) != ph and k != 0: return
    if STAMPS: p.e(f"{'s_memtime' if OPT.get('cyc') else 's_memrealtime'} s[{76+2*k}:{77+2*k}]")
def stamp_flush(p, n):
    if not STAMPS: return
    p.e("s_load_dwordx2 s[60:61], s[0:1], 88\ns_waitcnt lgkmcnt(0) vmcnt(0)")
    srd(p, 4, 60, 61, 1 << 20, add=WS_DBG)
    p.e(f"s_lshl_b32 s3, s2, 8\ns_lshl_b32 s70, s{S_W}, 6\ns_add_u32 s3, s3, s70\nv_mov_b32 v0, 0")
    for k in range(n):
        p.e(f"v_mov_b32 v2, s{76+2*k}\nbuffer_store_dword v2, v0, s[4:7], s3 offen offset:{4*k}\ns_nop 1")
    p.e("s_waitcnt vmcnt(0)")

def mfma(d, a, b, c): return f"v_mfma_f32_32x32x16_bf16 {d}, {a}, {b}, {c}"

S_X = 4
S_WQ, S_WG, S_WU, S_XN, S_K, S_V, S_ACT = 8, 12, 16, 20, 24, 28, 32
S_WO, S_OUT, S_PT, S_WD = 8, 28, 24, 64
S_W, S_J, S_RB, S_W2K, S_W1K = 36, 37, 38, 39, 40
S_DT, S_DQ, S_GM, S_BT, S_KT, S_VT = 41, 42, 43, 44, 45, 46
S_LOOP, S_FLAG, S_ROT2 = 47, 48, 49
S_C0, S_NL2E = 50, 52
S_T0, S_T1, S_T2 = 54, 55, 56
S_HOFF, S_OOFF, S_PF = 57, 58, 59
S_EP, S_FO = 62, 63
S_FLG, S_DBG = 68, 72
S_W4K = 100
S_ONES = 51
S_PFD = 101
V_PFW = 251
K_SSW, K_SSA, K_SR32, K_CT, K_KQ, K_SPO, K_CNT, K_SST = 45, 46, 47, 48, 49, 50, 51, 59
K_SLD, K_SWO, K_SA, K_SLB = 72, 73, 74, 75
K_QD = 38
V_AQ, V_AG, V_OQ, V_OG, V_OB0, V_OB1 = 192, 200, 206, 207, 208, 209
V_K, V_V, V_OK0, V_OK1, V_OV, V_ST0, V_ST1 = 210, 218, 222, 223, 224, 225, 226
V_L = 228
V_T = 230
V_PFA, V_PFD, V_FL, V_PR = 252, 253, 254, 255
V_FL2 = 227
Q_XR, Q_OX, Q_CA, Q_CT, Q_CS, Q_ST, Q_BP, Q_EP, Q_SC = 128, 136, 138, 140, 156, 160, 164, 172, 176
S_XT, S_W8K = 44, 3
K_SGO = 3
K_VSW, K_VSA, K_VL16, K_VL, K_VRB, K_VX = 192, 193, 194, 195, 196, 199
K_VRA, K_VB0, K_VB1, K_VW0, K_VW1, K_VA0, K_VA2 = 210, 216, 217, 218, 219, 220, 222
def QACC(t, b): return (t*2 + b) * 16
def GACC(a, b): return 64 + (a*2 + b) * 16
A_KF, A_VF = 192, 224
def QF(b, s): return ((s >> 1)*2 + b)*8 + (s & 1)*4
def SB(par, b): return 64 + par*32 + b*16
def PB(par, b, u): return 128 + par*16 + b*8 + u*4
def NEGM(b): return 160 + b*16
def OACC(t, b): return (t*2 + b) * 16
SLOT = 16384
KKSLOT = 6 * SLOT
def wslot(t): return (6 + t % 4) * SLOT
def xslot(t): return ((t + 1) % 3) * 32768
LDS_CS = 7 * SLOT
def gslot(t): return (4 + t) * SLOT if t < 6 else (t - 6) * SLOT
def kslot(g): return ((g + 1) % 5) * 32768
LDS_LN = 0
LDS_FLAG = 3 * SLOT + 8192
LDS_TOTAL = 163840

def flag_store(sy, vd, vz, tag="FS"):
    return [f"v_mov_b32 v{vd}, s{S_EP}", f"v_mov_b32 v{vz}, 0", "s_mov_b64 exec, 1",
            Ins(f"buffer_store_dword v{vd}, v{vz}, {S4(S_FLG)}, s{S_FO} offen offset:{sy*1024} sc1", tag),
            "s_mov_b64 exec, -1"]
def poll_issue(sy, goff, tag, vfl=None):
    return Ins(f"buffer_load_dword v{V_PR}, v{vfl or V_FL}, {S4(S_FLG)}, s{goff} offen offset:{sy*1024} sc1", tag)
def poll_check(p, lbl, sy, goff, tag, cnt, vfl=None):
    p.e(Wait(vm=[tag]))
    p.e(f"v_cmp_ne_u32 vcc, s{S_EP}, v{V_PR}\ns_mov_b32 s{cnt}, 0\ns_cbranch_vccz {lbl}_OK")
    p.label(f"{lbl}_P")
    p.e("s_sleep 2")
    p.e(poll_issue(sy, goff, "OPT_POLL", vfl))
    p.e(f"""
    s_add_u32 s{cnt}, s{cnt}, 1
    s_waitcnt vmcnt(0)
    v_cmp_ne_u32 vcc, s{S_EP}, v{V_PR}
    s_cmp_gt_u32 s{cnt}, 0x40000
    s_cbranch_scc1 {lbl}_OK
    s_cbranch_vccnz {lbl}_P
    """)
    p.label(f"{lbl}_OK")

def setup(p):
    T = V_T; L = T + 1
    p.e("s_cmp_ge_u32 s2, 256\ns_cbranch_scc1 K_END")
    p.e("s_load_dwordx8 s[60:67], s[0:1], 0\ns_load_dwordx4 s[68:71], s[0:1], 48\ns_load_dwordx4 s[72:75], s[0:1], 80")
    stamp(p, 0)
    p.e("s_getpc_b64 s[42:43]")
    p.label("CODE0")
    p.e(f"v_lshlrev_b32 v1, 7, v0\nv_add_u32 v2, 32768, v1\nv_min_u32 v2, CODE_END-CODE0-4, v2")
    def cpf():
        p.e(f"global_load_dword v{V_PFD}, v1, s[42:43]", tag="PF")
        p.e(f"global_load_dword v{V_PFD}, v2, s[42:43]", tag="PF")
    if OPT.get("cpf", 1) == 1: cpf()
    p.e(f"""
    v_lshrrev_b32 v{T}, 6, v0
    v_and_b32 v{L}, 63, v0
    v_and_b32 v3, 7, v{L}
    v_readfirstlane_b32 s{S_W}, v{T}
    v_lshrrev_b32 v4, 3, v{L}
    v_lshlrev_b32 v5, 10, v3
    v_lshl_add_u32 v5, v4, 4, v5
    v_lshl_add_u32 v5, v{T}, 8, v5
    s_lshl_b32 s3, s2, 13
    s_and_b32 s{S_T0}, s2, 7
    s_lshr_b32 s{S_T1}, s2, 3
    s_and_b32 s{S_T1}, s{S_T1}, 3
    s_lshr_b32 s{S_RB}, s2, 5
    s_lshl_b32 s{S_J}, s{S_T0}, 2
    s_add_u32 s{S_J}, s{S_J}, s{S_T1}
    s_lshl_b32 s{S_W2K}, s{S_W}, 11
    s_lshl_b32 s{S_W1K}, s{S_W}, 10
    s_lshl_b32 s{S_W4K}, s{S_W}, 12
    s_lshl_b32 s{S_DT}, s{S_T1}, 1
    s_add_u32 s{S_DT}, s{S_DT}, s{S_RB}
    s_and_b32 s{S_DT}, s{S_DT}, {OPT.get('rotm', 7)}
    s_lshl_b32 s{S_ROT2}, s{S_RB}, 2
    s_add_u32 s{S_ROT2}, s{S_ROT2}, s{S_T1}
    s_lshr_b32 s{S_ROT2}, s{S_ROT2}, 1
    s_lshl_b32 s{S_ROT2}, s{S_ROT2}, 13
    s_waitcnt lgkmcnt(0)
    """)
    stamp(p, 1, 5)
    srd(p, S_X, 60, 61, 2097152)
    p.e(f"buffer_load_dwordx4 v[8:11], v5, {S4(S_X)}, s3 offen", tag="X")
    p.e(f"buffer_load_dwordx4 v[12:15], v5, {S4(S_X)}, s3 offen offset:128", tag="X")
    srd(p, S_XN, 74, 75, XN_BYTES, add=WS_XN)
    srd(p, S_ACT, 74, 75, ACT_BYTES, add=WS_ACT)
    p.e(f"s_add_u32 s{S_KT}, s74, {WS_FLG}\ns_addc_u32 s{S_VT}, s75, 0")
    p.e(f"s_mov_b32 s{S_DBG+2}, 256\ns_mov_b32 s{S_DBG+3}, 0x00020000")
    p.e(f"s_lshl_b32 s{S_T1}, s{S_T0}, 19\ns_add_u32 s{S_T1}, s{S_T1}, {1536*256}")
    srd(p, S_K, 62, 63, 131072, add=f"s{S_T1}")
    srd(p, S_V, 64, 65, 131072, add=f"s{S_T1}")
    p.e(f"""
    s_memrealtime s[60:61]
    s_lshl_b32 s{S_FO}, s2, 2
    v_and_b32 v{V_FL}, 31, v{L}
    v_lshlrev_b32 v{V_FL}, 2, v{V_FL}
    v_mov_b32 v{Q_EP+1}, 0
    v_mov_b32 v{Q_EP+2}, 0
    s_waitcnt lgkmcnt(0)
    s_or_b32 s{S_EP}, s60, 1
    v_mov_b32 v{Q_EP}, s{S_EP}
    s_cmp_lg_u32 s{S_W}, 0
    s_cbranch_scc1 NOEP
    s_mov_b64 exec, 1
    """)
    p.e(f"buffer_atomic_cmpswap v[{Q_EP}:{Q_EP+1}], v{Q_EP+2}, {S4(S_DBG)}, 0 offen sc0 sc1", tag="EP")
    p.e("s_mov_b64 exec, -1\ns_branch EPD")
    p.label("NOEP")
    p.e(f"buffer_load_dword v{V_PFD}, v{Q_EP+2}, {S4(S_K)}, 0 offen", tag="OPT_PF")
    p.label("EPD")
    p.e(f"""
    v_lshrrev_b32 v{T+2}, 4, v{L}
    v_and_b32 v{T+3}, 15, v{L}
    v_lshlrev_b32 v{T+4}, 2, v{T+2}
    v_xor_b32 v{T+4}, v{T+3}, v{T+4}
    v_lshlrev_b32 v{T+4}, 4, v{T+4}
    v_lshl_add_u32 v{T+5}, v{T}, 4, v{T+2}
    v_lshl_add_u32 v{V_OQ}, v{T+5}, 13, v{T+4}
    s_lshl_b32 s{S_T1}, s{S_J}, 8
    s_sub_u32 s{S_T2}, {4194304}, s{S_T1}
    """)
    srd(p, S_WQ, 66, 67, f"s{S_T2}", add=f"s{S_T1}")
    p.e(f"""
    v_lshrrev_b32 v{T+6}, 1, v4
    v_xor_b32 v{T+7}, v3, v{T+6}
    v_lshlrev_b32 v{T+7}, 4, v{T+7}
    v_lshl_add_u32 v{Q_OX}, v4, 10, v{T+7}
    s_lshl_b32 s{S_T1}, s{S_RB}, 18
    s_lshl_b32 s{S_T2}, s{S_W}, 16
    s_add_u32 s{S_T1}, s{S_T1}, s{S_T2}
    v_add_u32 v{Q_OX}, s{S_T1}, v{Q_OX}
    v_xor_b32 v{Q_OX+1}, 64, v{Q_OX}
    s_lshl_b32 s{S_XT}, s{S_DT}, 7
    s_lshl_b32 s{S_PF}, s{S_W}, 13
    """)
    p.mark0 = len(p.cur)
    p.e(f"""
    s_lshr_b32 s{S_HOFF}, s{S_T0}, 1
    s_mul_i32 s{S_HOFF}, s{S_HOFF}, 7
    s_and_b32 s{S_T1}, s{S_J}, 7
    s_add_u32 s{S_HOFF}, s{S_HOFF}, s{S_T1}
    s_cmp_eq_u32 s{S_T1}, 7
    s_cselect_b32 s{S_OOFF}, 1, 0
    s_lshl_b32 s{S_T1}, s{S_HOFF}, 7
    s_sub_u32 s{S_T2}, {512*3584}, s{S_T1}
    s_cmp_lg_u32 s{S_OOFF}, 0
    s_cselect_b32 s{S_T2}, 0, s{S_T2}
    """)
    srd(p, S_WG, 68, 69, f"s{S_T2}", add=f"s{S_T1}")
    srd(p, S_WU, 70, 71, f"s{S_T2}", add=f"s{S_T1}")
    srd(p, S_FLG, S_KT, S_VT, 32768)
    p.e(f"""
    v_and_b32 v{T+7}, 7, v{L}
    v_and_b32 v{T+8}, 1, v{T+2}
    v_lshlrev_b32 v{T+8}, 2, v{T+8}
    v_xor_b32 v{T+7}, v{T+7}, v{T+8}
    v_lshlrev_b32 v{T+7}, 4, v{T+7}
    v_lshl_add_u32 v{T+6}, v{T}, 4, v4
    v_mul_u32_u24 v{T+6}, 3584, v{T+6}
    v_add_u32 v{V_OG}, v{T+6}, v{T+7}
    s_mov_b32 s{S_C0}, 0x{QSCALE:08x}
    s_mov_b32 s{S_NL2E}, 0x{f2u(-LOG2E):08x}
    s_mov_b32 s{S_NL2E+1}, 0x{f2u(-LOG2E):08x}
    s_mov_b32 s{S_FLAG}, 0
    s_mov_b32 s{S_KT}, s{S_ROT2}
    s_mov_b32 s{S_VT}, s{S_ROT2}
    v_lshl_add_u32 v{T+5}, v{T}, 3, v{T+2}
    v_lshl_add_u32 v{V_OV}, v{T+5}, 8, v{T+4}
    v_xor_b32 v{T+6}, v{T+3}, v{T+5}
    v_and_b32 v{T+6}, 15, v{T+6}
    v_lshlrev_b32 v{T+6}, 4, v{T+6}
    v_lshl_add_u32 v{V_OK0}, v{T+5}, 8, v{T+6}
    v_add_u32 v{T+7}, 4, v{T+5}
    v_xor_b32 v{T+6}, v{T+3}, v{T+7}
    v_and_b32 v{T+6}, 15, v{T+6}
    v_lshlrev_b32 v{T+6}, 4, v{T+6}
    v_lshl_add_u32 v{V_OK1}, v{T+5}, 8, v{T+6}
    s_lshl_b32 s{S_T2}, s{S_RB}, 3
    s_lshl_b32 s{S_T1}, s{S_W}, 1
    s_add_u32 s{S_T2}, s{S_T2}, s{S_T1}
    s_lshl_b32 s{S_T1}, s{S_T2}, 15
    v_lshlrev_b32 v{T+6}, 4, v{L}
    v_add_u32 v{V_OB0}, s{S_T1}, v{T+6}
    v_add_u32 v{V_OB1}, 32768, v{V_OB0}
    s_mul_i32 s{S_T1}, s{S_T2}, {ACT_KS*1024}
    v_add_u32 v{V_ST0}, s{S_T1}, v{T+6}
    v_add_u32 v{V_ST1}, {ACT_KS*1024}, v{V_ST0}
    v_lshlrev_b32 v{V_PFA}, 7, v{L}
    s_lshl_b32 s{S_HOFF}, s{S_HOFF}, 12
    s_add_u32 s{S_HOFF}, s{S_HOFF}, {256*1024}
    s_cmp_lg_u32 s{S_OOFF}, 0
    s_cselect_b32 s{S_HOFF}, 0x40000000, s{S_HOFF}
    s_lshl_b32 s{S_OOFF}, s{S_J}, 13
    {"s_mov_b32 s%d, 0x40000000" % S_OOFF if OPT.get("nost") else ""}
    {"s_mov_b32 s%d, 0x40000000" % S_HOFF if OPT.get("nost") else ""}
    v_lshrrev_b32 v6, 1, v4
    v_lshlrev_b32 v6, 10, v6
    v_and_b32 v7, 1, v4
    v_lshl_add_u32 v6, v7, 9, v6
    v_lshl_add_u32 v6, v3, 4, v6
    v_lshl_add_u32 v6, v{T}, 13, v6
    v_add_u32 v17, 4096, v6
    v_lshlrev_b32 v16, 4, v3
    v_add_u32 v16, {LDS_LN}, v16
    v_lshl_add_u32 v7, v{T}, 2, v16
    s_lshl_b32 s{S_T1}, s{S_RB}, 6
    v_add_u32 v227, s{S_T1}, v{L}
    v_mul_u32_u24 v227, 3584, v227
    """)
    lds_addrs(p)

def lds_addrs(p):
    T = V_T; L = T + 1
    p.e(f"""
    v_lshrrev_b32 v{T+2}, 5, v{L}
    v_bfe_u32 v{T+3}, v{L}, 4, 1
    v_bfe_u32 v{T+4}, v{L}, 2, 2
    v_and_b32 v{T+5}, 3, v{L}
    v_and_b32 v{T+6}, 1, v{T+5}
    v_lshrrev_b32 v{T+7}, 1, v{T+5}
    v_lshl_add_u32 v{T+6}, v{T+6}, 1, v{T+7}
    v_lshlrev_b32 v{T+7}, 5, v{T+3}
    v_lshl_add_u32 v{T+8}, v{T+6}, 3, v{T+7}
    v_lshl_add_u32 v{T+9}, v{T+5}, 3, v{T+7}
    v_lshl_add_u32 v{T+10}, v{T+2}, 3, v{T+4}
    v_lshl_add_u32 v{T+11}, v{T+2}, 2, v{T+4}
    """)
    for t in range(4):
        p.e(f"""
        v_xor_b32 v{T+12}, {t}, v{T+4}
        v_lshlrev_b32 v{T+12}, 6, v{T+12}
        v_lshl_add_u32 v{T+13}, v{T+10}, 8, v{T+12}
        v_add_u32 v{V_AQ+t}, v{T+13}, v{T+8}
        v_add_u32 v{V_AQ+4+t}, 0x20000, v{V_AQ+t}
        v_add_u32 v{V_AQ+t}, 0x10000, v{V_AQ+t}
        v_lshl_add_u32 v{T+13}, v{T+11}, 8, v{T+12}
        v_add_u32 v{V_V+t}, v{T+13}, v{T+9}
        """)
    p.e(f"""
    v_xor_b32 v{T+12}, s{S_W}, v{T+4}
    v_lshlrev_b32 v{T+12}, 6, v{T+12}
    v_lshl_add_u32 v{T+13}, v{T+10}, 8, v{T+12}
    v_add_u32 v{T+13}, v{T+13}, v{T+8}
    v_add_u32 v{Q_CA}, 0x10000, v{T+13}
    v_add_u32 v{Q_CA+1}, 0x20000, v{T+13}
    v_and_b32 v{T+12}, 31, v{L}
    v_bfe_u32 v{T+13}, v{L}, 1, 3
    v_lshlrev_b32 v{T+12}, 7, v{T+12}
    v_add_u32 v{T+12}, s{S_PF}, v{T+12}
    """)
    for u in range(4):
        p.e(f"""
        v_add_u32 v{T+14}, {2*u}, v{T+2}
        v_xor_b32 v{T+14}, v{T+14}, v{T+13}
        v_lshl_add_u32 v{Q_XR+u}, v{T+14}, 4, v{T+12}
        v_add_u32 v{Q_XR+4+u}, 0x10000, v{Q_XR+u}
        """)
    p.e(f"v_lshrrev_b32 v{T+14}, 1, v{T+4}")
    for t in range(2):
        p.e(f"""
        v_xor_b32 v{T+12}, {t}, v{T+14}
        v_lshlrev_b32 v{T+12}, 6, v{T+12}
        v_lshl_add_u32 v{T+13}, v{T+10}, 7, v{T+12}
        v_add_u32 v{V_AG+t}, v{T+13}, v{T+9}
        v_add_u32 v{V_AG+2+t}, 0x10000, v{V_AG+t}
        v_add_u32 v{V_AG+4+t}, 0x20000, v{V_AG+t}
        """)
    p.e(f"v_and_b32 v{T+12}, 31, v{L}\nv_and_b32 v{T+13}, 15, v{L}")
    for s in range(8):
        p.e(f"""
        v_add_u32 v{T+14}, {2*s}, v{T+2}
        v_xor_b32 v{T+14}, v{T+14}, v{T+13}
        v_lshlrev_b32 v{T+14}, 4, v{T+14}
        v_lshl_add_u32 v{V_K+s}, v{T+12}, 8, v{T+14}
        """)

NW0 = 2
def layernorm(p):
    p.e(f"""
    s_lshr_b32 s{S_T1}, s2, 2
    s_lshl_b32 s{S_T1}, s{S_T1}, 15
    s_and_b32 s{S_T2}, s2, 3
    s_lshl_b32 s{S_T2}, s{S_T2}, 7
    s_add_u32 s3, s{S_T1}, s{S_T2}
    s_mov_b32 s{S_T0}, 0x3b000000
    """)
    stamp(p, 3, 5)
    p.e(Wait(vm=["X"]))
    stamp(p, 4, 5)
    for i in range(8):
        p.e(f"v_lshlrev_b32 v{20+2*i}, 16, v{8+i}\nv_and_b32 v{21+2*i}, 0xffff0000, v{8+i}")
    def reduce(src, off):
        p.e(f"""
        s_nop 1
        v_add_f32_dpp v{src}, v{src}, v{src} row_ror:8 row_mask:0xf bank_mask:0xf
        v_mov_b32 v41, v{src}
        s_nop 1
        v_permlane16_swap_b32 v{src}, v41
        v_add_f32 v{src}, v{src}, v41
        v_mov_b32 v41, v{src}
        s_nop 1
        v_permlane32_swap_b32 v{src}, v41
        v_add_f32 v{src}, v{src}, v41
        ds_write_b32 v7, v{src} offset:{off}
        s_waitcnt lgkmcnt(0)
        s_barrier
        ds_read_b128 v[44:47], v16 offset:{off}
        s_waitcnt lgkmcnt(0)
        v_add_f32 v44, v44, v45
        v_add_f32 v46, v46, v47
        v_add_f32 v40, v44, v46
        """)
    p.e("v_add_f32 v36, v20, v21\nv_add_f32 v37, v22, v23")
    for i in range(2, 8, 2):
        p.e(f"v_add_f32 v36, v36, v{20+2*i}\nv_add_f32 v37, v37, v{21+2*i}\nv_add_f32 v36, v36, v{22+2*i}\nv_add_f32 v37, v37, v{23+2*i}")
    p.e("v_add_f32 v36, v36, v37")
    reduce(36, 0)
    p.e(f"v_mul_f32 v48, s{S_T0}, v40")
    p.e("v_mov_b32 v36, 0\nv_mov_b32 v37, 0")
    for i in range(8):
        p.e(f"v_sub_f32 v38, v{20+2*i}, v48\nv_sub_f32 v39, v{21+2*i}, v48\nv_fmac_f32 v36, v38, v38\nv_fmac_f32 v37, v39, v39")
    p.e("v_add_f32 v36, v36, v37")
    reduce(36, 128)
    p.e(f"""
    v_mul_f32 v49, s{S_T0}, v40
    v_cvt_pk_bf16_f32 v49, v49, v49
    v_and_b32 v49, 0xffff0000, v49
    v_add_f32 v49, 0x{f2u(1e-5):08x}, v49
    v_cvt_pk_bf16_f32 v49, v49, v49
    v_and_b32 v49, 0xffff0000, v49
    v_sqrt_f32 v49, v49
    v_cvt_pk_bf16_f32 v48, v48, v48
    v_cvt_pk_bf16_f32 v49, v49, v49
    v_and_b32 v48, 0xffff0000, v48
    v_and_b32 v49, 0xffff0000, v49
    v_rcp_f32 v49, v49
    """)
    for i in range(8):
        a, b = 20 + 2*i, 21 + 2*i
        p.e(f"""
        v_sub_f32 v{a}, v{a}, v48
        v_sub_f32 v{b}, v{b}, v48
        v_cvt_pk_bf16_f32 v38, v{a}, v{b}
        v_lshlrev_b32 v{a}, 16, v38
        v_and_b32 v{b}, 0xffff0000, v38
        v_mul_f32 v{a}, v{a}, v49
        v_mul_f32 v{b}, v{b}, v49
        v_cvt_pk_bf16_f32 v{8+i}, v{a}, v{b}
        """)
        if i == 3: p.e(f"buffer_store_dwordx4 v[8:11], v6, {S4(S_XN)}, s3 offen{SC}")
    p.e(f"buffer_store_dwordx4 v[12:15], v17, {S4(S_XN)}, s3 offen{SC}")
    p.e(f"""
    v_xor_b32 v56, 0x80000000, v48
    v_lshrrev_b32 v57, 16, v56
    v_or_b32 v56, v56, v57
    v_mul_f32 v57, s{S_C0}, v49
    v_lshlrev_b32 v58, 3, v3
    s_lshl_b32 s{S_T1}, s2, 6
    s_add_u32 s{S_T1}, s{S_T1}, 16384
    s_mov_b64 exec, 0xff
    """)
    p.e(f"buffer_store_dwordx2 v[56:57], v58, {S4(S_FLG)}, s{S_T1} offen{SC}", tag="XST")
    p.e("s_mov_b64 exec, -1")
    p.e("s_load_dwordx2 s[60:61], s[0:1], 32\ns_load_dwordx2 s[64:65], s[0:1], 64")
    stamp(p, 5, 5)
    w0, x0, w1, x1 = dma_q(0), dma_x(0), dma_q(1), dma_x(1)
    groups = [w0[0], x0[0], x0[4], w0[1], x0[1], x0[5], w0[2], x0[2], x0[6], w0[3], x0[3], x0[7]]
    if OPT.get("early1", 0) == 0: pass
    else: groups += x1 + w1
    body = p.cur[p.mark0:]; del p.cur[p.mark0:]
    every = OPT.get("every", 20); cnt = every; f0 = OPT.get("f0", 3)
    for _ in range(f0): p.e(groups.pop(0))
    for k, ins in enumerate(body):
        p.cur.append(ins); cnt -= 1
        nxt = body[k + 1].t if k + 1 < len(body) else ""
        if cnt <= 0 and groups and ins.t.startswith("v_") and nxt.startswith("v_") and "exec" not in body[k - 1].t and "exec" not in body[k-2].t:
            p.e(groups.pop(0)); cnt = every
    for x in groups: p.e(x)
    stamp(p, 6, 5)

def dma_q(t):
    tag = f"W{t}"; g = []
    for ii in range(4):
        pre = [f"s_lshl_b32 s{S_DQ}, s{S_DT}, 19", f"s_add_u32 m0, s{S_W4K}, {wslot(t)}", f"s_add_u32 s{S_DT}, s{S_DT}, 1"] if ii == 0 else \
              [f"s_add_u32 m0, s{S_W4K}, {wslot(t)}", f"s_add_u32 s{S_DQ}, s{S_DQ}, {32768-1024}"]
        g.append(pre + [Ins(f"buffer_load_dwordx4 v{V_OQ}, {S4(S_WQ)}, s{S_DQ} offen offset:{ii*1024} lds", tag)])
    g[-1].append(f"s_and_b32 s{S_DT}, s{S_DT}, 7")
    return g
def dma_x(t):
    g = []
    for ii in range(8):
        g.append([f"s_add_u32 m0, s{S_PF}, {xslot(t)+ii*1024}", f"s_add_u32 s{S_GM}, s{S_XT}, {ii*8192}",
                  Ins(f"buffer_load_dwordx4 v{Q_OX+(ii&1)}, {S4(S_X)}, s{S_GM} offen lds", f"X{t}")])
    g[-1] += [f"s_add_u32 s{S_XT}, s{S_XT}, 128", f"s_and_b32 s{S_XT}, s{S_XT}, 0x3ff"]
    return g
def dma_g(tag):
    return [[f"s_mul_i32 s{S_DQ}, s{S_DT}, {64*3584}", f"s_mov_b32 m0, s{S_GM}", f"s_add_u32 s{S_DT}, s{S_DT}, 1",
             Ins(f"buffer_load_dwordx4 v{V_OG}, {S4(S_WG)}, s{S_DQ} offen lds", tag)],
            [f"s_add_u32 m0, s{S_GM}, 8192", f"s_and_b32 s{S_DT}, s{S_DT}, 7",
             Ins(f"buffer_load_dwordx4 v{V_OG}, {S4(S_WU)}, s{S_DQ} offen lds", tag)],
            [f"s_add_u32 m0, s{S_GM}, 8192", f"s_add_u32 s{S_DQ}, s{S_DQ}, {8*3584-1024}",
             Ins(f"buffer_load_dwordx4 v{V_OG}, {S4(S_WU)}, s{S_DQ} offen offset:1024 lds", tag)],
            [f"s_mov_b32 m0, s{S_GM}", f"s_add_u32 s{S_GM}, s{S_GM}, {SLOT}",
             Ins(f"buffer_load_dwordx4 v{V_OG}, {S4(S_WG)}, s{S_DQ} offen offset:1024 lds", tag)]]
def dma_k(ldsoff, tag):
    return [[f"s_add_u32 m0, s{S_W2K}, {ldsoff}", f"s_nop 0",
             Ins(f"buffer_load_dwordx4 v{V_OK0}, {S4(S_K)}, s{S_KT} offen lds", tag)],
            [f"s_add_u32 m0, s{S_W2K}, {ldsoff}", f"s_nop 0",
             Ins(f"buffer_load_dwordx4 v{V_OK1}, {S4(S_K)}, s{S_KT} offen offset:1024 lds", tag),
             f"s_add_u32 s{S_KT}, s{S_KT}, 8192", f"s_and_b32 s{S_KT}, s{S_KT}, 0x1ffff"]]
def dma_v(ldsoff, tag):
    return [[f"s_add_u32 m0, s{S_W2K}, {ldsoff}", f"s_nop 0",
             Ins(f"buffer_load_dwordx4 v{V_OV}, {S4(S_V)}, s{S_VT} offen lds", tag)],
            [f"s_add_u32 m0, s{S_W2K}, {ldsoff}", f"s_nop 0",
             Ins(f"buffer_load_dwordx4 v{V_OV}, {S4(S_V)}, s{S_VT} offen offset:1024 lds", tag),
             f"s_add_u32 s{S_VT}, s{S_VT}, 8192", f"s_and_b32 s{S_VT}, s{S_VT}, 0x1ffff"]]
def dma_d(pp):
    sl = (pp % 4) * SLOT; tag = f"D{pp%4}"
    return dma_v(sl, tag) + dma_k(sl + 8192, tag)
def dma_kk(): return dma_k(KKSLOT, "KK") + dma_k(KKSLOT + 8192, "KK")

def BR1(s, b): return 32 + (s & 1)*8 + b*4
def BR2(s, b): return 160 + (s % 12)*8 + b*4
def AB1(par, a): return par*16 + a*4
def AB2(par, a): return 128 + par*16 + a*4
def bload(s, ring, pre):
    u = s & 3; tag = f"{pre}{s}"
    SC = "" if OPT.get("nosc") else " sc1"
    g = [[Ins(f"buffer_load_dwordx4 {ar(ring(s,0),4)}, v{V_OB0}, {S4(S_XN)}, s{S_BT} offen offset:{u*1024}{SC}", tag)],
         [Ins(f"buffer_load_dwordx4 {ar(ring(s,1),4)}, v{V_OB1}, {S4(S_XN)}, s{S_BT} offen offset:{u*1024}{SC}", tag)]]
    if u == 3 and not OPT.get("bfix"): g[1] += [f"s_add_u32 s{S_BT}, s{S_BT}, 4096", f"s_and_b32 s{S_BT}, s{S_BT}, 0x7fff"]
    return g
def areads_q(s):
    t, u = s >> 2, s & 3
    sl = wslot(t); hi = sl // 65536; sl -= hi * 65536
    out = [Ins(f"ds_read_b64_tr_b16 {ar(AB1(s&1,a)+2*e,2)}, v{V_AQ+4*(hi-1)+a} offset:{sl+(16*u+4*e)*256}", f"A{s}") for a in range(4) for e in range(2)]
    xs = xslot(t); xh = xs // 65536; xs -= xh * 65536
    xb = [Ins(f"ds_read_b128 {ar(BR1(s,b),4)}, v{Q_XR+4*xh+u} offset:{xs+b*4096}", f"A{s}") for b in range(2)]
    return out[:2] + xb + out[2:]
def csreads(s):
    t, u = s >> 2, s & 3
    sl = wslot(t); hi = sl // 65536; sl -= hi * 65536
    return [Ins(f"ds_read_b64_tr_b16 v[{Q_CT+(s%4)*4+2*e}:{Q_CT+(s%4)*4+2*e+1}], v{Q_CA+hi-1} offset:{sl+(16*u+4*e)*256}", f"CS{s}") for e in range(2)]
def csdots(s):
    if OPT.get("nocs"): return []
    return [f"v_dot2c_f32_bf16 v{Q_CS+(i&1)}, s{S_ONES}, v{Q_CT+(s%4)*4+i}" for i in range(4)]
def areads_g(s):
    t, u = s >> 2, s & 3
    sl = gslot(t); hi = sl // 65536; sl -= hi * 65536
    return [Ins(f"ds_read_b64_tr_b16 {ar(AB2(s&1,a)+2*e,2)}, v{V_AG+2*hi+(a&1)} offset:{sl+(a>>1)*8192+(16*u+4*e)*128}", f"AG{s}") for a in range(4) for e in range(2)]
def kreads(off, tag):
    return [Ins(f"ds_read_b128 {ar(A_KF+4*s,4)}, v{V_K+s} offset:{off}", tag) for s in range(8)]
def kreads_hi(off, tag, tmp):
    return [[f"v_add_u32 v{tmp+(s&3)}, 0x10000, v{V_K+s}",
             Ins(f"ds_read_b128 {ar(A_KF+4*s,4)}, v{tmp+(s&3)} offset:{off-65536}", tag)] for s in range(8)]
def vreads(sl, tag):
    return [Ins(f"ds_read_b64_tr_b16 {ar(A_VF+(u*4+t)*4+2*e,2)}, v{V_V+t} offset:{sl+(16*u+8*e)*256}", tag) for u in range(2) for t in range(4) for e in range(2)]

def p1q(p):
    AP = 64
    p.e(f"""
    s_mov_b32 s{S_ONES}, 0x3f803f80
    v_mov_b32 v{Q_CS}, 0
    v_mov_b32 v{Q_CS+1}, 0
    s_lshl_b32 s{S_T0}, s{S_RB}, 7
    s_lshl_b32 s{S_T2}, s{S_RB}, 11
    s_lshl_b32 s{S_T1}, s{S_W}, 9
    s_add_u32 s{S_T2}, s{S_T2}, s{S_T1}
    s_add_u32 s{S_T2}, s{S_T2}, 16384
    v_lshlrev_b32 v{Q_EP+3}, 1, v{V_FL}
    """)
    p.e(Wait(vm=["W0", "X0"])); stamp(p, 7, 5); p.e("s_barrier"); stamp(p, 8, 5)
    for x in areads_q(0) + csreads(0): p.e(x)
    p.e(f"s_waitcnt lgkmcnt(0)\ns_mov_b32 s{S_WD+2}, {1792*1024}\ns_mov_b32 s{S_WD+3}, 0x00020000")
    sc = Sched()
    def publish(p):
        p.e(f"""
        s_cmp_lg_u32 s{S_W}, 0
        s_cbranch_scc1 SY1_D
        v_readfirstlane_b32 s{S_T1}, v{Q_EP}
        s_nop 0
        s_cmp_eq_u32 s{S_T1}, 0
        s_cselect_b32 s{S_EP}, s{S_EP}, s{S_T1}
        """)
        p.e(flag_store(0, Q_EP, Q_EP + 1, "OPT_FS"))
        p.label("SY1_D")
    EPL = OPT.get("epl", 10); P1I = OPT.get("p1i", 16); P1C = OPT.get("p1c", 22)
    for s in range(32):
        t, u = s >> 2, s & 3
        mf = []
        for a in range(4):
            for b in range(2):
                d = vr(QACC(a, b), 16)
                mf.append(mfma(d, ar(AB1(s & 1, a), 4), ar(BR1(s, b), 4), d if s else "0"))
        g0 = sc.add(mf)
        if u == 3:
            vm = [f"W{t+1}", f"X{t+1}"] if t + 1 < 8 else ["KK"]
            if t == 0: vm.append("XST")
            sc.before(g0, [Wait(vm=vm, lg=[f"A{s}", f"CS{s}"] if s < 31 else ["CSW"]), "s_barrier"])
            if t == 0: sc.before(g0, publish)
        sc.before(g0, Wait(lg=[f"A{s}", f"CS{s}"] if s <= 28 else [f"A{s}"]))
        if s == 0: sc.before(g0, lambda p: (stamp(p, 1), stamp(p, 9, 5)))
        if s == 8: sc.before(g0, lambda p: stamp(p, 10, 5))
        if s % 4 == 0: sc.before(g0, lambda p, s=s: stamp(p, 1 + s // 4, 1))
        if s + 1 < 32: sc.spread(areads_q(s + 1), g0, g0 + 5)
        else:
            sc.spread([Ins(f"ds_read_b64 {ar(AP+4*a,2)}, v{Q_EP} offset:{a*512}", "AP") for a in range(4)] + kreads_hi(KKSLOT, "KF", V_T), g0, g0 + 6)
        if s <= 26: sc.spread(csreads(s + 1), g0 + 5, g0 + 6)
        if s == 27: sc.spread(csreads(28) + csreads(29), g0 + 5, g0 + 7)
        if s == 28: sc.spread(csreads(30) + csreads(31), g0 + 5, g0 + 7)
        if s <= 28: sc.spread(csdots(s), g0, g0 + 4)
        if s == 29:
            sc.before(g0, Wait(lg=["CS31"]))
            C = Q_CS
            sc.spread(csdots(29) + csdots(30) + csdots(31) + lines(f"""
            s_nop 2
            v_add_f32 v{C}, v{C}, v{C+1}
            v_mov_b32 v{C+1}, v{C}
            s_nop 1
            v_permlane32_swap_b32 v{C}, v{C+1}
            v_add_f32 v{C}, v{C}, v{C+1}
            v_cvt_pk_bf16_f32 v{C+1}, v{C}, v{C}
            v_and_b32 v{C+1}, 0xffff0000, v{C+1}
            v_sub_f32 v{C+1}, v{C}, v{C+1}
            v_cvt_pk_bf16_f32 v{C+2}, v{C}, v{C+1}
            v_and_b32 v{C}, 0xffff0000, v{C+2}
            v_sub_f32 v{C+1}, v{C+1}, v{C}
            v_cvt_pk_bf16_f32 v{C+3}, v{C+1}, 0
            v_mbcnt_lo_u32_b32 v{Q_EP}, -1, 0
            v_mbcnt_hi_u32_b32 v{Q_EP}, -1, v{Q_EP}
            v_lshlrev_b32 v{Q_EP}, 3, v{Q_EP}
            v_add_u32 v{Q_EP}, {LDS_CS}, v{Q_EP}
            s_lshl_b32 s{S_T1}, s{S_W}, 9
            v_add_u32 v{Q_EP+1}, s{S_T1}, v{Q_EP}
            """) + [Ins(f"ds_write_b64 v{Q_EP+1}, v[{C+2}:{C+3}]", "CSW")], g0, g0 + 14)
        if s == 8: sc.spread([f"v_accvgpr_write_b32 a{AP+4*a+2+i}, 0" for a in range(4) for i in range(2)] +
                             [f"v_mov_b32 v{Q_BP+i}, 0" for i in range(8)], g0, g0 + 8)
        if s == EPL: sc.fixed(g0 + 1, [Ins(f"buffer_load_dword v{V_PR}, v{Q_EP+2}, {S4(S_DBG)}, 0 offen sc1", "EPL")])
        if s == P1I:
            sc.before(g0, [Wait(vm=["EPL"]), f"v_readfirstlane_b32 s{S_EP}, v{V_PR}"])
            sc.fixed(g0 + 1, [poll_issue(0, S_T0, "P1")])
        if s == P1C:
            sc.before(g0, lambda p: poll_check(p, "SY1", 0, S_T0, "P1", S_T1))
            for b in range(2):
                sc.fixed(g0 + 1 + 2*b, [Ins(f"buffer_load_dwordx2 v[{Q_ST+2*b}:{Q_ST+2*b+1}], v{Q_EP+3}, {S4(S_FLG)}, s{S_T2} offen offset:{b*256}{SC}", "ST")])
        if s == 28:
            sc.before(g0, [Wait(vm=["ST"]), "s_mov_b32 exec_hi, 0"] +
                      [x for b in range(2) for x in (f"v_mov_b32 v{Q_BP+4*b}, v{Q_ST+2*b}", f"v_and_b32 v{Q_BP+4*b+1}, 0xffff, v{Q_ST+2*b}")] +
                      ["s_mov_b32 exec_hi, -1"] +
                      [x for b in range(2) for x in (f"v_mov_b32 v{Q_SC+2*b}, v{Q_ST+2*b+1}", f"v_mov_b32 v{Q_SC+2*b+1}, v{Q_ST+2*b+1}")])
    g0 = sc.add([mfma(vr(QACC(a, b), 16), ar(AP + 4*a, 4), vr(Q_BP + 4*b, 4), vr(QACC(a, b), 16)) for b in range(2) for a in range(4)])
    sc.before(g0, Wait(lg=["AP"]))
    for t in range(2 if OPT.get('early1') else 1, 8):
        for x in dma_x(t): sc.queue("X", x, max(0, 8*(4*(t - 3) + 3)), 8*(4*t - 1) - 60)
        for x in dma_q(t): sc.queue("W", x, max(0, 8*(4*(t - 4) + 3)), 8*(4*t - 1) - 64)
    for x in dma_kk(): sc.queue("KV", x, 8*19, 8*31 - 64)
    for i in range(2):
        for x in dma_d(i): sc.queue("KV", x, 8*23, 260)
    sc.fixed(OPT.get("pfg", 100), [Ins(f"buffer_load_dword v{V_PFD}, v227, {S4(S_WG)}, 0 offen", "PF")])
    sc.fixed(OPT.get("pfu", 190), [Ins(f"buffer_load_dword v{V_PFD}, v227, {S4(S_WU)}, 0 offen", "PF")])
    sc.emit(p)
    if sc.report: print("p1q late:", sc.report)
    p.e(f"s_lshl_b32 s{S_BT}, s{S_DT}, 12")

def qconv():
    out = []
    for k in range(64):
        b = (k >> 3) & 1
        out.append([f"v_pk_mul_f32 v[{2*k}:{2*k+1}], v[{2*k}:{2*k+1}], v[{Q_SC+2*b}:{Q_SC+2*b+1}]"])
        out.append([f"v_cvt_pk_bf16_f32 v{k}, v{2*k}, v{2*k+1}"])
    res = [out[0]]
    for k in range(64):
        if k + 1 < 64: res.append(out[2*(k+1)])
        res.append(out[2*k+1])
    return res

def qk_mf(par, first_c):
    mf = []
    for s in range(8):
        for b in range(2):
            d = vr(SB(par, b), 16)
            mf.append(mfma(d, ar(A_KF + 4*s, 4), vr(QF(b, s), 4), d if s else first_c(b)))
    return mf
def pv_mf(par):
    mf = []
    for u in range(2):
        for t in range(4):
            for b in range(2):
                d = ar(OACC(t, b), 16)
                mf.append(mfma(d, ar(A_VF + (u*4+t)*4, 4), vr(PB(par, b, u), 4), d))
    return mf
def softmax_items(par):
    out = []
    for u in range(2):
        for b in range(2):
            for i in range(0, 8, 2):
                r = SB(par, b) + 8*u + i
                out.append([f"v_exp_f32 v{r}, v{r}"])
                out.append([f"v_exp_f32 v{r+1}, v{r+1}"])
                if OPT.get("dot2"):
                    out.append(["s_nop 0"] if False else [f"v_cvt_pk_bf16_f32 v{PB(par,b,u)+i//2}, v{r}, v{r+1}"])
                    out.append([f"v_dot2c_f32_bf16 v{V_L+b}, s{S_ONES}, v{PB(par,b,u)+i//2}"])
                else:
                    out.append([f"v_add_f32 v{V_L+b}, v{V_L+b}, v{r}"])
                    out.append([f"v_add_f32 v{V_L+b}, v{V_L+b}, v{r+1}"])
                    out.append([f"v_cvt_pk_bf16_f32 v{PB(par,b,u)+i//2}, v{r}, v{r+1}"])
    if OPT.get("dot2"):
        e = [out[i:i+2] for i in range(0, 64, 4)]; c = [out[i+2:i+4] for i in range(0, 64, 4)]
        res = list(e[0])
        for k in range(16):
            if k + 1 < 16: res += e[k+1]
            else: res += [["s_nop 0"]]
            res += c[k]
        return res
    return out
HEAD, TAIL = 35, 10
def period(p, pp, qk=True, dma=True, kread=True, nexthead=True, last=False, extra=(), endvm=(), xds=()):
    par = pp & 1; sl = (pp % 4) * SLOT
    sm = softmax_items(par); smn = softmax_items(par ^ 1)
    negm = lambda b: vr(NEGM(b), 16)
    d = (dma_d(pp + 3) if dma else []) + list(extra)
    sc = Sched()
    if qk:
        sc.add(qk_mf(par ^ 1, negm))
        sc.spread(vreads(sl, "VF"), 0, 10); sc.spread(sm[HEAD:len(sm)-TAIL], 0, 16)
    else:
        for x in vreads(sl, "VF"): p.e(x)
        for x in sm[HEAD:len(sm)-TAIL]: p.e(x)
        p.e("s_nop 1")
    g0 = sc.add(pv_mf(par))
    sc.before(g0, Wait(lg=["VF"]))
    sc.spread(sm[len(sm)-TAIL:], g0, g0 + 3)
    if kread: sc.spread(kreads(sl + 8192, "KF"), g0 + 3, g0 + 12)
    if nexthead: sc.spread(smn[:HEAD], g0 + 3, g0 + 16)
    if xds: sc.spread(list(xds), g0 + 3, g0 + 12)
    n = len(sc.mf)
    for k, x in enumerate(d): sc.fixed(1 + (k * (n - 2)) // max(len(d), 1), x)
    sc.emit(p)
    if not last:
        p.e(Wait(vm=[f"D{(pp+1)%4}"] + list(endvm), lg=["KF"])); p.e("s_barrier")

def maxtree(p, par, dst, init=True):
    for b in range(2):
        s0 = SB(par, b)
        if init: p.e(f"v_max3_f32 v{dst+b}, v{s0}, v{s0+1}, v{s0+2}"); rest = list(range(3, 16))
        else: rest = list(range(16))
        while len(rest) >= 2:
            p.e(f"v_max3_f32 v{dst+b}, v{dst+b}, v{s0+rest[0]}, v{s0+rest[1]}"); rest = rest[2:]
        if rest: p.e(f"v_max_f32 v{dst+b}, v{dst+b}, v{s0+rest[0]}")
def negm_from(p, m):
    p.e(f"""
    v_mov_b32 v{m+2}, v{m}
    v_mov_b32 v{m+3}, v{m+1}
    s_nop 1
    v_permlane32_swap_b32 v{m}, v{m+2}
    v_permlane32_swap_b32 v{m+1}, v{m+3}
    v_max_f32 v{m}, v{m}, v{m+2}
    v_max_f32 v{m+1}, v{m+1}, v{m+3}
    """)
    for b in range(2):
        for i in range(16): p.e(f"v_sub_f32 v{NEGM(b)+i}, 0, v{m+b}")

def attention(p):
    T = V_T
    p.label("K2_ATT")
    p.e(Wait(lg=["KF"]))
    zero = [f"v_accvgpr_write_b32 a{i}, 0" for i in range(128)]
    sc = Sched(); sc.add(qk_mf(0, lambda b: "0")); sc.spread(zero, 0, 16)
    for k, x in enumerate(dma_d(2)): sc.fixed(1 + 4*k, x)
    sc.emit(p)
    for g in kreads_hi(KKSLOT + 8192, "KF", T + 8): p.e(g)
    p.e(f"v_mov_b32 v{V_L}, 0\nv_mov_b32 v{V_L+1}, 0\ns_add_u32 s{S_GM}, s{S_W2K}, {gslot(0)}")
    p.e(f"s_cmp_lg_u32 s{S_FLAG}, 0\ns_cbranch_scc1 K2_HAVEM")
    maxtree(p, 0, T)
    negm_from(p, T)
    p.label("K2_HAVEM")
    for b in range(2):
        for i in range(16): p.e(f"v_add_f32 v{SB(0,b)+i}, v{SB(0,b)+i}, v{NEGM(b)+i}")
    for x in softmax_items(0)[:HEAD]: p.e(x)
    p.e(Wait(vm=["D0"], lg=["KF"])); p.e("s_barrier")
    p.e(f"s_mov_b32 s{S_LOOP}, 0")
    stamp(p, 3)
    p.e(f"""
    s_lshr_b32 s{S_T0}, s2, 3
    s_lshl_b32 s{S_T0}, s{S_T0}, 2
    s_add_u32 s{S_T0}, s{S_T0}, s{S_W}
    s_and_b32 s{S_PF}, s2, 3
    s_lshl_b32 s{S_PF}, s{S_PF}, 7
    s_add_u32 s{S_PF}, s{S_PF}, s{S_T0}
    s_lshl_b32 s{S_PF}, s{S_PF}, 13
    s_lshl_b32 s{S_PFD}, s{S_T0}, 13
    """)
    pfo = [[Ins(f"buffer_load_dword v{V_PFD}, v{V_PFA}, {S4(S_WO)}, s{S_PF} offen", "PF")]]
    pfd = [[Ins(f"buffer_load_dword v{V_PFD}, v{V_PFA}, {S4(S_WD)}, s{S_PFD} offen", "PF"), f"s_xor_b32 s{S_PFD}, s{S_PFD}, 0x100000"]]
    period(p, 0)
    p.loop_begin()
    for i in range(1, 5): period(p, i, extra=dma_g("G") if i in (1, 3) else (pfo if i == 2 else pfd))
    p.loop_end("K2_LOOP", 3, [f"s_add_u32 s{S_LOOP}, s{S_LOOP}, 1", f"s_cmp_lt_u32 s{S_LOOP}, 3", "s_cbranch_scc1 K2_LOOP"])
    period(p, 13, dma=False, extra=bload(0, BR2, "C") + bload(1, BR2, "C") + bload(2, BR2, "C") + bload(3, BR2, "C"))
    g6 = dma_g("G6"); g6[0] = [f"s_mov_b32 s{S_GM}, s{S_W2K}"] + g6[0]
    period(p, 14, dma=False, kread=False, extra=g6 + dma_g("G7"), endvm=["G"])
    period(p, 15, qk=False, dma=False, kread=False, nexthead=False, last=True,
           extra=bload(4, BR2, "C") + bload(5, BR2, "C") + bload(6, BR2, "C") + bload(7, BR2, "C"), xds=areads_g(0))

V_LI = 48
def oepi_head(p):
    T = V_T
    p.e(f"""
    v_mov_b32 v{T}, v{V_L}
    v_mov_b32 v{T+1}, v{V_L+1}
    s_nop 1
    v_permlane32_swap_b32 v{V_L}, v{T}
    v_permlane32_swap_b32 v{V_L+1}, v{T+1}
    v_add_f32 v{V_L}, v{V_L}, v{T}
    v_add_f32 v{V_L+1}, v{V_L+1}, v{T+1}
    v_add_f32 v{T+1}, v{V_L}, v{V_L+1}
    s_mov_b32 s{S_T0}, 0x5d800000
    v_cmp_ngt_f32 vcc, s{S_T0}, v{T+1}
    s_nop 1
    s_cmp_lg_u64 vcc, 0
    s_cselect_b32 s{S_T1}, 1, 0
    v_mov_b32 v{T}, s{S_T1}
    v_mov_b32 v{T+1}, {LDS_FLAG}
    v_mov_b32 v{T+2}, s{S_W}
    v_lshl_add_u32 v{T+2}, v{T+2}, 2, v{T+1}
    ds_write_b32 v{T+2}, v{T}
    """)
    p.e(Wait(vm=["G7"])); p.e("s_waitcnt lgkmcnt(0)\ns_barrier")
    p.e(f"""
    ds_read_b128 v[{T+4}:{T+7}], v{T+1}
    s_add_u32 s{S_T2}, s{S_OOFF}, 4096
    s_waitcnt lgkmcnt(0)
    v_or_b32 v{T+4}, v{T+4}, v{T+5}
    v_or3_b32 v{T+4}, v{T+4}, v{T+6}, v{T+7}
    s_nop 0
    v_readfirstlane_b32 s{S_T1}, v{T+4}
    s_nop 0
    s_andn2_b32 s{S_T1}, s{S_T1}, s{S_FLAG}
    s_cmp_lg_u32 s{S_T1}, 0
    s_cbranch_scc1 K2_SLOW
    v_rcp_f32 v{V_LI}, v{V_L}
    v_rcp_f32 v{V_LI+2}, v{V_L+1}
    s_nop 0
    v_mov_b32 v{V_LI+1}, v{V_LI}
    v_mov_b32 v{V_LI+3}, v{V_LI+2}
    """)
def oepi_groups():
    out = []; k = 0
    for t in range(4):
        for b in range(2):
            for uu in range(2):
                o0 = OACC(t, b) + 8*uu
                tmp = (k % 4) * 8; pk = 32 + (k % 4) * 4; k += 1
                g = [f"v_accvgpr_read_b32 v{tmp+i}, a{o0+i}" for i in range(8)]
                g += [f"v_mul_f32 v{tmp+i}, v{tmp+i}, v{V_LI+2*b}" for i in range(8)]
                g += [f"v_cvt_pk_bf16_f32 v{pk+i//2}, v{tmp+i}, v{tmp+i+1}" for i in range(0, 8, 2)]
                off = (2*t + uu) * 1024
                so = S_OOFF if off < 4096 else S_T2
                g.append(Ins(f"buffer_store_dwordx4 v[{pk}:{pk+3}], v{V_ST0+b}, {S4(S_ACT)}, s{so} offen offset:{off % 4096}{SC}", "OST"))
                out.append(g)
    return out

def slowpath():
    p = Prog(); T = V_T
    p.label("K2_SLOW")
    p.e(f"""
    s_mov_b32 s{S_FLAG}, 1
    s_mov_b32 s{S_KT}, 0
    s_mov_b32 s{S_LOOP}, 0
    s_sub_u32 s{S_BT}, s{S_BT}, 8192
    s_and_b32 s{S_BT}, s{S_BT}, 0x7fff
    v_mov_b32 v{T}, 0xff800000
    v_mov_b32 v{T+1}, 0xff800000
    s_waitcnt vmcnt(0) lgkmcnt(0)
    """)
    p.loop_begin()
    p.e("s_barrier")
    for g in dma_k(8192, "X"): p.e(g)
    p.e("s_waitcnt vmcnt(0)\ns_barrier")
    for x in kreads(8192, "KF"): p.e(x)
    p.e("s_waitcnt lgkmcnt(0)")
    for x in qk_mf(0, lambda b: "0"): p.e(x)
    p.e("s_nop 11")
    maxtree(p, 0, T, init=False)
    p.loop_end("K2_SLOWL", 16, [f"s_add_u32 s{S_LOOP}, s{S_LOOP}, 1", f"s_cmp_lt_u32 s{S_LOOP}, 16", "s_cbranch_scc1 K2_SLOWL"])
    negm_from(p, T)
    p.e(f"s_barrier\ns_mov_b32 s{S_KT}, s{S_ROT2}\ns_mov_b32 s{S_VT}, s{S_ROT2}")
    for g in dma_kk(): p.e(g)
    for i in range(2):
        for g in dma_d(i): p.e(g)
    p.e("s_waitcnt vmcnt(0)\ns_barrier")
    for g in kreads_hi(KKSLOT, "KF", T + 8): p.e(g)
    p.e("s_branch K2_ATT")
    return p

def late_setup():
    T = V_T; VL = K_VL
    return lines(f"""
    v_mbcnt_lo_u32_b32 v{VL}, -1, 0
    v_mbcnt_hi_u32_b32 v{VL}, -1, v{VL}
    s_and_b32 s{K_KQ}, s2, 3
    s_bfe_u32 s{K_QD}, s2, 0x10005
    s_xor_b32 s{K_QD}, s{K_QD}, s{K_KQ}
    s_lshr_b32 s{S_T0}, s2, 3
    s_and_b32 s{K_CT}, s{S_T0}, 3
    s_lshr_b32 s{K_SR32}, s{S_T0}, 2
    s_lshl_b32 s{K_SR32}, s{K_SR32}, 2
    s_and_b32 s{S_T0}, s2, 4
    s_lshr_b32 s3, s2, 6
    s_add_u32 s3, s3, s{S_T0}
    s_lshl_b32 s3, s3, 7
    s_lshl_b32 s{S_T0}, s{S_T0}, 3
    s_add_u32 s{K_SR32}, s{K_SR32}, s{S_T0}
    v_lshlrev_b32 v{K_VL16}, 4, v{VL}
    v_and_b32 v{T}, 3, v{VL}
    v_bfe_u32 v{T+1}, v{VL}, 2, 1
    v_lshl_add_u32 v{T}, v{T}, 3, v{T+1}
    s_lshl_b32 s{S_T0}, s{K_KQ}, 1
    v_add_u32 v{T}, s{S_T0}, v{T}
    v_lshlrev_b32 v{V_FL2}, 2, v{T}
    v_lshrrev_b32 v{T}, 4, v{VL}
    v_and_b32 v{T+1}, 15, v{VL}
    v_lshlrev_b32 v{T+2}, 2, v{T}
    v_xor_b32 v{T+1}, v{T+1}, v{T+2}
    v_lshlrev_b32 v{T+1}, 4, v{T+1}
    v_lshl_add_u32 v{K_VSW}, v{T}, 10, v{T+1}
    s_lshl_b32 s{S_T0}, s{S_W}, 12
    s_lshl_b32 s{S_T1}, s{K_CT}, 8
    s_add_u32 s{S_T0}, s{S_T0}, s{S_T1}
    v_add_u32 v{K_VSW}, s{S_T0}, v{K_VSW}
    s_add_u32 s{S_T0}, s{K_SR32}, s{S_W}
    s_mul_i32 s{S_T0}, s{S_T0}, {ACT_KS*1024}
    v_add_u32 v{K_VSA}, s{S_T0}, v{K_VL16}
    s_lshl_b32 s{K_SSW}, s{K_KQ}, 20
    s_lshl_b32 s{K_SSA}, s{K_KQ}, 16
    v_lshrrev_b32 v{T}, 5, v{VL}
    v_bfe_u32 v{T+1}, v{VL}, 2, 2
    v_bfe_u32 v{T+2}, v{VL}, 4, 1
    v_and_b32 v{T+3}, 3, v{VL}
    v_and_b32 v{T+4}, 1, v{T+3}
    v_lshrrev_b32 v{T+5}, 1, v{T+3}
    v_lshl_add_u32 v{T+4}, v{T+4}, 1, v{T+5}
    v_lshlrev_b32 v{T+5}, 5, v{T+2}
    v_lshl_add_u32 v{T+4}, v{T+4}, 3, v{T+5}
    v_lshl_add_u32 v{T+5}, v{T}, 2, v{T+1}
    v_lshl_add_u32 v{T+6}, v{T+5}, 8, v{T+4}
    s_and_b32 s{S_T0}, s{S_W}, 1
    s_lshl_b32 s{S_T0}, s{S_T0}, 1
    v_xor_b32 v{T+7}, s{S_T0}, v{T+1}
    v_lshl_add_u32 v{K_VRA}, v{T+7}, 6, v{T+6}
    v_xor_b32 v{T+7}, 1, v{T+7}
    v_lshl_add_u32 v{K_VRA+1}, v{T+7}, 6, v{T+6}
    v_add_u32 v{K_VRA+2}, 0x10000, v{K_VRA}
    v_add_u32 v{K_VRA+3}, 0x10000, v{K_VRA+1}
    v_add_u32 v{K_VRA+4}, 0x20000, v{K_VRA}
    v_add_u32 v{K_VRA+5}, 0x20000, v{K_VRA+1}
    s_and_b32 s{S_T0}, s{S_W}, 2
    s_lshl_b32 s{S_T0}, s{S_T0}, 12
    v_add_u32 v{K_VRB}, s{S_T0}, v{K_VL16}
    v_add_u32 v{K_VRB+1}, 0x10000, v{K_VRB}
    v_add_u32 v{K_VRB+2}, 0x20000, v{K_VRB}
    s_lshl_b32 s{K_SLB}, s{S_W}, 14
    s_add_u32 s{K_SLB}, s{K_SLB}, 65536
    v_lshl_add_u32 v{T+6}, v{T+5}, 7, v{T+4}
    v_add_u32 v{T+6}, s{K_SLB}, v{T+6}
    v_lshrrev_b32 v{T+7}, 1, v{T+1}
    v_lshl_add_u32 v{K_VA0}, v{T+7}, 6, v{T+6}
    v_xor_b32 v{T+7}, 1, v{T+7}
    v_lshl_add_u32 v{K_VA0+1}, v{T+7}, 6, v{T+6}
    v_subrev_u32 v{K_VA2}, 0x10000, v{K_VA0}
    v_subrev_u32 v{K_VA2+1}, 0x10000, v{K_VA0+1}
    s_mul_i32 s{K_SWO}, s{S_W}, {28*16384}
    s_mul_i32 s{K_SA}, s{S_W}, {28*1024}
    s_add_u32 s{K_SA}, s{K_SA}, {256*1024}
    s_and_b32 s{S_T1}, s{K_QD}, 2
    s_add_u32 s{S_T1}, s{S_T1}, s{K_SR32}
    s_mul_i32 s{S_T0}, s{S_T1}, {ACT_KS*1024}
    v_add_u32 v{K_VB0}, s{S_T0}, v{K_VL16}
    v_add_u32 v{K_VB1}, {ACT_KS*1024}, v{K_VB0}
    s_lshr_b32 s{S_T0}, s{S_W}, 1
    s_add_u32 s{S_T0}, s{S_T0}, s{S_T1}
    s_lshl_b32 s{S_T0}, s{S_T0}, 15
    s_and_b32 s{S_T1}, s{S_W}, 1
    s_lshl_b32 s{S_T1}, s{S_T1}, 6
    s_add_u32 s{S_T0}, s{S_T0}, s{S_T1}
    s_lshl_b32 s{S_T1}, s{K_CT}, 8
    s_and_b32 s{K_SPO}, s{K_QD}, 1
    s_lshl_b32 s{K_SPO}, s{K_SPO}, 7
    s_add_u32 s{S_T1}, s{S_T1}, s{K_SPO}
    s_add_u32 s{S_T0}, s{S_T0}, s{S_T1}
    v_and_b32 v{T+6}, 31, v{VL}
    v_lshlrev_b32 v{T+6}, 10, v{T+6}
    v_lshl_add_u32 v{T+6}, v{T}, 4, v{T+6}
    v_add_u32 v{K_VX}, s{S_T0}, v{T+6}
    v_lshrrev_b32 v{T+6}, 3, v{VL}
    v_and_b32 v{T+7}, 7, v{VL}
    v_lshlrev_b32 v{T+5}, 2, v{T+2}
    v_xor_b32 v{T+7}, v{T+7}, v{T+5}
    v_lshlrev_b32 v{T+7}, 4, v{T+7}
    v_lshl_add_u32 v{K_VW0}, v{T+6}, 10, v{T+7}
    v_add_u32 v{K_VW0}, s{S_T1}, v{K_VW0}
    v_add_u32 v{K_VW1}, {8192-1024}, v{K_VW0}
    s_lshr_b32 s{S_T0}, s2, 2
    s_lshl_b32 s{K_SPO}, s{S_T0}, 7
    s_add_u32 s{K_SPO}, s{K_SPO}, 4096
    s_lshl_b32 s{S_T0}, s{S_T0}, 17
    s_lshl_b32 s{S_T1}, s{S_W}, 15
    s_add_u32 s{K_SST}, s{S_T0}, s{S_T1}
    s_lshl_b32 s{S_T1}, s{K_KQ}, 13
    s_add_u32 s{K_SST}, s{K_SST}, s{S_T1}
    s_lshl_b32 s{S_T1}, s{K_QD}, 15
    s_add_u32 s{S_T0}, s{S_T0}, s{S_T1}
    s_lshl_b32 s{S_T1}, s{S_W}, 11
    s_add_u32 s{K_SLD}, s{S_T0}, s{S_T1}
    """)
def ks_sw(g):
    return [[f"s_add_u32 m0, s{S_W1K}, {kslot(g)+st*4096}", "s_nop 0",
             Ins(f"buffer_load_dwordx4 v{K_VSW}, {S4(S_WO)}, s{K_SSW} offen lds", f"sw{g}"), f"s_add_u32 s{K_SSW}, s{K_SSW}, 16384"] for st in range(4)]
def ks_sa(g):
    out = [[f"s_add_u32 m0, s{S_W4K}, {kslot(g)+16384}", "s_nop 0",
            Ins(f"buffer_load_dwordx4 v{K_VSA}, {S4(S_ACT)}, s{K_SSA} offen offset:{st*1024}{SC} lds", f"sa{g}")] for st in range(4)]
    out[-1].append(f"s_add_u32 s{K_SSA}, s{K_SSA}, 4096")
    return out
def FA(i, nt): return (i % 3)*16 + nt*4
def FB(i, b): return (i % 3)*16 + 8 + b*4
def ks_rd(i):
    g, st = i // 4, i % 4
    sl = kslot(g); hi = sl // 65536; sl -= hi * 65536
    out = [Ins(f"ds_read_b64_tr_b16 {ar(FA(i,nt)+2*e,2)}, v{K_VRA+2*hi+nt} offset:{sl+st*4096+e*2048}", f"f{i}") for nt in range(2) for e in range(2)]
    out += [Ins(f"ds_read_b128 {ar(FB(i,b),4)}, v{K_VRB+hi} offset:{sl+16384+b*4096+st*1024}", f"f{i}") for b in range(2)]
    return out
def BR3(i, b): return 128 + (i % 14)*8 + b*4
def AB3(par, nt): return 240 + par*8 + nt*4
def kbo(i): return (i % 8) * 2048 - (65536 if (i % 16) >= 8 else 0)
def kb_wl(i):
    return [[f"s_add_u32 m0, s{K_SLB}, {kbo(i) & 0xffffffff}", "s_nop 0", Ins(f"buffer_load_dwordx4 v{K_VW0}, {S4(S_WD)}, s{K_SWO} offen lds", f"w{i}")],
            [f"s_add_u32 m0, s{K_SLB}, {kbo(i) & 0xffffffff}", "s_nop 0", Ins(f"buffer_load_dwordx4 v{K_VW1}, {S4(S_WD)}, s{K_SWO} offen offset:1024 lds", f"w{i}"),
             f"s_add_u32 s{K_SWO}, s{K_SWO}, 16384"]]
def kb_bl(i):
    return [[Ins(f"buffer_load_dwordx4 {ar(BR3(i,0),4)}, v{K_VB0}, {S4(S_ACT)}, s{K_SA} offen{SC}", f"b{i}")],
            [Ins(f"buffer_load_dwordx4 {ar(BR3(i,1),4)}, v{K_VB1}, {S4(S_ACT)}, s{K_SA} offen{SC}", f"b{i}"), f"s_add_u32 s{K_SA}, s{K_SA}, 1024"]]
def kb_rd(i):
    return [Ins(f"ds_read_b64_tr_b16 {ar(AB3(i&1,nt)+2*e,2)}, v{(K_VA0 if (i % 16) < 8 else K_VA2)+nt} offset:{(i%8)*2048+e*1024}", f"a{i}") for nt in range(2) for e in range(2)]

def hepi_groups():
    T = V_T; out = []; k = 0
    for t in range(2):
        for b in range(2):
            for uu in range(2):
                g0 = GACC(t, b) + 8*uu; u0 = GACC(t + 2, b) + 8*uu
                pk = u0; k += 1
                g = [f"v_pk_mul_f32 v[{g0+i}:{g0+i+1}], v[{g0+i}:{g0+i+1}], s[{S_NL2E}:{S_NL2E+1}]" for i in range(0, 8, 2)]
                g += [f"v_exp_f32 v{g0+i}, v{g0+i}" for i in range(8)]
                g += [f"v_add_f32 v{g0+i}, 1.0, v{g0+i}" for i in range(8)]
                g += [f"v_rcp_f32 v{g0+i}, v{g0+i}" for i in range(8)]
                g += ["s_nop 0"] + [f"v_pk_mul_f32 v[{g0+i}:{g0+i+1}], v[{g0+i}:{g0+i+1}], v[{u0+i}:{u0+i+1}]" for i in range(0, 8, 2)]
                g += [f"v_cvt_pk_bf16_f32 v{pk+i//2}, v{g0+i}, v{g0+i+1}" for i in range(0, 8, 2)]
                g.append(Ins(f"buffer_store_dwordx4 v[{pk}:{pk+3}], v{V_ST0+b}, {S4(S_ACT)}, s{S_HOFF} offen offset:{(2*t+uu)*1024}{SC}", "HST"))
                out.append(g)
    return out

class Sched2(Sched):
    def __init__(self, dense_from): Sched.__init__(self); self.dense = dense_from
    def _free(self, g):
        if g >= self.dense: return g not in self.vm
        return Sched._free(self, g)

def late(p):
    OSP = OPT.get("osp", 8); OBAR = OPT.get("obar", 18); HFIRST = OPT.get("hfirst", 4)
    HSP = OPT.get("hsp", 0); HBAR = OPT.get("hbar", 14); SYH = OPT.get("syh", 47)
    PSP = OPT.get("psp", 2); PFL = OPT.get("pfl", 14); PPI = OPT.get("ppi", 25)
    KS0, KB0 = 256, 512
    NSA0 = 5
    sc = Sched2(OPT.get("dense", KB0 - 8))
    FT = V_T + 18
    p.e("s_load_dwordx2 s[60:61], s[0:1], 88\ns_load_dwordx2 s[72:73], s[0:1], 72")
    for s in range(32):
        mf = []
        for a in range(4):
            for b in range(2):
                d = vr(GACC(a, b), 16)
                mf.append(mfma(d, ar(AB2(s & 1, a), 4), ar(BR2(s, b), 4), d if s else "0"))
        g0 = sc.add(mf)
        if s - 1 in (6, 14, 22, 30) or s - 1 == OBAR:
            vm = (["OST"] if s - 1 == OBAR else [])
            sc.before(g0, [Wait(vm=vm, lg=[f"AG{s}"]), "s_barrier"])
        sc.before(g0, Wait(vm=[f"C{s}"], lg=[f"AG{s}"]))
        if s % 4 == 0: sc.before(g0, lambda p, s=s: stamp(p, 1 + s // 4, 2))
        if s == 1: sc.before(g0, ["s_waitcnt lgkmcnt(0)"] + srd_l(S_PT, 60, 61, PART_BYTES, add=WS_PART) + srd_l(S_OUT, 72, 73, 2097152))
        if s == OBAR + 1: sc.fixed(g0, flag_store(1, FT, FT + 1))
        if s + 1 < 32: sc.spread(areads_g(s + 1), g0, g0 + 4)
        if s >= 8:
            for x in bload(s, BR2, "C"): sc.queue("C", x, max(0, 8*(s - 12) + 7), 8*s - 40)
    for k, grp in enumerate(oepi_groups()):
        e = 5 + OSP*k
        sc.spread(grp[:-1], max(0, e - OSP), e); sc.fixed(e, [grp[-1]])
    assert 5 + OSP*15 < 8*OBAR
    sc.spread(late_setup(), 8, 56)
    for i in range(64):
        g, st = i // 4, i % 4
        mf = []
        for b in range(2):
            for nt in range(2):
                d = vr((nt + 2*b) * 16, 16)
                mf.append(mfma(d, ar(FA(i, nt), 4), ar(FB(i, b), 4), "0" if i == 0 else d))
        g0 = sc.add(mf)
        if i == 0:
            def mid(p):
                stamp(p, 5); stamp(p, 9, 2)
                hg = [x[:-1] if HSP else x for x in hepi_groups()]
                p.e("s_nop 7")
                for k in range(HFIRST):
                    if k == HFIRST - OPT.get("hpoll", 2): p.e(poll_issue(1, K_SGO, "PO", V_FL2))
                    p.e(hg[k])
                stamp(p, 1, 3)
                poll_check(p, "SYO", 1, K_SGO, "PO", K_CNT, V_FL2)
                stamp(p, 6)
                vq = sum((ks_sa(g) for g in range(NSA0)), [])
                hs = sum(hg[HFIRST:], [])
                first = OPT.get("safirst", 4)
                for x in vq[:first]: p.e(x)
                vq = vq[first:]
                for k, x in enumerate(hs):
                    p.e(x)
                    if k % 10 == 5 and vq: p.e(vq.pop(0))
                for x in vq: p.e(x)
                p.e(Wait(vm=["sw0", "sa0"])); p.e("s_barrier")
                for x in ks_rd(0) + ks_rd(1): p.e(x)
            sc.before(g0, mid)
        if st == 2 and g + 1 < 16:
            sc.before(g0, [Wait(vm=[f"sw{g+1}", f"sa{g+1}"] + (["HST"] if i == HBAR else []), lg=[f"f{i+1}"]), "s_barrier"])
        if i == HBAR: sc.fixed(g0, flag_store(2, FT, FT + 1))
        if i == SYH - 5: sc.fixed(g0, [poll_issue(2, 3, "PH")])
        if i == SYH: sc.before(g0, lambda p: (stamp(p, 7), poll_check(p, "SYH", 2, 3, "PH", K_CNT)))
        sc.before(g0, Wait(lg=[f"f{i}"]))
        if i % 8 == 0: sc.before(g0, lambda p, i=i: stamp(p, 2 + i // 8, 3))
        if i + 2 < 64: sc.spread(ks_rd(i + 2), g0, g0 + 4)
        if i == 63: sc.spread([Wait(vm=["w0"])] + kb_rd(0), g0, g0 + 2)
    for g in range(16):
        free = {0: 56, 1: 56, 2: 120, 3: 184, 4: 248}.get(g, KS0 + 4*(4*(g - 5) + 2))
        need = 248 if g == 0 else KS0 + 4*(4*(g - 1) + 2)
        for x in ks_sw(g): sc.queue("sw", x, free, need - 40)
        if g >= NSA0:
            for x in ks_sa(g): sc.queue("sa", x, max(free, KS0), need - 44)
    if HSP:
        for k, grp in enumerate(hepi_groups()): sc.fixed(KS0 + 2 + HSP*k, [grp[-1]])
    assert 2 + HSP*7 < 4*HBAR
    for i in range(28):
        mf = []
        for b in range(2):
            for nt in range(2):
                d = vr(64 + (nt + 2*b) * 16, 16)
                mf.append(mfma(d, ar(AB3(i & 1, nt), 4), ar(BR3(i, b), 4), "0" if i == 0 else d))
        g0 = sc.add(mf)
        if i == 0: sc.before(g0, lambda p: (stamp(p, 8), stamp(p, 10, 3)))
        if i % 4 == 0: sc.before(g0, lambda p, i=i: stamp(p, 1 + i // 4, 4))
        if i + 1 < 28: sc.before(g0, [Wait(vm=[f"w{i+1}", f"b{i}"])] + kb_rd(i + 1))
        else: sc.before(g0, Wait(vm=[f"b{i}"]))
        if i == PFL:
            sc.before(g0, lines(f"""
            s_lshl_b32 s{S_FO}, s{S_W}, 4
            s_add_u32 s{S_FO}, s{S_FO}, s{K_SPO}
            s_lshl_b32 s{S_T0}, s{K_KQ}, 2
            s_add_u32 s{S_FO}, s{S_FO}, s{S_T0}
            s_lshl_b32 s{S_T0}, s{K_QD}, 4
            s_add_u32 s{K_SPO}, s{K_SPO}, s{S_T0}
            v_and_b32 v{V_FL}, 12, v{V_FL}
            """) + [Wait(vm=["PSS"])])
            sc.fixed(g0, flag_store(0, FT, FT + 1))
        if i == PPI: sc.fixed(g0, [poll_issue(0, K_SPO, "PP")])
        sc.before(g0, Wait(lg=[f"a{i}"]))
        if i == 0: sc.before(g0, "s_barrier")
        for x in kb_wl(i): sc.queue("w", x, KS0 + 4*50 if i < 8 else (KB0 if i < 16 else KB0 + 4*(i - 16)), KB0 + 4*(i - 1) - 40)
        for x in kb_bl(i): sc.queue("b", x, KS0 + 4*SYH if i < 14 else KB0 + 4*(i - 14) + 3, KB0 + 4*i - 40)
    for k in range(8):
        r = 8*k; pk = 128 + 4*k; e = KB0 + OPT.get('ps0', 6) + PSP*k
        grp = [f"v_cvt_pk_bf16_f32 v{pk+i}, v{r+2*i}, v{r+2*i+1}" for i in range(4)]
        if k == 4: grp.append(f"s_add_u32 s{K_SST}, s{K_SST}, 4096")
        sc.spread(grp, e - 2, e)
        sc.fixed(e, [Ins(f"buffer_store_dwordx4 v[{pk}:{pk+3}], v{K_VL16}, {S4(S_PT)}, s{K_SST} offen offset:{(k%4)*1024}{SC}", "PSS")])
    sc.queue("x", [Ins(f"buffer_load_dwordx4 v[176:179], v{K_VX}, {S4(S_X)}, 0 offen", "X")], KB0 + 64, 700)
    sc.queue("x", [Ins(f"buffer_load_dwordx4 v[180:183], v{K_VX}, {S4(S_X)}, 0 offen offset:32", "X")], KB0 + 64, 700)
    sc.emit(p)
    if sc.report: print("late:", len(sc.report), sc.report[:60])
    stamp(p, 9); stamp(p, 8, 4)
    T = V_T
    poll_check(p, "SYP", 0, K_SPO, "PP", K_CNT)
    stamp(p, 10)
    for src in range(4):
        p.e(f"buffer_load_dwordx4 v[{144+8*src}:{147+8*src}], v{K_VL16}, {S4(S_PT)}, s{K_SLD} offen{SC}", tag=f"PL{src}")
        p.e(f"buffer_load_dwordx4 v[{148+8*src}:{151+8*src}], v{K_VL16}, {S4(S_PT)}, s{K_SLD} offen offset:1024{SC}", tag=f"PL{src}")
        p.e(f"s_add_u32 s{K_SLD}, s{K_SLD}, 8192")
    p.e(f"""
    v_add_u32 v{T}, s{K_SLB}, v{K_VL16}
    s_add_u32 s{S_T0}, s{S_W4K}, 65536
    v_add_u32 v{T+1}, s{S_T0}, v{K_VL16}
    """)
    for order in range(16):
        r = 64 + 4*order
        p.e(f"ds_write_b128 v{T}, v[{r}:{r+3}] offset:{order*1024}")
    p.e("s_waitcnt lgkmcnt(0)\ns_barrier")
    for sw_ in range(4):
        for rg in range(4):
            d = 64 + sw_*16 + rg*4
            p.e(f"ds_read_b128 v[{d}:{d+3}], v{T+1} offset:{sw_*16384+rg*1024}", tag=f"R{sw_}")
    def pk(op, d, a, b): return f"v_pk_{op}_f32 v[{d}:{d+1}], v[{a}:{a+1}], {b}"
    for i in range(8): p.e(f"v_lshlrev_b32 v{48+2*i}, 16, v{176+i}\nv_and_b32 v{49+2*i}, 0xffff0000, v{176+i}")
    p.e(Wait(lg=["R1"]))
    for i in range(0, 16, 2): p.e(pk("add", 64+i, 64+i, f"v[{80+i}:{81+i}]"))
    p.e("s_waitcnt lgkmcnt(0)")
    for i in range(0, 16, 2): p.e(pk("add", 96+i, 96+i, f"v[{112+i}:{113+i}]"))
    for i in range(0, 16, 2): p.e(pk("add", 64+i, 64+i, f"v[{96+i}:{97+i}]"))
    for i in range(0, 16, 2): p.e(pk("mul", 16+i, 64+i, f"s[{S_NL2E}:{S_NL2E+1}]"))
    for i in range(16): p.e(f"v_exp_f32 v{16+i}, v{16+i}")
    for i in range(16): p.e(f"v_add_f32 v{16+i}, 1.0, v{16+i}")
    for i in range(16): p.e(f"v_rcp_f32 v{16+i}, v{16+i}")
    for i in range(0, 16, 2): p.e(pk("mul", 64+i, 64+i, f"v[{16+i}:{17+i}]"))
    for src in range(4):
        p.e(Wait(vm=[f"PL{src}"]))
        d = 0 if src == 0 else 16
        for i in range(8): p.e(f"v_lshlrev_b32 v{d+2*i}, 16, v{144+8*src+i}\nv_and_b32 v{d+2*i+1}, 0xffff0000, v{144+8*src+i}")
        if src:
            for i in range(0, 16, 2): p.e(pk("add", i, i, f"v[{16+i}:{17+i}]"))
    for i in range(0, 16, 2): p.e(f"v_pk_fma_f32 v[{i}:{i+1}], v[{i}:{i+1}], v[{64+i}:{65+i}], v[{48+i}:{49+i}]")
    for i in range(8): p.e(f"v_cvt_pk_bf16_f32 v{32+i}, v{2*i}, v{2*i+1}")
    p.e(f"""
    buffer_store_dwordx4 v[32:35], v{K_VX}, {S4(S_OUT)}, 0 offen{" sc1" if OPT.get("osc") else ""}
    buffer_store_dwordx4 v[36:39], v{K_VX}, {S4(S_OUT)}, 0 offen offset:32{" sc1" if OPT.get("osc") else ""}
    """)
    stamp(p, 11)

def gen():
    p = Prog()
    setup(p)
    layernorm(p)
    p1q(p)
    stamp(p, 2); stamp(p, 9, 1); stamp(p, 11, 5)
    srd(p, S_WO, 60, 61, 4096*1024)
    p.e("s_nop 7")
    for g in qconv(): p.e(g)
    attention(p)
    stamp(p, 4)
    oepi_head(p)
    late(p)
    stamp_flush(p, 12)
    p.label("K_END")
    p.e("s_endpgm")
    return p, slowpath()

KD = """.section .rodata,"a"
.p2align 6
.amdhsa_kernel {name}
  .amdhsa_next_free_vgpr 512
  .amdhsa_next_free_sgpr 102
  .amdhsa_accum_offset 256
  .amdhsa_group_segment_fixed_size 0
  .amdhsa_kernarg_size 96
  .amdhsa_user_sgpr_count 2
  .amdhsa_user_sgpr_kernarg_segment_ptr 1
  .amdhsa_system_sgpr_workgroup_id_x 1
.end_amdhsa_kernel
"""
HEADER = open("cdna_kernels/" + NAME + ".s.ref").read().split("; Override launch")[0]

def build(out):
    k, slow = gen()
    errs = []
    for nm, pr in (("k", k), ("slow", slow)):
        resolve(pr)
        errs += check(pr.trace(), nm)
        if nm == 'k': errs += check_tags(pr.trace())
    for e in errs[:40]: print("HAZARD", e)
    if errs: print(len(errs), "problems")
    nm = NAME + "_kernel"
    s = HEADER + f"; @launch grid=(256,1,1) block=(256,1,1) lds={LDS_TOTAL}\n"
    s += '.amdgcn_target "amdgcn-amd-amdhsa--gfx950"\n.text\n'
    s += f".globl {nm}\n.p2align 8\n.type {nm},@function\n{nm}:\n{k.text()}{slow.text()}CODE_END:\n"
    s += KD.format(name=nm)
    open(out, "w").write(s)
    return len(errs)

if __name__ == "__main__":
    out = sys.argv[1] if len(sys.argv) > 1 else "cdna_kernels/" + NAME + ".s"
    STAMPS = "stamps" in sys.argv[2:]
    for a in sys.argv[2:]:
        if "=" in a: OPT[a.split("=")[0]] = int(a.split("=")[1])
    if OPT.get("dot2"): HEAD, TAIL = 28, 9
    sys.exit(1 if build(out) else 0)
```

```python
import sys, struct, math
from asmlib import *

NAME = "recurrent_scan__sliding_block_cached__glu_gated_glu__prompt"
WS_XN = 0
XN_BYTES = 2 << 20
WS_FLG = 3 << 20
WS_ACT = 4 << 20
ACT_KS = 368
ACT_BYTES = 64 * ACT_KS * 1024
WS_PART = 32 << 20
PART_BYTES = 8 << 20
WS_DBG = 64 << 20
LOG2E = 1.4426950408889634
def f2u(x): return struct.unpack("<I", struct.pack("<f", x))[0]
QSCALE = f2u(LOG2E / math.sqrt(128.0))
STAMPS = False
OPT = {}
SC = " sc1"

def vr(b, n=1): return f"v{b}" if n == 1 else f"v[{b}:{b+n-1}]"
def ar(b, n=1): return f"a{b}" if n == 1 else f"a[{b}:{b+n-1}]"
def S4(b): return f"s[{b}:{b+3}]"
def lines(s): return [x.strip() for x in s.strip().split("\n") if x.strip()]
def singles(l): return [[x] for x in l]

def srd_l(d, lo, hi, nbytes, add=None):
    out = [f"s_mov_b32 s{d}, s{lo}", f"s_mov_b32 s{d+1}, s{hi}"] if add is None else [f"s_add_u32 s{d}, s{lo}, {add}", f"s_addc_u32 s{d+1}, s{hi}, 0"]
    return out + [f"s_mov_b32 s{d+2}, {nbytes}", f"s_mov_b32 s{d+3}, 0x00020000"]
def srd(p, *a, **k): p.e(srd_l(*a, **k))

def stamp(p, k, ph=0):
    if OPT.get("ph", 0) != ph and k != 0: return
    if STAMPS: p.e(f"{'s_memtime' if OPT.get('cyc') else 's_memrealtime'} s[{76+2*k}:{77+2*k}]")
def stamp_flush(p, n):
    if not STAMPS: return
    if OPT.get("dbgst"):
        p.e(f"s_load_dwordx2 s[60:61], s[0:1], 80\ns_waitcnt lgkmcnt(0) vmcnt(0)\ns_cmp_lg_u32 s{S_W}, 0\ns_cbranch_scc1 K_END")
        srd(p, 4, 60, 61, 256)
        p.e("v_mov_b32 v0, 0\ns_mov_b64 exec, 1")
        for k in range(n):
            p.e(f"s_sub_u32 s3, s{76+2*k}, s{S_EP}\ns_add_u32 s3, s3, 100\nv_mov_b32 v2, s3\nbuffer_atomic_add v2, v0, s[4:7], 0 offen offset:{8+4*k} sc1\ns_nop 1")
            if k in (0, n - 1): p.e(f"buffer_atomic_umax v2, v0, s[4:7], 0 offen offset:{4 if k == 0 else 56} sc1\ns_nop 1")
        p.e("s_waitcnt vmcnt(0)")
        return
    p.e("s_load_dwordx2 s[60:61], s[0:1], 88\ns_waitcnt lgkmcnt(0) vmcnt(0)")
    srd(p, 4, 60, 61, 1 << 20, add=WS_DBG)
    p.e(f"s_lshl_b32 s3, s2, 8\ns_lshl_b32 s70, s{S_W}, 6\ns_add_u32 s3, s3, s70\nv_mov_b32 v0, 0")
    for k in range(n):
        p.e(f"v_mov_b32 v2, s{76+2*k}\nbuffer_store_dword v2, v0, s[4:7], s3 offen offset:{4*k}\ns_nop 1")
    p.e("s_waitcnt vmcnt(0)")

def mfma(d, a, b, c): return f"v_mfma_f32_32x32x16_bf16 {d}, {a}, {b}, {c}"

S_X = 4
S_WQ, S_WG, S_WU, S_XN, S_K, S_V, S_ACT = 8, 12, 16, 20, 24, 28, 32
S_WO, S_OUT, S_PT, S_WD = 8, 28, 24, 64
S_W, S_J, S_RB, S_W2K, S_W1K = 36, 37, 38, 39, 40
S_DT, S_DQ, S_GM, S_BT, S_KT, S_VT = 41, 42, 43, 44, 45, 46
S_LOOP, S_FLAG, S_ROT2 = 47, 48, 49
S_C0, S_NL2E = 50, 52
S_T0, S_T1, S_T2 = 54, 55, 56
S_HOFF, S_OOFF, S_PF = 57, 58, 59
S_EP, S_FO = 62, 63
S_FLG, S_DBG = 68, 72
S_W4K = 100
S_ONES = 51
S_PFD = 101
V_PFW = 251
K_SSW, K_SSA, K_SR32, K_CT, K_KQ, K_SPO, K_CNT, K_SST = 45, 46, 47, 48, 49, 50, 51, 59
K_SLD, K_SWO, K_SA, K_SLB = 72, 73, 74, 75
K_QD = 38
V_AQ, V_AG, V_OQ, V_OG, V_OB0, V_OB1 = 192, 200, 206, 207, 208, 209
V_K, V_V, V_OK0, V_OK1, V_OV, V_ST0, V_ST1 = 210, 218, 222, 223, 224, 225, 226
V_L = 228
V_T = 230
V_PFA, V_PFD, V_FL, V_PR = 252, 253, 254, 255
V_FL2 = 227
Q_XR, Q_OX, Q_CA, Q_CT, Q_CS, Q_ST, Q_BP, Q_EP, Q_SC = 128, 136, 138, 140, 156, 160, 164, 172, 176
S_XT, S_W8K = 44, 3
K_SGO = 3
K_VSW, K_VSA, K_VL16, K_VL, K_VRB, K_VX = 192, 193, 194, 195, 196, 199
K_VRA, K_VB0, K_VB1, K_VW0, K_VW1, K_VA0, K_VA2 = 210, 216, 217, 218, 219, 220, 222
def QACC(t, b): return (t*2 + b) * 16
def GACC(a, b): return 64 + (a*2 + b) * 16
A_KF, A_VF = 192, 224
def QF(b, s): return ((s >> 1)*2 + b)*8 + (s & 1)*4
def SB(par, b): return 64 + par*32 + b*16
def PB(par, b, u): return 128 + par*16 + b*8 + u*4
def NEGM(b): return 160 + b*16
def OACC(t, b): return (t*2 + b) * 16
SLOT = 16384
KKSLOT = 6 * SLOT
def wslot(t): return (6 + t % 4) * SLOT
def xslot(t): return ((t + 1) % 3) * 32768
LDS_CS = 7 * SLOT
def gslot(t): return (4 + t) * SLOT if t < 6 else (t - 6) * SLOT
def kslot(g): return ((g + 1) % 5) * 32768
LDS_LN = 0
LDS_FLAG = 3 * SLOT + 8192
LDS_TOTAL = 163840

def flag_store(sy, vd, vz, tag="FS"):
    return [f"v_mov_b32 v{vd}, s{S_EP}", f"v_mov_b32 v{vz}, 0", "s_mov_b64 exec, 1",
            Ins(f"buffer_store_dword v{vd}, v{vz}, {S4(S_FLG)}, s{S_FO} offen offset:{sy*1024} sc1", tag),
            "s_mov_b64 exec, -1"]
def poll_issue(sy, goff, tag, vfl=None):
    return Ins(f"buffer_load_dword v{V_PR}, v{vfl or V_FL}, {S4(S_FLG)}, s{goff} offen offset:{sy*1024} sc1", tag)
def poll_check(p, lbl, sy, goff, tag, cnt, vfl=None):
    p.e(Wait(vm=[tag]))
    p.e(f"v_cmp_ne_u32 vcc, s{S_EP}, v{V_PR}\ns_mov_b32 s{cnt}, 0\ns_cbranch_vccz {lbl}_OK")
    p.label(f"{lbl}_P")
    p.e("s_sleep 2")
    p.e(poll_issue(sy, goff, "OPT_POLL", vfl))
    p.e(f"""
    s_add_u32 s{cnt}, s{cnt}, 1
    s_waitcnt vmcnt(0)
    v_cmp_ne_u32 vcc, s{S_EP}, v{V_PR}
    s_cmp_gt_u32 s{cnt}, 0x40000
    s_cbranch_scc1 {lbl}_OK
    s_cbranch_vccnz {lbl}_P
    """)
    p.label(f"{lbl}_OK")

def setup(p):
    T = V_T; L = T + 1
    p.e("s_cmp_ge_u32 s2, 256\ns_cbranch_scc1 K_END")
    p.e("s_load_dwordx8 s[60:67], s[0:1], 0\ns_load_dwordx4 s[68:71], s[0:1], 48\ns_load_dwordx4 s[72:75], s[0:1], 80")
    stamp(p, 0)
    p.e("s_getpc_b64 s[42:43]")
    p.label("CODE0")
    p.e(f"v_lshlrev_b32 v1, 7, v0\nv_add_u32 v2, 32768, v1\nv_min_u32 v2, CODE_END-CODE0-4, v2")
    def cpf():
        p.e(f"global_load_dword v{V_PFD}, v1, s[42:43]", tag="PF")
        p.e(f"global_load_dword v{V_PFD}, v2, s[42:43]", tag="PF")
    if OPT.get("cpf", 1) == 1: cpf()
    p.e(f"""
    v_lshrrev_b32 v{T}, 6, v0
    v_and_b32 v{L}, 63, v0
    v_and_b32 v3, 7, v{L}
    v_readfirstlane_b32 s{S_W}, v{T}
    v_lshrrev_b32 v4, 3, v{L}
    v_lshlrev_b32 v5, 10, v3
    v_lshl_add_u32 v5, v4, 4, v5
    v_lshl_add_u32 v5, v{T}, 8, v5
    s_lshl_b32 s3, s2, 13
    s_and_b32 s{S_T0}, s2, 7
    s_lshr_b32 s{S_T1}, s2, 3
    s_and_b32 s{S_T1}, s{S_T1}, 3
    s_lshr_b32 s{S_RB}, s2, 5
    s_lshl_b32 s{S_J}, s{S_T0}, 2
    s_add_u32 s{S_J}, s{S_J}, s{S_T1}
    s_lshl_b32 s{S_W2K}, s{S_W}, 11
    s_lshl_b32 s{S_W1K}, s{S_W}, 10
    s_lshl_b32 s{S_W4K}, s{S_W}, 12
    s_lshl_b32 s{S_DT}, s{S_T1}, 1
    s_add_u32 s{S_DT}, s{S_DT}, s{S_RB}
    s_and_b32 s{S_DT}, s{S_DT}, {OPT.get('rotm', 7)}
    s_lshl_b32 s{S_ROT2}, s{S_RB}, 2
    s_add_u32 s{S_ROT2}, s{S_ROT2}, s{S_T1}
    s_lshr_b32 s{S_ROT2}, s{S_ROT2}, 1
    s_lshl_b32 s{S_ROT2}, s{S_ROT2}, 13
    s_waitcnt lgkmcnt(0)
    """)
    stamp(p, 1, 5)
    srd(p, S_X, 60, 61, 2097152)
    p.e(f"buffer_load_dwordx4 v[8:11], v5, {S4(S_X)}, s3 offen", tag="X")
    p.e(f"buffer_load_dwordx4 v[12:15], v5, {S4(S_X)}, s3 offen offset:128", tag="X")
    srd(p, S_XN, 74, 75, XN_BYTES, add=WS_XN)
    srd(p, S_ACT, 74, 75, ACT_BYTES, add=WS_ACT)
    p.e(f"s_add_u32 s{S_KT}, s74, {WS_FLG}\ns_addc_u32 s{S_VT}, s75, 0")
    p.e(f"s_mov_b32 s{S_DBG+2}, 256\ns_mov_b32 s{S_DBG+3}, 0x00020000")
    p.e(f"s_lshl_b32 s{S_T1}, s{S_T0}, 19\ns_add_u32 s{S_T1}, s{S_T1}, {1536*256}")
    srd(p, S_K, 62, 63, 131072, add=f"s{S_T1}")
    srd(p, S_V, 64, 65, 131072, add=f"s{S_T1}")
    p.e(f"""
    s_memrealtime s[60:61]
    s_lshl_b32 s{S_FO}, s2, 2
    v_and_b32 v{V_FL}, 31, v{L}
    v_lshlrev_b32 v{V_FL}, 2, v{V_FL}
    v_mov_b32 v{Q_EP+1}, 0
    v_mov_b32 v{Q_EP+2}, 0
    s_waitcnt lgkmcnt(0)
    s_or_b32 s{S_EP}, s60, 1
    v_mov_b32 v{Q_EP}, s{S_EP}
    s_cmp_lg_u32 s{S_W}, 0
    s_cbranch_scc1 NOEP
    s_mov_b64 exec, 1
    """)
    p.e(f"buffer_atomic_cmpswap v[{Q_EP}:{Q_EP+1}], v{Q_EP+2}, {S4(S_DBG)}, 0 offen sc0 sc1", tag="EP")
    p.e("s_mov_b64 exec, -1\ns_branch EPD")
    p.label("NOEP")
    p.e(f"buffer_load_dword v{V_PFD}, v{Q_EP+2}, {S4(S_K)}, 0 offen", tag="OPT_PF")
    p.label("EPD")
    p.e(f"""
    v_lshrrev_b32 v{T+2}, 4, v{L}
    v_and_b32 v{T+3}, 15, v{L}
    v_lshlrev_b32 v{T+4}, 2, v{T+2}
    v_xor_b32 v{T+4}, v{T+3}, v{T+4}
    v_lshlrev_b32 v{T+4}, 4, v{T+4}
    v_lshl_add_u32 v{T+5}, v{T}, 4, v{T+2}
    v_lshl_add_u32 v{V_OQ}, v{T+5}, 13, v{T+4}
    s_lshl_b32 s{S_T1}, s{S_J}, 8
    s_sub_u32 s{S_T2}, {4194304}, s{S_T1}
    """)
    srd(p, S_WQ, 66, 67, f"s{S_T2}", add=f"s{S_T1}")
    p.e(f"""
    v_lshrrev_b32 v{T+6}, 1, v4
    v_xor_b32 v{T+7}, v3, v{T+6}
    v_lshlrev_b32 v{T+7}, 4, v{T+7}
    v_lshl_add_u32 v{Q_OX}, v4, 10, v{T+7}
    s_lshl_b32 s{S_T1}, s{S_RB}, 18
    s_lshl_b32 s{S_T2}, s{S_W}, 16
    s_add_u32 s{S_T1}, s{S_T1}, s{S_T2}
    v_add_u32 v{Q_OX}, s{S_T1}, v{Q_OX}
    v_xor_b32 v{Q_OX+1}, 64, v{Q_OX}
    s_lshl_b32 s{S_XT}, s{S_DT}, 7
    s_lshl_b32 s{S_PF}, s{S_W}, 13
    """)
    p.mark0 = len(p.cur)
    p.e(f"""
    s_lshr_b32 s{S_HOFF}, s{S_T0}, 1
    s_mul_i32 s{S_HOFF}, s{S_HOFF}, 7
    s_and_b32 s{S_T1}, s{S_J}, 7
    s_add_u32 s{S_HOFF}, s{S_HOFF}, s{S_T1}
    s_cmp_eq_u32 s{S_T1}, 7
    s_cselect_b32 s{S_OOFF}, 1, 0
    s_lshl_b32 s{S_T1}, s{S_HOFF}, 7
    s_sub_u32 s{S_T2}, {512*3584}, s{S_T1}
    s_cmp_lg_u32 s{S_OOFF}, 0
    s_cselect_b32 s{S_T2}, 0, s{S_T2}
    """)
    srd(p, S_WG, 68, 69, f"s{S_T2}", add=f"s{S_T1}")
    srd(p, S_WU, 70, 71, f"s{S_T2}", add=f"s{S_T1}")
    srd(p, S_FLG, S_KT, S_VT, 32768)
    p.e(f"""
    v_and_b32 v{T+7}, 7, v{L}
    v_and_b32 v{T+8}, 1, v{T+2}
    v_lshlrev_b32 v{T+8}, 2, v{T+8}
    v_xor_b32 v{T+7}, v{T+7}, v{T+8}
    v_lshlrev_b32 v{T+7}, 4, v{T+7}
    v_lshl_add_u32 v{T+6}, v{T}, 4, v4
    v_mul_u32_u24 v{T+6}, 3584, v{T+6}
    v_add_u32 v{V_OG}, v{T+6}, v{T+7}
    s_mov_b32 s{S_C0}, 0x{QSCALE:08x}
    s_mov_b32 s{S_NL2E}, 0x{f2u(-LOG2E):08x}
    s_mov_b32 s{S_NL2E+1}, 0x{f2u(-LOG2E):08x}
    s_mov_b32 s{S_FLAG}, 0
    s_mov_b32 s{S_KT}, s{S_ROT2}
    s_mov_b32 s{S_VT}, s{S_ROT2}
    v_lshl_add_u32 v{T+5}, v{T}, 3, v{T+2}
    v_lshl_add_u32 v{V_OV}, v{T+5}, 8, v{T+4}
    v_xor_b32 v{T+6}, v{T+3}, v{T+5}
    v_and_b32 v{T+6}, 15, v{T+6}
    v_lshlrev_b32 v{T+6}, 4, v{T+6}
    v_lshl_add_u32 v{V_OK0}, v{T+5}, 8, v{T+6}
    v_add_u32 v{T+7}, 4, v{T+5}
    v_xor_b32 v{T+6}, v{T+3}, v{T+7}
    v_and_b32 v{T+6}, 15, v{T+6}
    v_lshlrev_b32 v{T+6}, 4, v{T+6}
    v_lshl_add_u32 v{V_OK1}, v{T+5}, 8, v{T+6}
    s_lshl_b32 s{S_T2}, s{S_RB}, 3
    s_lshl_b32 s{S_T1}, s{S_W}, 1
    s_add_u32 s{S_T2}, s{S_T2}, s{S_T1}
    s_lshl_b32 s{S_T1}, s{S_T2}, 15
    v_lshlrev_b32 v{T+6}, 4, v{L}
    v_add_u32 v{V_OB0}, s{S_T1}, v{T+6}
    v_add_u32 v{V_OB1}, 32768, v{V_OB0}
    s_mul_i32 s{S_T1}, s{S_T2}, {ACT_KS*1024}
    v_add_u32 v{V_ST0}, s{S_T1}, v{T+6}
    v_add_u32 v{V_ST1}, {ACT_KS*1024}, v{V_ST0}
    v_lshlrev_b32 v{V_PFA}, 7, v{L}
    s_lshl_b32 s{S_HOFF}, s{S_HOFF}, 12
    s_add_u32 s{S_HOFF}, s{S_HOFF}, {256*1024}
    s_cmp_lg_u32 s{S_OOFF}, 0
    s_cselect_b32 s{S_HOFF}, 0x40000000, s{S_HOFF}
    s_lshl_b32 s{S_OOFF}, s{S_J}, 13
    {"s_mov_b32 s%d, 0x40000000" % S_OOFF if OPT.get("nost") else ""}
    {"s_mov_b32 s%d, 0x40000000" % S_HOFF if OPT.get("nost") else ""}
    v_lshrrev_b32 v6, 1, v4
    v_lshlrev_b32 v6, 10, v6
    v_and_b32 v7, 1, v4
    v_lshl_add_u32 v6, v7, 9, v6
    v_lshl_add_u32 v6, v3, 4, v6
    v_lshl_add_u32 v6, v{T}, 13, v6
    v_add_u32 v17, 4096, v6
    v_lshlrev_b32 v16, 4, v3
    v_add_u32 v16, {LDS_LN}, v16
    v_lshl_add_u32 v7, v{T}, 2, v16
    s_lshl_b32 s{S_T1}, s{S_RB}, 6
    v_add_u32 v227, s{S_T1}, v{L}
    v_mul_u32_u24 v227, 3584, v227
    """)
    lds_addrs(p)

def lds_addrs(p):
    T = V_T; L = T + 1
    p.e(f"""
    v_lshrrev_b32 v{T+2}, 5, v{L}
    v_bfe_u32 v{T+3}, v{L}, 4, 1
    v_bfe_u32 v{T+4}, v{L}, 2, 2
    v_and_b32 v{T+5}, 3, v{L}
    v_and_b32 v{T+6}, 1, v{T+5}
    v_lshrrev_b32 v{T+7}, 1, v{T+5}
    v_lshl_add_u32 v{T+6}, v{T+6}, 1, v{T+7}
    v_lshlrev_b32 v{T+7}, 5, v{T+3}
    v_lshl_add_u32 v{T+8}, v{T+6}, 3, v{T+7}
    v_lshl_add_u32 v{T+9}, v{T+5}, 3, v{T+7}
    v_lshl_add_u32 v{T+10}, v{T+2}, 3, v{T+4}
    v_lshl_add_u32 v{T+11}, v{T+2}, 2, v{T+4}
    """)
    for t in range(4):
        p.e(f"""
        v_xor_b32 v{T+12}, {t}, v{T+4}
        v_lshlrev_b32 v{T+12}, 6, v{T+12}
        v_lshl_add_u32 v{T+13}, v{T+10}, 8, v{T+12}
        v_add_u32 v{V_AQ+t}, v{T+13}, v{T+8}
        v_add_u32 v{V_AQ+4+t}, 0x20000, v{V_AQ+t}
        v_add_u32 v{V_AQ+t}, 0x10000, v{V_AQ+t}
        v_lshl_add_u32 v{T+13}, v{T+11}, 8, v{T+12}
        v_add_u32 v{V_V+t}, v{T+13}, v{T+9}
        """)
    p.e(f"""
    v_xor_b32 v{T+12}, s{S_W}, v{T+4}
    v_lshlrev_b32 v{T+12}, 6, v{T+12}
    v_lshl_add_u32 v{T+13}, v{T+10}, 8, v{T+12}
    v_add_u32 v{T+13}, v{T+13}, v{T+8}
    v_add_u32 v{Q_CA}, 0x10000, v{T+13}
    v_add_u32 v{Q_CA+1}, 0x20000, v{T+13}
    v_and_b32 v{T+12}, 31, v{L}
    v_bfe_u32 v{T+13}, v{L}, 1, 3
    v_lshlrev_b32 v{T+12}, 7, v{T+12}
    v_add_u32 v{T+12}, s{S_PF}, v{T+12}
    """)
    for u in range(4):
        p.e(f"""
        v_add_u32 v{T+14}, {2*u}, v{T+2}
        v_xor_b32 v{T+14}, v{T+14}, v{T+13}
        v_lshl_add_u32 v{Q_XR+u}, v{T+14}, 4, v{T+12}
        v_add_u32 v{Q_XR+4+u}, 0x10000, v{Q_XR+u}
        """)
    p.e(f"v_lshrrev_b32 v{T+14}, 1, v{T+4}")
    for t in range(2):
        p.e(f"""
        v_xor_b32 v{T+12}, {t}, v{T+14}
        v_lshlrev_b32 v{T+12}, 6, v{T+12}
        v_lshl_add_u32 v{T+13}, v{T+10}, 7, v{T+12}
        v_add_u32 v{V_AG+t}, v{T+13}, v{T+9}
        v_add_u32 v{V_AG+2+t}, 0x10000, v{V_AG+t}
        v_add_u32 v{V_AG+4+t}, 0x20000, v{V_AG+t}
        """)
    p.e(f"v_and_b32 v{T+12}, 31, v{L}\nv_and_b32 v{T+13}, 15, v{L}")
    for s in range(8):
        p.e(f"""
        v_add_u32 v{T+14}, {2*s}, v{T+2}
        v_xor_b32 v{T+14}, v{T+14}, v{T+13}
        v_lshlrev_b32 v{T+14}, 4, v{T+14}
        v_lshl_add_u32 v{V_K+s}, v{T+12}, 8, v{T+14}
        """)

NW0 = 2
def layernorm(p):
    p.e(f"""
    s_lshr_b32 s{S_T1}, s2, 2
    s_lshl_b32 s{S_T1}, s{S_T1}, 15
    s_and_b32 s{S_T2}, s2, 3
    s_lshl_b32 s{S_T2}, s{S_T2}, 7
    s_add_u32 s3, s{S_T1}, s{S_T2}
    s_mov_b32 s{S_T0}, 0x3b000000
    """)
    stamp(p, 3, 5)
    p.e(Wait(vm=["X"]))
    stamp(p, 4, 5)
    for i in range(8):
        p.e(f"v_lshlrev_b32 v{20+2*i}, 16, v{8+i}\nv_and_b32 v{21+2*i}, 0xffff0000, v{8+i}")
    def reduce(src, off):
        p.e(f"""
        s_nop 1
        v_add_f32_dpp v{src}, v{src}, v{src} row_ror:8 row_mask:0xf bank_mask:0xf
        v_mov_b32 v41, v{src}
        s_nop 1
        v_permlane16_swap_b32 v{src}, v41
        v_add_f32 v{src}, v{src}, v41
        v_mov_b32 v41, v{src}
        s_nop 1
        v_permlane32_swap_b32 v{src}, v41
        v_add_f32 v{src}, v{src}, v41
        ds_write_b32 v7, v{src} offset:{off}
        s_waitcnt lgkmcnt(0)
        s_barrier
        ds_read_b128 v[44:47], v16 offset:{off}
        s_waitcnt lgkmcnt(0)
        v_add_f32 v44, v44, v45
        v_add_f32 v46, v46, v47
        v_add_f32 v40, v44, v46
        """)
    p.e("v_add_f32 v36, v20, v21\nv_add_f32 v37, v22, v23")
    for i in range(2, 8, 2):
        p.e(f"v_add_f32 v36, v36, v{20+2*i}\nv_add_f32 v37, v37, v{21+2*i}\nv_add_f32 v36, v36, v{22+2*i}\nv_add_f32 v37, v37, v{23+2*i}")
    p.e("v_add_f32 v36, v36, v37")
    reduce(36, 0)
    p.e(f"v_mul_f32 v48, s{S_T0}, v40")
    p.e("v_mov_b32 v36, 0\nv_mov_b32 v37, 0")
    for i in range(8):
        p.e(f"v_sub_f32 v38, v{20+2*i}, v48\nv_sub_f32 v39, v{21+2*i}, v48\nv_fmac_f32 v36, v38, v38\nv_fmac_f32 v37, v39, v39")
    p.e("v_add_f32 v36, v36, v37")
    reduce(36, 128)
    p.e(f"""
    v_mul_f32 v49, s{S_T0}, v40
    v_cvt_pk_bf16_f32 v49, v49, v49
    v_and_b32 v49, 0xffff0000, v49
    v_add_f32 v49, 0x{f2u(1e-5):08x}, v49
    v_cvt_pk_bf16_f32 v49, v49, v49
    v_and_b32 v49, 0xffff0000, v49
    v_sqrt_f32 v49, v49
    v_cvt_pk_bf16_f32 v48, v48, v48
    v_cvt_pk_bf16_f32 v49, v49, v49
    v_and_b32 v48, 0xffff0000, v48
    v_and_b32 v49, 0xffff0000, v49
    v_rcp_f32 v49, v49
    """)
    for i in range(8):
        a, b = 20 + 2*i, 21 + 2*i
        p.e(f"""
        v_sub_f32 v{a}, v{a}, v48
        v_sub_f32 v{b}, v{b}, v48
        v_cvt_pk_bf16_f32 v38, v{a}, v{b}
        v_lshlrev_b32 v{a}, 16, v38
        v_and_b32 v{b}, 0xffff0000, v38
        v_mul_f32 v{a}, v{a}, v49
        v_mul_f32 v{b}, v{b}, v49
        v_cvt_pk_bf16_f32 v{8+i}, v{a}, v{b}
        """)
        if i == 3: p.e(f"buffer_store_dwordx4 v[8:11], v6, {S4(S_XN)}, s3 offen{SC}")
    p.e(f"buffer_store_dwordx4 v[12:15], v17, {S4(S_XN)}, s3 offen{SC}")
    p.e(f"""
    v_xor_b32 v56, 0x80000000, v48
    v_lshrrev_b32 v57, 16, v56
    v_or_b32 v56, v56, v57
    v_mul_f32 v57, s{S_C0}, v49
    v_lshlrev_b32 v58, 3, v3
    s_lshl_b32 s{S_T1}, s2, 6
    s_add_u32 s{S_T1}, s{S_T1}, 16384
    s_mov_b64 exec, 0xff
    """)
    p.e(f"buffer_store_dwordx2 v[56:57], v58, {S4(S_FLG)}, s{S_T1} offen{SC}", tag="XST")
    p.e("s_mov_b64 exec, -1")
    p.e("s_load_dwordx2 s[60:61], s[0:1], 32\ns_load_dwordx2 s[64:65], s[0:1], 64")
    stamp(p, 5, 5)
    w0, x0, w1, x1 = dma_q(0), dma_x(0), dma_q(1), dma_x(1)
    groups = [w0[0], x0[0], x0[4], w0[1], x0[1], x0[5], w0[2], x0[2], x0[6], w0[3], x0[3], x0[7]]
    if OPT.get("early1", 0) == 0: pass
    else: groups += x1 + w1
    body = p.cur[p.mark0:]; del p.cur[p.mark0:]
    every = OPT.get("every", 20); cnt = every; f0 = OPT.get("f0", 3)
    for _ in range(f0): p.e(groups.pop(0))
    for k, ins in enumerate(body):
        p.cur.append(ins); cnt -= 1
        nxt = body[k + 1].t if k + 1 < len(body) else ""
        if cnt <= 0 and groups and ins.t.startswith("v_") and nxt.startswith("v_") and "exec" not in body[k - 1].t and "exec" not in body[k-2].t:
            p.e(groups.pop(0)); cnt = every
    for x in groups: p.e(x)
    stamp(p, 6, 5)

def dma_q(t):
    tag = f"W{t}"; g = []
    for ii in range(4):
        pre = [f"s_lshl_b32 s{S_DQ}, s{S_DT}, 19", f"s_add_u32 m0, s{S_W4K}, {wslot(t)}", f"s_add_u32 s{S_DT}, s{S_DT}, 1"] if ii == 0 else \
              [f"s_add_u32 m0, s{S_W4K}, {wslot(t)}", f"s_add_u32 s{S_DQ}, s{S_DQ}, {32768-1024}"]
        g.append(pre + [Ins(f"buffer_load_dwordx4 v{V_OQ}, {S4(S_WQ)}, s{S_DQ} offen offset:{ii*1024} lds", tag)])
    g[-1].append(f"s_and_b32 s{S_DT}, s{S_DT}, 7")
    return g
def dma_x(t):
    g = []
    for ii in range(8):
        g.append([f"s_add_u32 m0, s{S_PF}, {xslot(t)+ii*1024}", f"s_add_u32 s{S_GM}, s{S_XT}, {ii*8192}",
                  Ins(f"buffer_load_dwordx4 v{Q_OX+(ii&1)}, {S4(S_X)}, s{S_GM} offen lds", f"X{t}")])
    g[-1] += [f"s_add_u32 s{S_XT}, s{S_XT}, 128", f"s_and_b32 s{S_XT}, s{S_XT}, 0x3ff"]
    return g
def dma_g(tag):
    return [[f"s_mul_i32 s{S_DQ}, s{S_DT}, {64*3584}", f"s_mov_b32 m0, s{S_GM}", f"s_add_u32 s{S_DT}, s{S_DT}, 1",
             Ins(f"buffer_load_dwordx4 v{V_OG}, {S4(S_WG)}, s{S_DQ} offen lds", tag)],
            [f"s_add_u32 m0, s{S_GM}, 8192", f"s_and_b32 s{S_DT}, s{S_DT}, 7",
             Ins(f"buffer_load_dwordx4 v{V_OG}, {S4(S_WU)}, s{S_DQ} offen lds", tag)],
            [f"s_add_u32 m0, s{S_GM}, 8192", f"s_add_u32 s{S_DQ}, s{S_DQ}, {8*3584-1024}",
             Ins(f"buffer_load_dwordx4 v{V_OG}, {S4(S_WU)}, s{S_DQ} offen offset:1024 lds", tag)],
            [f"s_mov_b32 m0, s{S_GM}", f"s_add_u32 s{S_GM}, s{S_GM}, {SLOT}",
             Ins(f"buffer_load_dwordx4 v{V_OG}, {S4(S_WG)}, s{S_DQ} offen offset:1024 lds", tag)]]
def dma_k(ldsoff, tag):
    return [[f"s_add_u32 m0, s{S_W2K}, {ldsoff}", f"s_nop 0",
             Ins(f"buffer_load_dwordx4 v{V_OK0}, {S4(S_K)}, s{S_KT} offen lds", tag)],
            [f"s_add_u32 m0, s{S_W2K}, {ldsoff}", f"s_nop 0",
             Ins(f"buffer_load_dwordx4 v{V_OK1}, {S4(S_K)}, s{S_KT} offen offset:1024 lds", tag),
             f"s_add_u32 s{S_KT}, s{S_KT}, 8192", f"s_and_b32 s{S_KT}, s{S_KT}, 0x1ffff"]]
def dma_v(ldsoff, tag):
    return [[f"s_add_u32 m0, s{S_W2K}, {ldsoff}", f"s_nop 0",
             Ins(f"buffer_load_dwordx4 v{V_OV}, {S4(S_V)}, s{S_VT} offen lds", tag)],
            [f"s_add_u32 m0, s{S_W2K}, {ldsoff}", f"s_nop 0",
             Ins(f"buffer_load_dwordx4 v{V_OV}, {S4(S_V)}, s{S_VT} offen offset:1024 lds", tag),
             f"s_add_u32 s{S_VT}, s{S_VT}, 8192", f"s_and_b32 s{S_VT}, s{S_VT}, 0x1ffff"]]
def dma_d(pp):
    sl = (pp % 4) * SLOT; tag = f"D{pp%4}"
    return dma_v(sl, tag) + dma_k(sl + 8192, tag)
def dma_kk(): return dma_k(KKSLOT, "KK") + dma_k(KKSLOT + 8192, "KK")

def BR1(s, b): return 32 + (s & 1)*8 + b*4
def BR2(s, b): return 160 + (s % 12)*8 + b*4
def AB1(par, a): return par*16 + a*4
def AB2(par, a): return 128 + par*16 + a*4
def bload(s, ring, pre):
    u = s & 3; tag = f"{pre}{s}"
    SC = "" if OPT.get("nosc") else " sc1"
    g = [[Ins(f"buffer_load_dwordx4 {ar(ring(s,0),4)}, v{V_OB0}, {S4(S_XN)}, s{S_BT} offen offset:{u*1024}{SC}", tag)],
         [Ins(f"buffer_load_dwordx4 {ar(ring(s,1),4)}, v{V_OB1}, {S4(S_XN)}, s{S_BT} offen offset:{u*1024}{SC}", tag)]]
    if u == 3 and not OPT.get("bfix"): g[1] += [f"s_add_u32 s{S_BT}, s{S_BT}, 4096", f"s_and_b32 s{S_BT}, s{S_BT}, 0x7fff"]
    return g
def areads_q(s):
    t, u = s >> 2, s & 3
    sl = wslot(t); hi = sl // 65536; sl -= hi * 65536
    out = [Ins(f"ds_read_b64_tr_b16 {ar(AB1(s&1,a)+2*e,2)}, v{V_AQ+4*(hi-1)+a} offset:{sl+(16*u+4*e)*256}", f"A{s}") for a in range(4) for e in range(2)]
    xs = xslot(t); xh = xs // 65536; xs -= xh * 65536
    xb = [Ins(f"ds_read_b128 {ar(BR1(s,b),4)}, v{Q_XR+4*xh+u} offset:{xs+b*4096}", f"A{s}") for b in range(2)]
    return out[:2] + xb + out[2:]
def csreads(s):
    t, u = s >> 2, s & 3
    sl = wslot(t); hi = sl // 65536; sl -= hi * 65536
    return [Ins(f"ds_read_b64_tr_b16 v[{Q_CT+(s%4)*4+2*e}:{Q_CT+(s%4)*4+2*e+1}], v{Q_CA+hi-1} offset:{sl+(16*u+4*e)*256}", f"CS{s}") for e in range(2)]
def csdots(s):
    if OPT.get("nocs"): return []
    return [f"v_dot2c_f32_bf16 v{Q_CS+(i&1)}, s{S_ONES}, v{Q_CT+(s%4)*4+i}" for i in range(4)]
def areads_g(s):
    t, u = s >> 2, s & 3
    sl = gslot(t); hi = sl // 65536; sl -= hi * 65536
    return [Ins(f"ds_read_b64_tr_b16 {ar(AB2(s&1,a)+2*e,2)}, v{V_AG+2*hi+(a&1)} offset:{sl+(a>>1)*8192+(16*u+4*e)*128}", f"AG{s}") for a in range(4) for e in range(2)]
def kreads(off, tag):
    return [Ins(f"ds_read_b128 {ar(A_KF+4*s,4)}, v{V_K+s} offset:{off}", tag) for s in range(8)]
def kreads_hi(off, tag, tmp):
    return [[f"v_add_u32 v{tmp+(s&3)}, 0x10000, v{V_K+s}",
             Ins(f"ds_read_b128 {ar(A_KF+4*s,4)}, v{tmp+(s&3)} offset:{off-65536}", tag)] for s in range(8)]
def vreads(sl, tag):
    return [Ins(f"ds_read_b64_tr_b16 {ar(A_VF+(u*4+t)*4+2*e,2)}, v{V_V+t} offset:{sl+(16*u+8*e)*256}", tag) for u in range(2) for t in range(4) for e in range(2)]

def p1q(p):
    AP = 64
    p.e(f"""
    s_mov_b32 s{S_ONES}, 0x3f803f80
    v_mov_b32 v{Q_CS}, 0
    v_mov_b32 v{Q_CS+1}, 0
    s_lshl_b32 s{S_T0}, s{S_RB}, 7
    s_lshl_b32 s{S_T2}, s{S_RB}, 11
    s_lshl_b32 s{S_T1}, s{S_W}, 9
    s_add_u32 s{S_T2}, s{S_T2}, s{S_T1}
    s_add_u32 s{S_T2}, s{S_T2}, 16384
    v_lshlrev_b32 v{Q_EP+3}, 1, v{V_FL}
    """)
    p.e(Wait(vm=["W0", "X0"])); stamp(p, 7, 5); p.e("s_barrier"); stamp(p, 8, 5)
    for x in areads_q(0) + csreads(0): p.e(x)
    p.e(f"s_waitcnt lgkmcnt(0)\ns_mov_b32 s{S_WD+2}, {1792*1024}\ns_mov_b32 s{S_WD+3}, 0x00020000")
    sc = Sched()
    def publish(p):
        p.e(f"""
        s_cmp_lg_u32 s{S_W}, 0
        s_cbranch_scc1 SY1_D
        v_readfirstlane_b32 s{S_T1}, v{Q_EP}
        s_nop 0
        s_cmp_eq_u32 s{S_T1}, 0
        s_cselect_b32 s{S_EP}, s{S_EP}, s{S_T1}
        """)
        p.e(flag_store(0, Q_EP, Q_EP + 1, "OPT_FS"))
        p.label("SY1_D")
    EPL = OPT.get("epl", 10); P1I = OPT.get("p1i", 16); P1C = OPT.get("p1c", 22)
    for s in range(32):
        t, u = s >> 2, s & 3
        mf = []
        for a in range(4):
            for b in range(2):
                d = vr(QACC(a, b), 16)
                mf.append(mfma(d, ar(AB1(s & 1, a), 4), ar(BR1(s, b), 4), d if s else "0"))
        g0 = sc.add(mf)
        if u == 3:
            vm = [f"W{t+1}", f"X{t+1}"] if t + 1 < 8 else ["KK"]
            if t == 0: vm.append("XST")
            sc.before(g0, [Wait(vm=vm, lg=[f"A{s}", f"CS{s}"] if s < 31 else ["CSW"]), "s_barrier"])
            if t == 0: sc.before(g0, publish)
        sc.before(g0, Wait(lg=[f"A{s}", f"CS{s}"] if s <= 28 else [f"A{s}"]))
        if s == 0: sc.before(g0, lambda p: (stamp(p, 1), stamp(p, 9, 5)))
        if s == 8: sc.before(g0, lambda p: stamp(p, 10, 5))
        if s % 4 == 0: sc.before(g0, lambda p, s=s: stamp(p, 1 + s // 4, 1))
        if s + 1 < 32: sc.spread(areads_q(s + 1), g0, g0 + 5)
        else:
            sc.spread([Ins(f"ds_read_b64 {ar(AP+4*a,2)}, v{Q_EP} offset:{a*512}", "AP") for a in range(4)] + kreads_hi(KKSLOT, "KF", V_T), g0, g0 + 6)
        if s <= 26: sc.spread(csreads(s + 1), g0 + 5, g0 + 6)
        if s == 27: sc.spread(csreads(28) + csreads(29), g0 + 5, g0 + 7)
        if s == 28: sc.spread(csreads(30) + csreads(31), g0 + 5, g0 + 7)
        if s <= 28: sc.spread(csdots(s), g0, g0 + 4)
        if s == 29:
            sc.before(g0, Wait(lg=["CS31"]))
            C = Q_CS
            sc.spread(csdots(29) + csdots(30) + csdots(31) + lines(f"""
            s_nop 2
            v_add_f32 v{C}, v{C}, v{C+1}
            v_mov_b32 v{C+1}, v{C}
            s_nop 1
            v_permlane32_swap_b32 v{C}, v{C+1}
            v_add_f32 v{C}, v{C}, v{C+1}
            v_cvt_pk_bf16_f32 v{C+1}, v{C}, v{C}
            v_and_b32 v{C+1}, 0xffff0000, v{C+1}
            v_sub_f32 v{C+1}, v{C}, v{C+1}
            v_cvt_pk_bf16_f32 v{C+2}, v{C}, v{C+1}
            v_and_b32 v{C}, 0xffff0000, v{C+2}
            v_sub_f32 v{C+1}, v{C+1}, v{C}
            v_cvt_pk_bf16_f32 v{C+3}, v{C+1}, 0
            v_mbcnt_lo_u32_b32 v{Q_EP}, -1, 0
            v_mbcnt_hi_u32_b32 v{Q_EP}, -1, v{Q_EP}
            v_lshlrev_b32 v{Q_EP}, 3, v{Q_EP}
            v_add_u32 v{Q_EP}, {LDS_CS}, v{Q_EP}
            s_lshl_b32 s{S_T1}, s{S_W}, 9
            v_add_u32 v{Q_EP+1}, s{S_T1}, v{Q_EP}
            """) + [Ins(f"ds_write_b64 v{Q_EP+1}, v[{C+2}:{C+3}]", "CSW")], g0, g0 + 14)
        if s == 8: sc.spread([f"v_accvgpr_write_b32 a{AP+4*a+2+i}, 0" for a in range(4) for i in range(2)] +
                             [f"v_mov_b32 v{Q_BP+i}, 0" for i in range(8)], g0, g0 + 8)
        if s == EPL: sc.fixed(g0 + 1, [Ins(f"buffer_load_dword v{V_PR}, v{Q_EP+2}, {S4(S_DBG)}, 0 offen sc1", "EPL")])
        if s == P1I:
            sc.before(g0, [Wait(vm=["EPL"]), f"v_readfirstlane_b32 s{S_EP}, v{V_PR}"])
            sc.fixed(g0 + 1, [poll_issue(0, S_T0, "P1")])
        if s == P1C:
            sc.before(g0, lambda p: poll_check(p, "SY1", 0, S_T0, "P1", S_T1))
            for b in range(2):
                sc.fixed(g0 + 1 + 2*b, [Ins(f"buffer_load_dwordx2 v[{Q_ST+2*b}:{Q_ST+2*b+1}], v{Q_EP+3}, {S4(S_FLG)}, s{S_T2} offen offset:{b*256}{SC}", "ST")])
        if s == 28:
            sc.before(g0, [Wait(vm=["ST"]), "s_mov_b32 exec_hi, 0"] +
                      [x for b in range(2) for x in (f"v_mov_b32 v{Q_BP+4*b}, v{Q_ST+2*b}", f"v_and_b32 v{Q_BP+4*b+1}, 0xffff, v{Q_ST+2*b}")] +
                      ["s_mov_b32 exec_hi, -1"] +
                      [x for b in range(2) for x in (f"v_mov_b32 v{Q_SC+2*b}, v{Q_ST+2*b+1}", f"v_mov_b32 v{Q_SC+2*b+1}, v{Q_ST+2*b+1}")])
    g0 = sc.add([mfma(vr(QACC(a, b), 16), ar(AP + 4*a, 4), vr(Q_BP + 4*b, 4), vr(QACC(a, b), 16)) for b in range(2) for a in range(4)])
    sc.before(g0, Wait(lg=["AP"]))
    for t in range(2 if OPT.get('early1') else 1, 8):
        for x in dma_x(t): sc.queue("X", x, max(0, 8*(4*(t - 3) + 3)), 8*(4*t - 1) - 60)
        for x in dma_q(t): sc.queue("W", x, max(0, 8*(4*(t - 4) + 3)), 8*(4*t - 1) - 64)
    for x in dma_kk(): sc.queue("KV", x, 8*19, 8*31 - 64)
    for i in range(2):
        for x in dma_d(i): sc.queue("KV", x, 8*23, 260)
    sc.fixed(OPT.get("pfg", 100), [Ins(f"buffer_load_dword v{V_PFD}, v227, {S4(S_WG)}, 0 offen", "PF")])
    sc.fixed(OPT.get("pfu", 190), [Ins(f"buffer_load_dword v{V_PFD}, v227, {S4(S_WU)}, 0 offen", "PF")])
    sc.emit(p)
    if sc.report: print("p1q late:", sc.report)
    p.e(f"s_lshl_b32 s{S_BT}, s{S_DT}, 12")

def qconv():
    out = []
    for k in range(64):
        b = (k >> 3) & 1
        out.append([f"v_pk_mul_f32 v[{2*k}:{2*k+1}], v[{2*k}:{2*k+1}], v[{Q_SC+2*b}:{Q_SC+2*b+1}]"])
        out.append([f"v_cvt_pk_bf16_f32 v{k}, v{2*k}, v{2*k+1}"])
    res = [out[0]]
    for k in range(64):
        if k + 1 < 64: res.append(out[2*(k+1)])
        res.append(out[2*k+1])
    return res

def qk_mf(par, first_c):
    mf = []
    for s in range(8):
        for b in range(2):
            d = vr(SB(par, b), 16)
            mf.append(mfma(d, ar(A_KF + 4*s, 4), vr(QF(b, s), 4), d if s else first_c(b)))
    return mf
def pv_mf(par):
    mf = []
    for u in range(2):
        for t in range(4):
            for b in range(2):
                d = ar(OACC(t, b), 16)
                mf.append(mfma(d, ar(A_VF + (u*4+t)*4, 4), vr(PB(par, b, u), 4), d))
    return mf
def softmax_items(par):
    out = []
    for u in range(2):
        for b in range(2):
            for i in range(0, 8, 2):
                r = SB(par, b) + 8*u + i
                out.append([f"v_exp_f32 v{r}, v{r}"])
                out.append([f"v_exp_f32 v{r+1}, v{r+1}"])
                if OPT.get("dot2"):
                    out.append(["s_nop 0"] if False else [f"v_cvt_pk_bf16_f32 v{PB(par,b,u)+i//2}, v{r}, v{r+1}"])
                    out.append([f"v_dot2c_f32_bf16 v{V_L+b}, s{S_ONES}, v{PB(par,b,u)+i//2}"])
                else:
                    out.append([f"v_add_f32 v{V_L+b}, v{V_L+b}, v{r}"])
                    out.append([f"v_add_f32 v{V_L+b}, v{V_L+b}, v{r+1}"])
                    out.append([f"v_cvt_pk_bf16_f32 v{PB(par,b,u)+i//2}, v{r}, v{r+1}"])
    if OPT.get("dot2"):
        e = [out[i:i+2] for i in range(0, 64, 4)]; c = [out[i+2:i+4] for i in range(0, 64, 4)]
        res = list(e[0])
        for k in range(16):
            if k + 1 < 16: res += e[k+1]
            else: res += [["s_nop 0"]]
            res += c[k]
        return res
    return out
HEAD, TAIL = 35, 10
def period(p, pp, qk=True, dma=True, kread=True, nexthead=True, last=False, extra=(), endvm=(), xds=()):
    par = pp & 1; sl = (pp % 4) * SLOT
    sm = softmax_items(par); smn = softmax_items(par ^ 1)
    negm = lambda b: vr(NEGM(b), 16)
    d = (dma_d(pp + 3) if dma else []) + list(extra)
    sc = Sched()
    if qk:
        sc.add(qk_mf(par ^ 1, negm))
        sc.spread(vreads(sl, "VF"), 0, 10); sc.spread(sm[HEAD:len(sm)-TAIL], 0, 16)
    else:
        for x in vreads(sl, "VF"): p.e(x)
        for x in sm[HEAD:len(sm)-TAIL]: p.e(x)
        p.e("s_nop 1")
    g0 = sc.add(pv_mf(par))
    sc.before(g0, Wait(lg=["VF"]))
    sc.spread(sm[len(sm)-TAIL:], g0, g0 + 3)
    if kread: sc.spread(kreads(sl + 8192, "KF"), g0 + 3, g0 + 12)
    if nexthead: sc.spread(smn[:HEAD], g0 + 3, g0 + 16)
    if xds: sc.spread(list(xds), g0 + 3, g0 + 12)
    n = len(sc.mf)
    for k, x in enumerate(d): sc.fixed(1 + (k * (n - 2)) // max(len(d), 1), x)
    sc.emit(p)
    if not last:
        p.e(Wait(vm=[f"D{(pp+1)%4}"] + list(endvm), lg=["KF"])); p.e("s_barrier")

def maxtree(p, par, dst, init=True):
    for b in range(2):
        s0 = SB(par, b)
        if init: p.e(f"v_max3_f32 v{dst+b}, v{s0}, v{s0+1}, v{s0+2}"); rest = list(range(3, 16))
        else: rest = list(range(16))
        while len(rest) >= 2:
            p.e(f"v_max3_f32 v{dst+b}, v{dst+b}, v{s0+rest[0]}, v{s0+rest[1]}"); rest = rest[2:]
        if rest: p.e(f"v_max_f32 v{dst+b}, v{dst+b}, v{s0+rest[0]}")
def negm_from(p, m):
    p.e(f"""
    v_mov_b32 v{m+2}, v{m}
    v_mov_b32 v{m+3}, v{m+1}
    s_nop 1
    v_permlane32_swap_b32 v{m}, v{m+2}
    v_permlane32_swap_b32 v{m+1}, v{m+3}
    v_max_f32 v{m}, v{m}, v{m+2}
    v_max_f32 v{m+1}, v{m+1}, v{m+3}
    """)
    for b in range(2):
        for i in range(16): p.e(f"v_sub_f32 v{NEGM(b)+i}, 0, v{m+b}")

def attention(p):
    T = V_T
    p.label("K2_ATT")
    p.e(Wait(lg=["KF"]))
    zero = [f"v_accvgpr_write_b32 a{i}, 0" for i in range(128)]
    sc = Sched(); sc.add(qk_mf(0, lambda b: "0")); sc.spread(zero, 0, 16)
    for k, x in enumerate(dma_d(2)): sc.fixed(1 + 4*k, x)
    sc.emit(p)
    for g in kreads_hi(KKSLOT + 8192, "KF", T + 8): p.e(g)
    p.e(f"v_mov_b32 v{V_L}, 0\nv_mov_b32 v{V_L+1}, 0\ns_add_u32 s{S_GM}, s{S_W2K}, {gslot(0)}")
    p.e(f"s_cmp_lg_u32 s{S_FLAG}, 0\ns_cbranch_scc1 K2_HAVEM")
    maxtree(p, 0, T)
    negm_from(p, T)
    p.label("K2_HAVEM")
    for b in range(2):
        for i in range(16): p.e(f"v_add_f32 v{SB(0,b)+i}, v{SB(0,b)+i}, v{NEGM(b)+i}")
    for x in softmax_items(0)[:HEAD]: p.e(x)
    p.e(Wait(vm=["D0"], lg=["KF"])); p.e("s_barrier")
    p.e(f"s_mov_b32 s{S_LOOP}, 0")
    stamp(p, 3)
    p.e(f"""
    s_lshr_b32 s{S_T0}, s2, 3
    s_lshl_b32 s{S_T0}, s{S_T0}, 2
    s_add_u32 s{S_T0}, s{S_T0}, s{S_W}
    s_and_b32 s{S_PF}, s2, 3
    s_lshl_b32 s{S_PF}, s{S_PF}, 7
    s_add_u32 s{S_PF}, s{S_PF}, s{S_T0}
    s_lshl_b32 s{S_PF}, s{S_PF}, 13
    s_lshl_b32 s{S_PFD}, s{S_T0}, 13
    """)
    pfo = [[Ins(f"buffer_load_dword v{V_PFD}, v{V_PFA}, {S4(S_WO)}, s{S_PF} offen", "PF")]]
    pfd = [[Ins(f"buffer_load_dword v{V_PFD}, v{V_PFA}, {S4(S_WD)}, s{S_PFD} offen", "PF"), f"s_xor_b32 s{S_PFD}, s{S_PFD}, 0x100000"]]
    period(p, 0)
    p.loop_begin()
    for i in range(1, 5): period(p, i, extra=dma_g("G") if i in (1, 3) else (pfo if i == 2 else pfd))
    p.loop_end("K2_LOOP", 3, [f"s_add_u32 s{S_LOOP}, s{S_LOOP}, 1", f"s_cmp_lt_u32 s{S_LOOP}, 3", "s_cbranch_scc1 K2_LOOP"])
    period(p, 13, dma=False, extra=bload(0, BR2, "C") + bload(1, BR2, "C") + bload(2, BR2, "C") + bload(3, BR2, "C"))
    g6 = dma_g("G6"); g6[0] = [f"s_mov_b32 s{S_GM}, s{S_W2K}"] + g6[0]
    period(p, 14, dma=False, kread=False, extra=g6 + dma_g("G7"), endvm=["G"])
    period(p, 15, qk=False, dma=False, kread=False, nexthead=False, last=True,
           extra=bload(4, BR2, "C") + bload(5, BR2, "C") + bload(6, BR2, "C") + bload(7, BR2, "C"), xds=areads_g(0))

V_LI = 48
def oepi_head(p):
    T = V_T
    p.e(f"""
    v_mov_b32 v{T}, v{V_L}
    v_mov_b32 v{T+1}, v{V_L+1}
    s_nop 1
    v_permlane32_swap_b32 v{V_L}, v{T}
    v_permlane32_swap_b32 v{V_L+1}, v{T+1}
    v_add_f32 v{V_L}, v{V_L}, v{T}
    v_add_f32 v{V_L+1}, v{V_L+1}, v{T+1}
    v_add_f32 v{T+1}, v{V_L}, v{V_L+1}
    s_mov_b32 s{S_T0}, 0x5d800000
    v_cmp_ngt_f32 vcc, s{S_T0}, v{T+1}
    s_nop 1
    s_cmp_lg_u64 vcc, 0
    s_cselect_b32 s{S_T1}, 1, 0
    v_mov_b32 v{T}, s{S_T1}
    v_mov_b32 v{T+1}, {LDS_FLAG}
    v_mov_b32 v{T+2}, s{S_W}
    v_lshl_add_u32 v{T+2}, v{T+2}, 2, v{T+1}
    ds_write_b32 v{T+2}, v{T}
    """)
    p.e(Wait(vm=["G7"])); p.e("s_waitcnt lgkmcnt(0)\ns_barrier")
    p.e(f"""
    ds_read_b128 v[{T+4}:{T+7}], v{T+1}
    s_add_u32 s{S_T2}, s{S_OOFF}, 4096
    s_waitcnt lgkmcnt(0)
    v_or_b32 v{T+4}, v{T+4}, v{T+5}
    v_or3_b32 v{T+4}, v{T+4}, v{T+6}, v{T+7}
    s_nop 0
    v_readfirstlane_b32 s{S_T1}, v{T+4}
    s_nop 0
    s_andn2_b32 s{S_T1}, s{S_T1}, s{S_FLAG}
    s_cmp_lg_u32 s{S_T1}, 0
    s_cbranch_scc1 K2_SLOW
    v_rcp_f32 v{V_LI}, v{V_L}
    v_rcp_f32 v{V_LI+2}, v{V_L+1}
    s_nop 0
    v_mov_b32 v{V_LI+1}, v{V_LI}
    v_mov_b32 v{V_LI+3}, v{V_LI+2}
    """)
def oepi_groups():
    out = []; k = 0
    for t in range(4):
        for b in range(2):
            for uu in range(2):
                o0 = OACC(t, b) + 8*uu
                tmp = (k % 4) * 8; pk = 32 + (k % 4) * 4; k += 1
                g = [f"v_accvgpr_read_b32 v{tmp+i}, a{o0+i}" for i in range(8)]
                g += [f"v_mul_f32 v{tmp+i}, v{tmp+i}, v{V_LI+2*b}" for i in range(8)]
                g += [f"v_cvt_pk_bf16_f32 v{pk+i//2}, v{tmp+i}, v{tmp+i+1}" for i in range(0, 8, 2)]
                off = (2*t + uu) * 1024
                so = S_OOFF if off < 4096 else S_T2
                g.append(Ins(f"buffer_store_dwordx4 v[{pk}:{pk+3}], v{V_ST0+b}, {S4(S_ACT)}, s{so} offen offset:{off % 4096}{SC}", "OST"))
                out.append(g)
    return out

def slowpath():
    p = Prog(); T = V_T
    p.label("K2_SLOW")
    p.e(f"""
    s_mov_b32 s{S_FLAG}, 1
    s_mov_b32 s{S_KT}, 0
    s_mov_b32 s{S_LOOP}, 0
    s_sub_u32 s{S_BT}, s{S_BT}, 8192
    s_and_b32 s{S_BT}, s{S_BT}, 0x7fff
    v_mov_b32 v{T}, 0xff800000
    v_mov_b32 v{T+1}, 0xff800000
    s_waitcnt vmcnt(0) lgkmcnt(0)
    """)
    p.loop_begin()
    p.e("s_barrier")
    for g in dma_k(8192, "X"): p.e(g)
    p.e("s_waitcnt vmcnt(0)\ns_barrier")
    for x in kreads(8192, "KF"): p.e(x)
    p.e("s_waitcnt lgkmcnt(0)")
    for x in qk_mf(0, lambda b: "0"): p.e(x)
    p.e("s_nop 11")
    maxtree(p, 0, T, init=False)
    p.loop_end("K2_SLOWL", 16, [f"s_add_u32 s{S_LOOP}, s{S_LOOP}, 1", f"s_cmp_lt_u32 s{S_LOOP}, 16", "s_cbranch_scc1 K2_SLOWL"])
    negm_from(p, T)
    p.e(f"s_barrier\ns_mov_b32 s{S_KT}, s{S_ROT2}\ns_mov_b32 s{S_VT}, s{S_ROT2}")
    for g in dma_kk(): p.e(g)
    for i in range(2):
        for g in dma_d(i): p.e(g)
    p.e("s_waitcnt vmcnt(0)\ns_barrier")
    for g in kreads_hi(KKSLOT, "KF", T + 8): p.e(g)
    p.e("s_branch K2_ATT")
    return p

def late_setup():
    T = V_T; VL = K_VL
    return lines(f"""
    v_mbcnt_lo_u32_b32 v{VL}, -1, 0
    v_mbcnt_hi_u32_b32 v{VL}, -1, v{VL}
    s_and_b32 s{K_KQ}, s2, 3
    s_bfe_u32 s{K_QD}, s2, 0x10005
    s_xor_b32 s{K_QD}, s{K_QD}, s{K_KQ}
    s_lshr_b32 s{S_T0}, s2, 3
    s_and_b32 s{K_CT}, s{S_T0}, 3
    s_lshr_b32 s{K_SR32}, s{S_T0}, 2
    s_lshl_b32 s{K_SR32}, s{K_SR32}, 2
    s_and_b32 s{S_T0}, s2, 4
    s_lshr_b32 s3, s2, 6
    s_add_u32 s3, s3, s{S_T0}
    s_lshl_b32 s3, s3, 7
    s_lshl_b32 s{S_T0}, s{S_T0}, 3
    s_add_u32 s{K_SR32}, s{K_SR32}, s{S_T0}
    v_lshlrev_b32 v{K_VL16}, 4, v{VL}
    v_and_b32 v{T}, 3, v{VL}
    v_bfe_u32 v{T+1}, v{VL}, 2, 1
    v_lshl_add_u32 v{T}, v{T}, 3, v{T+1}
    s_lshl_b32 s{S_T0}, s{K_KQ}, 1
    v_add_u32 v{T}, s{S_T0}, v{T}
    v_lshlrev_b32 v{V_FL2}, 2, v{T}
    v_lshrrev_b32 v{T}, 4, v{VL}
    v_and_b32 v{T+1}, 15, v{VL}
    v_lshlrev_b32 v{T+2}, 2, v{T}
    v_xor_b32 v{T+1}, v{T+1}, v{T+2}
    v_lshlrev_b32 v{T+1}, 4, v{T+1}
    v_lshl_add_u32 v{K_VSW}, v{T}, 10, v{T+1}
    s_lshl_b32 s{S_T0}, s{S_W}, 12
    s_lshl_b32 s{S_T1}, s{K_CT}, 8
    s_add_u32 s{S_T0}, s{S_T0}, s{S_T1}
    v_add_u32 v{K_VSW}, s{S_T0}, v{K_VSW}
    s_add_u32 s{S_T0}, s{K_SR32}, s{S_W}
    s_mul_i32 s{S_T0}, s{S_T0}, {ACT_KS*1024}
    v_add_u32 v{K_VSA}, s{S_T0}, v{K_VL16}
    s_lshl_b32 s{K_SSW}, s{K_KQ}, 20
    s_lshl_b32 s{K_SSA}, s{K_KQ}, 16
    v_lshrrev_b32 v{T}, 5, v{VL}
    v_bfe_u32 v{T+1}, v{VL}, 2, 2
    v_bfe_u32 v{T+2}, v{VL}, 4, 1
    v_and_b32 v{T+3}, 3, v{VL}
    v_and_b32 v{T+4}, 1, v{T+3}
    v_lshrrev_b32 v{T+5}, 1, v{T+3}
    v_lshl_add_u32 v{T+4}, v{T+4}, 1, v{T+5}
    v_lshlrev_b32 v{T+5}, 5, v{T+2}
    v_lshl_add_u32 v{T+4}, v{T+4}, 3, v{T+5}
    v_lshl_add_u32 v{T+5}, v{T}, 2, v{T+1}
    v_lshl_add_u32 v{T+6}, v{T+5}, 8, v{T+4}
    s_and_b32 s{S_T0}, s{S_W}, 1
    s_lshl_b32 s{S_T0}, s{S_T0}, 1
    v_xor_b32 v{T+7}, s{S_T0}, v{T+1}
    v_lshl_add_u32 v{K_VRA}, v{T+7}, 6, v{T+6}
    v_xor_b32 v{T+7}, 1, v{T+7}
    v_lshl_add_u32 v{K_VRA+1}, v{T+7}, 6, v{T+6}
    v_add_u32 v{K_VRA+2}, 0x10000, v{K_VRA}
    v_add_u32 v{K_VRA+3}, 0x10000, v{K_VRA+1}
    v_add_u32 v{K_VRA+4}, 0x20000, v{K_VRA}
    v_add_u32 v{K_VRA+5}, 0x20000, v{K_VRA+1}
    s_and_b32 s{S_T0}, s{S_W}, 2
    s_lshl_b32 s{S_T0}, s{S_T0}, 12
    v_add_u32 v{K_VRB}, s{S_T0}, v{K_VL16}
    v_add_u32 v{K_VRB+1}, 0x10000, v{K_VRB}
    v_add_u32 v{K_VRB+2}, 0x20000, v{K_VRB}
    s_lshl_b32 s{K_SLB}, s{S_W}, 14
    s_add_u32 s{K_SLB}, s{K_SLB}, 65536
    v_lshl_add_u32 v{T+6}, v{T+5}, 7, v{T+4}
    v_add_u32 v{T+6}, s{K_SLB}, v{T+6}
    v_lshrrev_b32 v{T+7}, 1, v{T+1}
    v_lshl_add_u32 v{K_VA0}, v{T+7}, 6, v{T+6}
    v_xor_b32 v{T+7}, 1, v{T+7}
    v_lshl_add_u32 v{K_VA0+1}, v{T+7}, 6, v{T+6}
    v_subrev_u32 v{K_VA2}, 0x10000, v{K_VA0}
    v_subrev_u32 v{K_VA2+1}, 0x10000, v{K_VA0+1}
    s_mul_i32 s{K_SWO}, s{S_W}, {28*16384}
    s_mul_i32 s{K_SA}, s{S_W}, {28*1024}
    s_add_u32 s{K_SA}, s{K_SA}, {256*1024}
    s_and_b32 s{S_T1}, s{K_QD}, 2
    s_add_u32 s{S_T1}, s{S_T1}, s{K_SR32}
    s_mul_i32 s{S_T0}, s{S_T1}, {ACT_KS*1024}
    v_add_u32 v{K_VB0}, s{S_T0}, v{K_VL16}
    v_add_u32 v{K_VB1}, {ACT_KS*1024}, v{K_VB0}
    s_lshr_b32 s{S_T0}, s{S_W}, 1
    s_add_u32 s{S_T0}, s{S_T0}, s{S_T1}
    s_lshl_b32 s{S_T0}, s{S_T0}, 15
    s_and_b32 s{S_T1}, s{S_W}, 1
    s_lshl_b32 s{S_T1}, s{S_T1}, 6
    s_add_u32 s{S_T0}, s{S_T0}, s{S_T1}
    s_lshl_b32 s{S_T1}, s{K_CT}, 8
    s_and_b32 s{K_SPO}, s{K_QD}, 1
    s_lshl_b32 s{K_SPO}, s{K_SPO}, 7
    s_add_u32 s{S_T1}, s{S_T1}, s{K_SPO}
    s_add_u32 s{S_T0}, s{S_T0}, s{S_T1}
    v_and_b32 v{T+6}, 31, v{VL}
    v_lshlrev_b32 v{T+6}, 10, v{T+6}
    v_lshl_add_u32 v{T+6}, v{T}, 4, v{T+6}
    v_add_u32 v{K_VX}, s{S_T0}, v{T+6}
    v_lshrrev_b32 v{T+6}, 3, v{VL}
    v_and_b32 v{T+7}, 7, v{VL}
    v_lshlrev_b32 v{T+5}, 2, v{T+2}
    v_xor_b32 v{T+7}, v{T+7}, v{T+5}
    v_lshlrev_b32 v{T+7}, 4, v{T+7}
    v_lshl_add_u32 v{K_VW0}, v{T+6}, 10, v{T+7}
    v_add_u32 v{K_VW0}, s{S_T1}, v{K_VW0}
    v_add_u32 v{K_VW1}, {8192-1024}, v{K_VW0}
    s_lshr_b32 s{S_T0}, s2, 2
    s_lshl_b32 s{K_SPO}, s{S_T0}, 7
    s_add_u32 s{K_SPO}, s{K_SPO}, 4096
    s_lshl_b32 s{S_T0}, s{S_T0}, 17
    s_lshl_b32 s{S_T1}, s{S_W}, 15
    s_add_u32 s{K_SST}, s{S_T0}, s{S_T1}
    s_lshl_b32 s{S_T1}, s{K_KQ}, 13
    s_add_u32 s{K_SST}, s{K_SST}, s{S_T1}
    s_lshl_b32 s{S_T1}, s{K_QD}, 15
    s_add_u32 s{S_T0}, s{S_T0}, s{S_T1}
    s_lshl_b32 s{S_T1}, s{S_W}, 11
    s_add_u32 s{K_SLD}, s{S_T0}, s{S_T1}
    """)
def ks_sw(g):
    return [[f"s_add_u32 m0, s{S_W1K}, {kslot(g)+st*4096}", "s_nop 0",
             Ins(f"buffer_load_dwordx4 v{K_VSW}, {S4(S_WO)}, s{K_SSW} offen lds", f"sw{g}"), f"s_add_u32 s{K_SSW}, s{K_SSW}, 16384"] for st in range(4)]
def ks_sa(g):
    out = [[f"s_add_u32 m0, s{S_W4K}, {kslot(g)+16384}", "s_nop 0",
            Ins(f"buffer_load_dwordx4 v{K_VSA}, {S4(S_ACT)}, s{K_SSA} offen offset:{st*1024}{SC} lds", f"sa{g}")] for st in range(4)]
    out[-1].append(f"s_add_u32 s{K_SSA}, s{K_SSA}, 4096")
    return out
def FA(i, nt): return (i % 3)*16 + nt*4
def FB(i, b): return (i % 3)*16 + 8 + b*4
def ks_rd(i):
    g, st = i // 4, i % 4
    sl = kslot(g); hi = sl // 65536; sl -= hi * 65536
    out = [Ins(f"ds_read_b64_tr_b16 {ar(FA(i,nt)+2*e,2)}, v{K_VRA+2*hi+nt} offset:{sl+st*4096+e*2048}", f"f{i}") for nt in range(2) for e in range(2)]
    out += [Ins(f"ds_read_b128 {ar(FB(i,b),4)}, v{K_VRB+hi} offset:{sl+16384+b*4096+st*1024}", f"f{i}") for b in range(2)]
    return out
def BR3(i, b): return 128 + (i % 14)*8 + b*4
def AB3(par, nt): return 240 + par*8 + nt*4
def kbo(i): return (i % 8) * 2048 - (65536 if (i % 16) >= 8 else 0)
def kb_wl(i):
    return [[f"s_add_u32 m0, s{K_SLB}, {kbo(i) & 0xffffffff}", "s_nop 0", Ins(f"buffer_load_dwordx4 v{K_VW0}, {S4(S_WD)}, s{K_SWO} offen lds", f"w{i}")],
            [f"s_add_u32 m0, s{K_SLB}, {kbo(i) & 0xffffffff}", "s_nop 0", Ins(f"buffer_load_dwordx4 v{K_VW1}, {S4(S_WD)}, s{K_SWO} offen offset:1024 lds", f"w{i}"),
             f"s_add_u32 s{K_SWO}, s{K_SWO}, 16384"]]
def kb_bl(i):
    return [[Ins(f"buffer_load_dwordx4 {ar(BR3(i,0),4)}, v{K_VB0}, {S4(S_ACT)}, s{K_SA} offen{SC}", f"b{i}")],
            [Ins(f"buffer_load_dwordx4 {ar(BR3(i,1),4)}, v{K_VB1}, {S4(S_ACT)}, s{K_SA} offen{SC}", f"b{i}"), f"s_add_u32 s{K_SA}, s{K_SA}, 1024"]]
def kb_rd(i):
    return [Ins(f"ds_read_b64_tr_b16 {ar(AB3(i&1,nt)+2*e,2)}, v{(K_VA0 if (i % 16) < 8 else K_VA2)+nt} offset:{(i%8)*2048+e*1024}", f"a{i}") for nt in range(2) for e in range(2)]

def hepi_groups():
    T = V_T; out = []; k = 0
    for t in range(2):
        for b in range(2):
            for uu in range(2):
                g0 = GACC(t, b) + 8*uu; u0 = GACC(t + 2, b) + 8*uu
                pk = u0; k += 1
                g = [f"v_pk_mul_f32 v[{g0+i}:{g0+i+1}], v[{g0+i}:{g0+i+1}], s[{S_NL2E}:{S_NL2E+1}]" for i in range(0, 8, 2)]
                g += [f"v_exp_f32 v{g0+i}, v{g0+i}" for i in range(8)]
                g += [f"v_add_f32 v{g0+i}, 1.0, v{g0+i}" for i in range(8)]
                g += [f"v_rcp_f32 v{g0+i}, v{g0+i}" for i in range(8)]
                g += ["s_nop 0"] + [f"v_pk_mul_f32 v[{g0+i}:{g0+i+1}], v[{g0+i}:{g0+i+1}], v[{u0+i}:{u0+i+1}]" for i in range(0, 8, 2)]
                g += [f"v_cvt_pk_bf16_f32 v{pk+i//2}, v{g0+i}, v{g0+i+1}" for i in range(0, 8, 2)]
                g.append(Ins(f"buffer_store_dwordx4 v[{pk}:{pk+3}], v{V_ST0+b}, {S4(S_ACT)}, s{S_HOFF} offen offset:{(2*t+uu)*1024}{SC}", "HST"))
                out.append(g)
    return out

class Sched2(Sched):
    def __init__(self, dense_from): Sched.__init__(self); self.dense = dense_from
    def _free(self, g):
        if g >= self.dense: return g not in self.vm
        return Sched._free(self, g)

def late(p):
    OSP = OPT.get("osp", 8); OBAR = OPT.get("obar", 18); HFIRST = OPT.get("hfirst", 4)
    HSP = OPT.get("hsp", 0); HBAR = OPT.get("hbar", 14); SYH = OPT.get("syh", 47)
    PSP = OPT.get("psp", 2); PFL = OPT.get("pfl", 14); PPI = OPT.get("ppi", 25)
    KS0, KB0 = 256, 512
    NSA0 = 5
    sc = Sched2(OPT.get("dense", KB0 - 8))
    FT = V_T + 18
    p.e("s_load_dwordx2 s[60:61], s[0:1], 88\ns_load_dwordx2 s[72:73], s[0:1], 72")
    for s in range(32):
        mf = []
        for a in range(4):
            for b in range(2):
                d = vr(GACC(a, b), 16)
                mf.append(mfma(d, ar(AB2(s & 1, a), 4), ar(BR2(s, b), 4), d if s else "0"))
        g0 = sc.add(mf)
        if s - 1 in (6, 14, 22, 30) or s - 1 == OBAR:
            vm = (["OST"] if s - 1 == OBAR else [])
            sc.before(g0, [Wait(vm=vm, lg=[f"AG{s}"]), "s_barrier"])
        sc.before(g0, Wait(vm=[f"C{s}"], lg=[f"AG{s}"]))
        if s % 4 == 0: sc.before(g0, lambda p, s=s: stamp(p, 1 + s // 4, 2))
        if s == 1: sc.before(g0, ["s_waitcnt lgkmcnt(0)"] + srd_l(S_PT, 60, 61, PART_BYTES, add=WS_PART) + srd_l(S_OUT, 72, 73, 2097152))
        if s == OBAR + 1: sc.fixed(g0, flag_store(1, FT, FT + 1))
        if s + 1 < 32: sc.spread(areads_g(s + 1), g0, g0 + 4)
        if s >= 8:
            for x in bload(s, BR2, "C"): sc.queue("C", x, max(0, 8*(s - 12) + 7), 8*s - 40)
    for k, grp in enumerate(oepi_groups()):
        e = 5 + OSP*k
        sc.spread(grp[:-1], max(0, e - OSP), e); sc.fixed(e, [grp[-1]])
    assert 5 + OSP*15 < 8*OBAR
    sc.spread(late_setup(), 8, 56)
    for i in range(64):
        g, st = i // 4, i % 4
        mf = []
        for b in range(2):
            for nt in range(2):
                d = vr((nt + 2*b) * 16, 16)
                mf.append(mfma(d, ar(FA(i, nt), 4), ar(FB(i, b), 4), "0" if i == 0 else d))
        g0 = sc.add(mf)
        if i == 0:
            def mid(p):
                stamp(p, 5); stamp(p, 9, 2)
                hg = [x[:-1] if HSP else x for x in hepi_groups()]
                p.e("s_nop 7")
                for k in range(HFIRST):
                    if k == HFIRST - OPT.get("hpoll", 2): p.e(poll_issue(1, K_SGO, "PO", V_FL2))
                    p.e(hg[k])
                stamp(p, 1, 3)
                poll_check(p, "SYO", 1, K_SGO, "PO", K_CNT, V_FL2)
                stamp(p, 6)
                vq = sum((ks_sa(g) for g in range(NSA0)), [])
                hs = sum(hg[HFIRST:], [])
                first = OPT.get("safirst", 4)
                for x in vq[:first]: p.e(x)
                vq = vq[first:]
                for k, x in enumerate(hs):
                    p.e(x)
                    if k % 10 == 5 and vq: p.e(vq.pop(0))
                for x in vq: p.e(x)
                p.e(Wait(vm=["sw0", "sa0"])); p.e("s_barrier")
                for x in ks_rd(0) + ks_rd(1): p.e(x)
            sc.before(g0, mid)
        if st == 2 and g + 1 < 16:
            sc.before(g0, [Wait(vm=[f"sw{g+1}", f"sa{g+1}"] + (["HST"] if i == HBAR else []), lg=[f"f{i+1}"]), "s_barrier"])
        if i == HBAR: sc.fixed(g0, flag_store(2, FT, FT + 1))
        if i == SYH - 5: sc.fixed(g0, [poll_issue(2, 3, "PH")])
        if i == SYH: sc.before(g0, lambda p: (stamp(p, 7), poll_check(p, "SYH", 2, 3, "PH", K_CNT)))
        sc.before(g0, Wait(lg=[f"f{i}"]))
        if i % 8 == 0: sc.before(g0, lambda p, i=i: stamp(p, 2 + i // 8, 3))
        if i + 2 < 64: sc.spread(ks_rd(i + 2), g0, g0 + 4)
        if i == 63: sc.spread([Wait(vm=["w0"])] + kb_rd(0), g0, g0 + 2)
    for g in range(16):
        free = {0: 56, 1: 56, 2: 120, 3: 184, 4: 248}.get(g, KS0 + 4*(4*(g - 5) + 2))
        need = 248 if g == 0 else KS0 + 4*(4*(g - 1) + 2)
        for x in ks_sw(g): sc.queue("sw", x, free, need - 40)
        if g >= NSA0:
            for x in ks_sa(g): sc.queue("sa", x, max(free, KS0), need - 44)
    if HSP:
        for k, grp in enumerate(hepi_groups()): sc.fixed(KS0 + 2 + HSP*k, [grp[-1]])
    assert 2 + HSP*7 < 4*HBAR
    for i in range(28):
        mf = []
        for b in range(2):
            for nt in range(2):
                d = vr(64 + (nt + 2*b) * 16, 16)
                mf.append(mfma(d, ar(AB3(i & 1, nt), 4), ar(BR3(i, b), 4), "0" if i == 0 else d))
        g0 = sc.add(mf)
        if i == 0: sc.before(g0, lambda p: (stamp(p, 8), stamp(p, 10, 3)))
        if i % 4 == 0: sc.before(g0, lambda p, i=i: stamp(p, 1 + i // 4, 4))
        if i + 1 < 28: sc.before(g0, [Wait(vm=[f"w{i+1}", f"b{i}"])] + kb_rd(i + 1))
        else: sc.before(g0, Wait(vm=[f"b{i}"]))
        if i == PFL:
            sc.before(g0, lines(f"""
            s_lshl_b32 s{S_FO}, s{S_W}, 4
            s_add_u32 s{S_FO}, s{S_FO}, s{K_SPO}
            s_lshl_b32 s{S_T0}, s{K_KQ}, 2
            s_add_u32 s{S_FO}, s{S_FO}, s{S_T0}
            s_lshl_b32 s{S_T0}, s{K_QD}, 4
            s_add_u32 s{K_SPO}, s{K_SPO}, s{S_T0}
            v_and_b32 v{V_FL}, 12, v{V_FL}
            """) + [Wait(vm=["PSS"])])
            sc.fixed(g0, flag_store(0, FT, FT + 1))
        if i == PPI: sc.fixed(g0, [poll_issue(0, K_SPO, "PP")])
        sc.before(g0, Wait(lg=[f"a{i}"]))
        if i == 0: sc.before(g0, "s_barrier")
        for x in kb_wl(i): sc.queue("w", x, KS0 + 4*50 if i < 8 else (KB0 if i < 16 else KB0 + 4*(i - 16)), KB0 + 4*(i - 1) - 40)
        for x in kb_bl(i): sc.queue("b", x, KS0 + 4*SYH if i < 14 else KB0 + 4*(i - 14) + 3, KB0 + 4*i - 40)
    for k in range(8):
        r = 8*k; pk = 128 + 4*k; e = KB0 + OPT.get('ps0', 6) + PSP*k
        grp = [f"v_cvt_pk_bf16_f32 v{pk+i}, v{r+2*i}, v{r+2*i+1}" for i in range(4)]
        if k == 4: grp.append(f"s_add_u32 s{K_SST}, s{K_SST}, 4096")
        sc.spread(grp, e - 2, e)
        sc.fixed(e, [Ins(f"buffer_store_dwordx4 v[{pk}:{pk+3}], v{K_VL16}, {S4(S_PT)}, s{K_SST} offen offset:{(k%4)*1024}{SC}", "PSS")])
    sc.queue("x", [Ins(f"buffer_load_dwordx4 v[176:179], v{K_VX}, {S4(S_X)}, 0 offen", "X")], KB0 + 64, 700)
    sc.queue("x", [Ins(f"buffer_load_dwordx4 v[180:183], v{K_VX}, {S4(S_X)}, 0 offen offset:32", "X")], KB0 + 64, 700)
    sc.emit(p)
    if sc.report: print("late:", len(sc.report), sc.report[:60])
    stamp(p, 9); stamp(p, 8, 4)
    T = V_T
    poll_check(p, "SYP", 0, K_SPO, "PP", K_CNT)
    stamp(p, 10)
    for src in range(4):
        p.e(f"buffer_load_dwordx4 v[{144+8*src}:{147+8*src}], v{K_VL16}, {S4(S_PT)}, s{K_SLD} offen{SC}", tag=f"PL{src}")
        p.e(f"buffer_load_dwordx4 v[{148+8*src}:{151+8*src}], v{K_VL16}, {S4(S_PT)}, s{K_SLD} offen offset:1024{SC}", tag=f"PL{src}")
        p.e(f"s_add_u32 s{K_SLD}, s{K_SLD}, 8192")
    p.e(f"""
    v_add_u32 v{T}, s{K_SLB}, v{K_VL16}
    s_add_u32 s{S_T0}, s{S_W4K}, 65536
    v_add_u32 v{T+1}, s{S_T0}, v{K_VL16}
    """)
    for order in range(16):
        r = 64 + 4*order
        p.e(f"ds_write_b128 v{T}, v[{r}:{r+3}] offset:{order*1024}")
    p.e("s_waitcnt lgkmcnt(0)\ns_barrier")
    for sw_ in range(4):
        for rg in range(4):
            d = 64 + sw_*16 + rg*4
            p.e(f"ds_read_b128 v[{d}:{d+3}], v{T+1} offset:{sw_*16384+rg*1024}", tag=f"R{sw_}")
    def pk(op, d, a, b): return f"v_pk_{op}_f32 v[{d}:{d+1}], v[{a}:{a+1}], {b}"
    for i in range(8): p.e(f"v_lshlrev_b32 v{48+2*i}, 16, v{176+i}\nv_and_b32 v{49+2*i}, 0xffff0000, v{176+i}")
    p.e(Wait(lg=["R1"]))
    for i in range(0, 16, 2): p.e(pk("add", 64+i, 64+i, f"v[{80+i}:{81+i}]"))
    p.e("s_waitcnt lgkmcnt(0)")
    for i in range(0, 16, 2): p.e(pk("add", 96+i, 96+i, f"v[{112+i}:{113+i}]"))
    for i in range(0, 16, 2): p.e(pk("add", 64+i, 64+i, f"v[{96+i}:{97+i}]"))
    for i in range(0, 16, 2): p.e(pk("mul", 16+i, 64+i, f"s[{S_NL2E}:{S_NL2E+1}]"))
    for i in range(16): p.e(f"v_exp_f32 v{16+i}, v{16+i}")
    for i in range(16): p.e(f"v_add_f32 v{16+i}, 1.0, v{16+i}")
    for i in range(16): p.e(f"v_rcp_f32 v{16+i}, v{16+i}")
    for i in range(0, 16, 2): p.e(pk("mul", 64+i, 64+i, f"v[{16+i}:{17+i}]"))
    for src in range(4):
        p.e(Wait(vm=[f"PL{src}"]))
        d = 0 if src == 0 else 16
        for i in range(8): p.e(f"v_lshlrev_b32 v{d+2*i}, 16, v{144+8*src+i}\nv_and_b32 v{d+2*i+1}, 0xffff0000, v{144+8*src+i}")
        if src:
            for i in range(0, 16, 2): p.e(pk("add", i, i, f"v[{16+i}:{17+i}]"))
    for i in range(0, 16, 2): p.e(f"v_pk_fma_f32 v[{i}:{i+1}], v[{i}:{i+1}], v[{64+i}:{65+i}], v[{48+i}:{49+i}]")
    for i in range(8): p.e(f"v_cvt_pk_bf16_f32 v{32+i}, v{2*i}, v{2*i+1}")
    p.e(f"""
    buffer_store_dwordx4 v[32:35], v{K_VX}, {S4(S_OUT)}, 0 offen{" sc1" if OPT.get("osc") else ""}
    buffer_store_dwordx4 v[36:39], v{K_VX}, {S4(S_OUT)}, 0 offen offset:32{" sc1" if OPT.get("osc") else ""}
    """)
    stamp(p, 11)

def gen():
    p = Prog()
    setup(p)
    layernorm(p)
    p1q(p)
    stamp(p, 2); stamp(p, 9, 1); stamp(p, 11, 5)
    srd(p, S_WO, 60, 61, 4096*1024)
    p.e("s_nop 7")
    for g in qconv(): p.e(g)
    attention(p)
    stamp(p, 4)
    oepi_head(p)
    late(p)
    stamp_flush(p, 12)
    p.label("K_END")
    p.e("s_endpgm")
    return p, slowpath()

KD = """.section .rodata,"a"
.p2align 6
.amdhsa_kernel {name}
  .amdhsa_next_free_vgpr 512
  .amdhsa_next_free_sgpr 102
  .amdhsa_accum_offset 256
  .amdhsa_group_segment_fixed_size 0
  .amdhsa_kernarg_size 96
  .amdhsa_user_sgpr_count 2
  .amdhsa_user_sgpr_kernarg_segment_ptr 1
  .amdhsa_system_sgpr_workgroup_id_x 1
.end_amdhsa_kernel
"""
HEADER = open("cdna_kernels/" + NAME + ".s.ref").read().split("; Override launch")[0]

def build(out):
    k, slow = gen()
    errs = []
    for nm, pr in (("k", k), ("slow", slow)):
        resolve(pr)
        errs += check(pr.trace(), nm)
        if nm == 'k': errs += check_tags(pr.trace())
    for e in errs[:40]: print("HAZARD", e)
    if errs: print(len(errs), "problems")
    nm = NAME + "_kernel"
    s = HEADER + f"; @launch grid=(256,1,1) block=(256,1,1) lds={LDS_TOTAL}\n"
    s += '.amdgcn_target "amdgcn-amd-amdhsa--gfx950"\n.text\n'
    s += f".globl {nm}\n.p2align 8\n.type {nm},@function\n{nm}:\n{k.text()}{slow.text()}CODE_END:\n"
    s += KD.format(name=nm)
    open(out, "w").write(s)
    return len(errs)

if __name__ == "__main__":
    out = sys.argv[1] if len(sys.argv) > 1 else "cdna_kernels/" + NAME + ".s"
    STAMPS = "stamps" in sys.argv[2:]
    for a in sys.argv[2:]:
        if "=" in a: OPT[a.split("=")[0]] = int(a.split("=")[1])
    if OPT.get("dot2"): HEAD, TAIL = 28, 9
    sys.exit(1 if build(out) else 0)
```

```python
import sys, struct, math
from asmlib import *

NAME = "recurrent_scan__sliding_block_cached__glu_gated_glu__prompt"
WS_XN = 0
XN_BYTES = 2 << 20
WS_FLG = 3 << 20
WS_ACT = 4 << 20
ACT_KS = 368
ACT_BYTES = 64 * ACT_KS * 1024
WS_PART = 32 << 20
PART_BYTES = 8 << 20
WS_DBG = 64 << 20
LOG2E = 1.4426950408889634
def f2u(x): return struct.unpack("<I", struct.pack("<f", x))[0]
QSCALE = f2u(LOG2E / math.sqrt(128.0))
STAMPS = False
OPT = {}
SC = " sc1"
def LSC(): return "" if OPT.get("plainld") else " sc1"

def vr(b, n=1): return f"v{b}" if n == 1 else f"v[{b}:{b+n-1}]"
def ar(b, n=1): return f"a{b}" if n == 1 else f"a[{b}:{b+n-1}]"
def S4(b): return f"s[{b}:{b+3}]"
def lines(s): return [x.strip() for x in s.strip().split("\n") if x.strip()]
def singles(l): return [[x] for x in l]

def srd_l(d, lo, hi, nbytes, add=None):
    out = [f"s_mov_b32 s{d}, s{lo}", f"s_mov_b32 s{d+1}, s{hi}"] if add is None else [f"s_add_u32 s{d}, s{lo}, {add}", f"s_addc_u32 s{d+1}, s{hi}, 0"]
    return out + [f"s_mov_b32 s{d+2}, {nbytes}", f"s_mov_b32 s{d+3}, 0x00020000"]
def srd(p, *a, **k): p.e(srd_l(*a, **k))

def stamp(p, k, ph=0):
    if OPT.get("ph", 0) != ph and k != 0: return
    if STAMPS: p.e(f"{'s_memtime' if OPT.get('cyc') else 's_memrealtime'} s[{76+2*k}:{77+2*k}]")
def stamp_flush(p, n):
    if not STAMPS: return
    if OPT.get("dbgst"):
        p.e(f"s_load_dwordx2 s[60:61], s[0:1], 80\ns_waitcnt lgkmcnt(0) vmcnt(0)\ns_cmp_lg_u32 s{S_W}, 0\ns_cbranch_scc1 K_END")
        srd(p, 4, 60, 61, 256)
        p.e("v_mov_b32 v0, 0\ns_mov_b64 exec, 1")
        for k in range(n):
            p.e(f"s_sub_u32 s3, s{76+2*k}, s{S_EP}\ns_add_u32 s3, s3, 100\nv_mov_b32 v2, s3\nbuffer_atomic_add v2, v0, s[4:7], 0 offen offset:{8+4*k} sc1\ns_nop 1")
            if k in (0, n - 1): p.e(f"buffer_atomic_umax v2, v0, s[4:7], 0 offen offset:{4 if k == 0 else 56} sc1\ns_nop 1")
        p.e("s_waitcnt vmcnt(0)")
        return
    p.e("s_load_dwordx2 s[60:61], s[0:1], 88\ns_waitcnt lgkmcnt(0) vmcnt(0)")
    srd(p, 4, 60, 61, 1 << 20, add=WS_DBG)
    p.e(f"s_lshl_b32 s3, s2, 8\ns_lshl_b32 s70, s{S_W}, 6\ns_add_u32 s3, s3, s70\nv_mov_b32 v0, 0")
    for k in range(n):
        p.e(f"v_mov_b32 v2, s{76+2*k}\nbuffer_store_dword v2, v0, s[4:7], s3 offen offset:{4*k}\ns_nop 1")
    p.e("s_waitcnt vmcnt(0)")

def mfma(d, a, b, c): return f"v_mfma_f32_32x32x16_bf16 {d}, {a}, {b}, {c}"

S_X = 4
S_WQ, S_WG, S_WU, S_XN, S_K, S_V, S_ACT = 8, 12, 16, 20, 24, 28, 32
S_WO, S_OUT, S_PT, S_WD = 8, 28, 24, 64
S_W, S_J, S_RB, S_W2K, S_W1K = 36, 37, 38, 39, 40
S_DT, S_DQ, S_GM, S_BT, S_KT, S_VT = 41, 42, 43, 44, 45, 46
S_LOOP, S_FLAG, S_ROT2 = 47, 48, 49
S_C0, S_NL2E = 50, 52
S_T0, S_T1, S_T2 = 54, 55, 56
S_HOFF, S_OOFF, S_PF = 57, 58, 59
S_EP, S_FO = 62, 63
S_FLG, S_DBG = 68, 72
S_W4K = 100
S_ONES = 51
S_PFD = 101
V_PFW = 251
K_SSW, K_SSA, K_SR32, K_CT, K_KQ, K_SPO, K_CNT, K_SST = 45, 46, 47, 48, 49, 50, 51, 59
K_SLD, K_SWO, K_SA, K_SLB = 72, 73, 74, 75
K_QD = 38
V_AQ, V_AG, V_OQ, V_OG, V_OB0, V_OB1 = 192, 200, 206, 207, 208, 209
V_K, V_V, V_OK0, V_OK1, V_OV, V_ST0, V_ST1 = 210, 218, 222, 223, 224, 225, 226
V_L = 228
V_T = 230
V_PFA, V_PFD, V_FL, V_PR = 252, 253, 254, 255
V_FL2 = 227
Q_XR, Q_OX, Q_CA, Q_CT, Q_CS, Q_ST, Q_BP, Q_EP, Q_SC = 128, 136, 138, 140, 156, 160, 164, 172, 176
S_XT, S_W8K = 44, 3
K_SGO = 3
K_VSW, K_VSA, K_VL16, K_VL, K_VRB, K_VX = 192, 193, 194, 195, 196, 199
K_VRA, K_VB0, K_VB1, K_VW0, K_VW1, K_VA0, K_VA2 = 210, 216, 217, 218, 219, 220, 222
def QACC(t, b): return (t*2 + b) * 16
def GACC(a, b): return 64 + (a*2 + b) * 16
A_KF, A_VF = 192, 224
def QF(b, s): return ((s >> 1)*2 + b)*8 + (s & 1)*4
def SB(par, b): return 64 + par*32 + b*16
def PB(par, b, u): return 128 + par*16 + b*8 + u*4
def NEGM(b): return 160 + b*16
def OACC(t, b): return (t*2 + b) * 16
SLOT = 16384
KKSLOT = 6 * SLOT
def wslot(t): return (6 + t % 4) * SLOT
def xslot(t): return ((t + 1) % 3) * 32768
LDS_CS = 7 * SLOT
def gslot(t): return (4 + t) * SLOT if t < 6 else (t - 6) * SLOT
def kslot(g): return ((g + 1) % 5) * 32768
LDS_LN = 0
LDS_FLAG = 3 * SLOT + 8192
LDS_TOTAL = 163840

def flag_store(sy, vd, vz, tag="FS"):
    return [f"v_mov_b32 v{vd}, s{S_EP}", f"v_mov_b32 v{vz}, 0", "s_mov_b64 exec, 1",
            Ins(f"buffer_store_dword v{vd}, v{vz}, {S4(S_FLG)}, s{S_FO} offen offset:{sy*1024} sc1", tag),
            "s_mov_b64 exec, -1"]
def poll_issue(sy, goff, tag, vfl=None):
    return Ins(f"buffer_load_dword v{V_PR}, v{vfl or V_FL}, {S4(S_FLG)}, s{goff} offen offset:{sy*1024} sc1", tag)
def poll_check(p, lbl, sy, goff, tag, cnt, vfl=None):
    p.e(Wait(vm=[tag]))
    p.e(f"v_cmp_ne_u32 vcc, s{S_EP}, v{V_PR}\ns_mov_b32 s{cnt}, 0\ns_cbranch_vccz {lbl}_OK")
    p.label(f"{lbl}_P")
    p.e("s_sleep 2")
    p.e(poll_issue(sy, goff, "OPT_POLL", vfl))
    p.e(f"""
    s_add_u32 s{cnt}, s{cnt}, 1
    s_waitcnt vmcnt(0)
    v_cmp_ne_u32 vcc, s{S_EP}, v{V_PR}
    s_cmp_gt_u32 s{cnt}, 0x40000
    s_cbranch_scc1 {lbl}_OK
    s_cbranch_vccnz {lbl}_P
    """)
    p.label(f"{lbl}_OK")

def setup(p):
    T = V_T; L = T + 1
    p.e("s_cmp_ge_u32 s2, 256\ns_cbranch_scc1 K_END")
    p.e("s_load_dwordx8 s[60:67], s[0:1], 0\ns_load_dwordx4 s[68:71], s[0:1], 48\ns_load_dwordx4 s[72:75], s[0:1], 80")
    stamp(p, 0)
    p.e("s_getpc_b64 s[42:43]")
    p.label("CODE0")
    p.e(f"v_lshlrev_b32 v1, 7, v0\nv_add_u32 v2, 32768, v1\nv_min_u32 v2, CODE_END-CODE0-4, v2")
    def cpf():
        p.e(f"global_load_dword v{V_PFD}, v1, s[42:43]", tag="PF")
        p.e(f"global_load_dword v{V_PFD}, v2, s[42:43]", tag="PF")
    if OPT.get("cpf", 1) == 1: cpf()
    p.e(f"""
    v_lshrrev_b32 v{T}, 6, v0
    v_and_b32 v{L}, 63, v0
    v_and_b32 v3, 7, v{L}
    v_readfirstlane_b32 s{S_W}, v{T}
    v_lshrrev_b32 v4, 3, v{L}
    v_lshlrev_b32 v5, 10, v3
    v_lshl_add_u32 v5, v4, 4, v5
    v_lshl_add_u32 v5, v{T}, 8, v5
    s_lshl_b32 s3, s2, 13
    s_and_b32 s{S_T0}, s2, 7
    s_lshr_b32 s{S_T1}, s2, 3
    s_and_b32 s{S_T1}, s{S_T1}, 3
    s_lshr_b32 s{S_RB}, s2, 5
    s_lshl_b32 s{S_J}, s{S_T0}, 2
    s_add_u32 s{S_J}, s{S_J}, s{S_T1}
    s_lshl_b32 s{S_W2K}, s{S_W}, 11
    s_lshl_b32 s{S_W1K}, s{S_W}, 10
    s_lshl_b32 s{S_W4K}, s{S_W}, 12
    s_lshl_b32 s{S_DT}, s{S_T1}, 1
    s_add_u32 s{S_DT}, s{S_DT}, s{S_RB}
    s_and_b32 s{S_DT}, s{S_DT}, {OPT.get('rotm', 7)}
    s_lshl_b32 s{S_ROT2}, s{S_RB}, 2
    s_add_u32 s{S_ROT2}, s{S_ROT2}, s{S_T1}
    s_lshr_b32 s{S_ROT2}, s{S_ROT2}, 1
    s_lshl_b32 s{S_ROT2}, s{S_ROT2}, 13
    s_waitcnt lgkmcnt(0)
    """)
    stamp(p, 1, 5)
    srd(p, S_X, 60, 61, 2097152)
    p.e(f"buffer_load_dwordx4 v[8:11], v5, {S4(S_X)}, s3 offen", tag="X")
    p.e(f"buffer_load_dwordx4 v[12:15], v5, {S4(S_X)}, s3 offen offset:128", tag="X")
    srd(p, S_XN, 74, 75, XN_BYTES, add=WS_XN)
    srd(p, S_ACT, 74, 75, ACT_BYTES, add=WS_ACT)
    p.e(f"s_add_u32 s{S_KT}, s74, {WS_FLG}\ns_addc_u32 s{S_VT}, s75, 0")
    p.e(f"s_mov_b32 s{S_DBG+2}, 256\ns_mov_b32 s{S_DBG+3}, 0x00020000")
    p.e(f"s_lshl_b32 s{S_T1}, s{S_T0}, 19\ns_add_u32 s{S_T1}, s{S_T1}, {1536*256}")
    srd(p, S_K, 62, 63, 131072, add=f"s{S_T1}")
    srd(p, S_V, 64, 65, 131072, add=f"s{S_T1}")
    p.e(f"""
    s_memrealtime s[60:61]
    s_lshl_b32 s{S_FO}, s2, 2
    v_and_b32 v{V_FL}, 31, v{L}
    v_lshlrev_b32 v{V_FL}, 2, v{V_FL}
    v_mov_b32 v{Q_EP+1}, 0
    v_mov_b32 v{Q_EP+2}, 0
    s_waitcnt lgkmcnt(0)
    s_or_b32 s{S_EP}, s60, 1
    v_mov_b32 v{Q_EP}, s{S_EP}
    s_cmp_lg_u32 s{S_W}, 0
    s_cbranch_scc1 NOEP
    s_mov_b64 exec, 1
    """)
    p.e(f"buffer_atomic_cmpswap v[{Q_EP}:{Q_EP+1}], v{Q_EP+2}, {S4(S_DBG)}, 0 offen sc0 sc1", tag="EP")
    p.e("s_mov_b64 exec, -1\ns_branch EPD")
    p.label("NOEP")
    p.e(f"buffer_load_dword v{V_PFD}, v{Q_EP+2}, {S4(S_K)}, 0 offen", tag="OPT_PF")
    p.label("EPD")
    p.e(f"""
    v_lshrrev_b32 v{T+2}, 4, v{L}
    v_and_b32 v{T+3}, 15, v{L}
    v_lshlrev_b32 v{T+4}, 2, v{T+2}
    v_xor_b32 v{T+4}, v{T+3}, v{T+4}
    v_lshlrev_b32 v{T+4}, 4, v{T+4}
    v_lshl_add_u32 v{T+5}, v{T}, 4, v{T+2}
    v_lshl_add_u32 v{V_OQ}, v{T+5}, 13, v{T+4}
    s_lshl_b32 s{S_T1}, s{S_J}, 8
    s_sub_u32 s{S_T2}, {4194304}, s{S_T1}
    """)
    srd(p, S_WQ, 66, 67, f"s{S_T2}", add=f"s{S_T1}")
    p.e(f"""
    v_lshrrev_b32 v{T+6}, 1, v4
    v_xor_b32 v{T+7}, v3, v{T+6}
    v_lshlrev_b32 v{T+7}, 4, v{T+7}
    v_lshl_add_u32 v{Q_OX}, v4, 10, v{T+7}
    s_lshl_b32 s{S_T1}, s{S_RB}, 18
    s_lshl_b32 s{S_T2}, s{S_W}, 16
    s_add_u32 s{S_T1}, s{S_T1}, s{S_T2}
    v_add_u32 v{Q_OX}, s{S_T1}, v{Q_OX}
    v_xor_b32 v{Q_OX+1}, 64, v{Q_OX}
    s_lshl_b32 s{S_XT}, s{S_DT}, 7
    s_lshl_b32 s{S_PF}, s{S_W}, 13
    """)
    p.mark0 = len(p.cur)
    p.e(f"""
    s_lshr_b32 s{S_HOFF}, s{S_T0}, 1
    s_mul_i32 s{S_HOFF}, s{S_HOFF}, 7
    s_and_b32 s{S_T1}, s{S_J}, 7
    s_add_u32 s{S_HOFF}, s{S_HOFF}, s{S_T1}
    s_cmp_eq_u32 s{S_T1}, 7
    s_cselect_b32 s{S_OOFF}, 1, 0
    s_lshl_b32 s{S_T1}, s{S_HOFF}, 7
    s_sub_u32 s{S_T2}, {512*3584}, s{S_T1}
    s_cmp_lg_u32 s{S_OOFF}, 0
    s_cselect_b32 s{S_T2}, 0, s{S_T2}
    """)
    srd(p, S_WG, 68, 69, f"s{S_T2}", add=f"s{S_T1}")
    srd(p, S_WU, 70, 71, f"s{S_T2}", add=f"s{S_T1}")
    srd(p, S_FLG, S_KT, S_VT, 32768)
    p.e(f"""
    v_and_b32 v{T+7}, 7, v{L}
    v_and_b32 v{T+8}, 1, v{T+2}
    v_lshlrev_b32 v{T+8}, 2, v{T+8}
    v_xor_b32 v{T+7}, v{T+7}, v{T+8}
    v_lshlrev_b32 v{T+7}, 4, v{T+7}
    v_lshl_add_u32 v{T+6}, v{T}, 4, v4
    v_mul_u32_u24 v{T+6}, 3584, v{T+6}
    v_add_u32 v{V_OG}, v{T+6}, v{T+7}
    s_mov_b32 s{S_C0}, 0x{QSCALE:08x}
    s_mov_b32 s{S_NL2E}, 0x{f2u(-LOG2E):08x}
    s_mov_b32 s{S_NL2E+1}, 0x{f2u(-LOG2E):08x}
    s_mov_b32 s{S_FLAG}, 0
    s_mov_b32 s{S_KT}, s{S_ROT2}
    s_mov_b32 s{S_VT}, s{S_ROT2}
    v_lshl_add_u32 v{T+5}, v{T}, 3, v{T+2}
    v_lshl_add_u32 v{V_OV}, v{T+5}, 8, v{T+4}
    v_xor_b32 v{T+6}, v{T+3}, v{T+5}
    v_and_b32 v{T+6}, 15, v{T+6}
    v_lshlrev_b32 v{T+6}, 4, v{T+6}
    v_lshl_add_u32 v{V_OK0}, v{T+5}, 8, v{T+6}
    v_add_u32 v{T+7}, 4, v{T+5}
    v_xor_b32 v{T+6}, v{T+3}, v{T+7}
    v_and_b32 v{T+6}, 15, v{T+6}
    v_lshlrev_b32 v{T+6}, 4, v{T+6}
    v_lshl_add_u32 v{V_OK1}, v{T+5}, 8, v{T+6}
    s_lshl_b32 s{S_T2}, s{S_RB}, 3
    s_lshl_b32 s{S_T1}, s{S_W}, 1
    s_add_u32 s{S_T2}, s{S_T2}, s{S_T1}
    s_lshl_b32 s{S_T1}, s{S_T2}, 15
    v_lshlrev_b32 v{T+6}, 4, v{L}
    v_add_u32 v{V_OB0}, s{S_T1}, v{T+6}
    v_add_u32 v{V_OB1}, 32768, v{V_OB0}
    s_mul_i32 s{S_T1}, s{S_T2}, {ACT_KS*1024}
    v_add_u32 v{V_ST0}, s{S_T1}, v{T+6}
    v_add_u32 v{V_ST1}, {ACT_KS*1024}, v{V_ST0}
    v_lshlrev_b32 v{V_PFA}, 7, v{L}
    s_lshl_b32 s{S_HOFF}, s{S_HOFF}, 12
    s_add_u32 s{S_HOFF}, s{S_HOFF}, {256*1024}
    s_cmp_lg_u32 s{S_OOFF}, 0
    s_cselect_b32 s{S_HOFF}, 0x40000000, s{S_HOFF}
    s_lshl_b32 s{S_OOFF}, s{S_J}, 13
    {"s_mov_b32 s%d, 0x40000000" % S_OOFF if OPT.get("nost") else ""}
    {"s_mov_b32 s%d, 0x40000000" % S_HOFF if OPT.get("nost") else ""}
    v_lshrrev_b32 v6, 1, v4
    v_lshlrev_b32 v6, 10, v6
    v_and_b32 v7, 1, v4
    v_lshl_add_u32 v6, v7, 9, v6
    v_lshl_add_u32 v6, v3, 4, v6
    v_lshl_add_u32 v6, v{T}, 13, v6
    v_add_u32 v17, 4096, v6
    v_lshlrev_b32 v16, 4, v3
    v_add_u32 v16, {LDS_LN}, v16
    v_lshl_add_u32 v7, v{T}, 2, v16
    s_lshl_b32 s{S_T1}, s{S_RB}, 6
    v_add_u32 v227, s{S_T1}, v{L}
    v_mul_u32_u24 v227, 3584, v227
    """)
    lds_addrs(p)

def lds_addrs(p):
    T = V_T; L = T + 1
    p.e(f"""
    v_lshrrev_b32 v{T+2}, 5, v{L}
    v_bfe_u32 v{T+3}, v{L}, 4, 1
    v_bfe_u32 v{T+4}, v{L}, 2, 2
    v_and_b32 v{T+5}, 3, v{L}
    v_and_b32 v{T+6}, 1, v{T+5}
    v_lshrrev_b32 v{T+7}, 1, v{T+5}
    v_lshl_add_u32 v{T+6}, v{T+6}, 1, v{T+7}
    v_lshlrev_b32 v{T+7}, 5, v{T+3}
    v_lshl_add_u32 v{T+8}, v{T+6}, 3, v{T+7}
    v_lshl_add_u32 v{T+9}, v{T+5}, 3, v{T+7}
    v_lshl_add_u32 v{T+10}, v{T+2}, 3, v{T+4}
    v_lshl_add_u32 v{T+11}, v{T+2}, 2, v{T+4}
    """)
    for t in range(4):
        p.e(f"""
        v_xor_b32 v{T+12}, {t}, v{T+4}
        v_lshlrev_b32 v{T+12}, 6, v{T+12}
        v_lshl_add_u32 v{T+13}, v{T+10}, 8, v{T+12}
        v_add_u32 v{V_AQ+t}, v{T+13}, v{T+8}
        v_add_u32 v{V_AQ+4+t}, 0x20000, v{V_AQ+t}
        v_add_u32 v{V_AQ+t}, 0x10000, v{V_AQ+t}
        v_lshl_add_u32 v{T+13}, v{T+11}, 8, v{T+12}
        v_add_u32 v{V_V+t}, v{T+13}, v{T+9}
        """)
    p.e(f"""
    v_xor_b32 v{T+12}, s{S_W}, v{T+4}
    v_lshlrev_b32 v{T+12}, 6, v{T+12}
    v_lshl_add_u32 v{T+13}, v{T+10}, 8, v{T+12}
    v_add_u32 v{T+13}, v{T+13}, v{T+8}
    v_add_u32 v{Q_CA}, 0x10000, v{T+13}
    v_add_u32 v{Q_CA+1}, 0x20000, v{T+13}
    v_and_b32 v{T+12}, 31, v{L}
    v_bfe_u32 v{T+13}, v{L}, 1, 3
    v_lshlrev_b32 v{T+12}, 7, v{T+12}
    v_add_u32 v{T+12}, s{S_PF}, v{T+12}
    """)
    for u in range(4):
        p.e(f"""
        v_add_u32 v{T+14}, {2*u}, v{T+2}
        v_xor_b32 v{T+14}, v{T+14}, v{T+13}
        v_lshl_add_u32 v{Q_XR+u}, v{T+14}, 4, v{T+12}
        v_add_u32 v{Q_XR+4+u}, 0x10000, v{Q_XR+u}
        """)
    p.e(f"v_lshrrev_b32 v{T+14}, 1, v{T+4}")
    for t in range(2):
        p.e(f"""
        v_xor_b32 v{T+12}, {t}, v{T+14}
        v_lshlrev_b32 v{T+12}, 6, v{T+12}
        v_lshl_add_u32 v{T+13}, v{T+10}, 7, v{T+12}
        v_add_u32 v{V_AG+t}, v{T+13}, v{T+9}
        v_add_u32 v{V_AG+2+t}, 0x10000, v{V_AG+t}
        v_add_u32 v{V_AG+4+t}, 0x20000, v{V_AG+t}
        """)
    p.e(f"v_and_b32 v{T+12}, 31, v{L}\nv_and_b32 v{T+13}, 15, v{L}")
    for s in range(8):
        p.e(f"""
        v_add_u32 v{T+14}, {2*s}, v{T+2}
        v_xor_b32 v{T+14}, v{T+14}, v{T+13}
        v_lshlrev_b32 v{T+14}, 4, v{T+14}
        v_lshl_add_u32 v{V_K+s}, v{T+12}, 8, v{T+14}
        """)

NW0 = 2
def layernorm(p):
    p.e(f"""
    s_lshr_b32 s{S_T1}, s2, 2
    s_lshl_b32 s{S_T1}, s{S_T1}, 15
    s_and_b32 s{S_T2}, s2, 3
    s_lshl_b32 s{S_T2}, s{S_T2}, 7
    s_add_u32 s3, s{S_T1}, s{S_T2}
    s_mov_b32 s{S_T0}, 0x3b000000
    """)
    stamp(p, 3, 5)
    p.e(Wait(vm=["X"]))
    stamp(p, 4, 5)
    for i in range(8):
        p.e(f"v_lshlrev_b32 v{20+2*i}, 16, v{8+i}\nv_and_b32 v{21+2*i}, 0xffff0000, v{8+i}")
    def reduce(src, off):
        p.e(f"""
        s_nop 1
        v_add_f32_dpp v{src}, v{src}, v{src} row_ror:8 row_mask:0xf bank_mask:0xf
        v_mov_b32 v41, v{src}
        s_nop 1
        v_permlane16_swap_b32 v{src}, v41
        v_add_f32 v{src}, v{src}, v41
        v_mov_b32 v41, v{src}
        s_nop 1
        v_permlane32_swap_b32 v{src}, v41
        v_add_f32 v{src}, v{src}, v41
        ds_write_b32 v7, v{src} offset:{off}
        s_waitcnt lgkmcnt(0)
        s_barrier
        ds_read_b128 v[44:47], v16 offset:{off}
        s_waitcnt lgkmcnt(0)
        v_add_f32 v44, v44, v45
        v_add_f32 v46, v46, v47
        v_add_f32 v40, v44, v46
        """)
    p.e("v_add_f32 v36, v20, v21\nv_add_f32 v37, v22, v23")
    for i in range(2, 8, 2):
        p.e(f"v_add_f32 v36, v36, v{20+2*i}\nv_add_f32 v37, v37, v{21+2*i}\nv_add_f32 v36, v36, v{22+2*i}\nv_add_f32 v37, v37, v{23+2*i}")
    p.e("v_add_f32 v36, v36, v37")
    reduce(36, 0)
    p.e(f"v_mul_f32 v48, s{S_T0}, v40")
    p.e("v_mov_b32 v36, 0\nv_mov_b32 v37, 0")
    for i in range(8):
        p.e(f"v_sub_f32 v38, v{20+2*i}, v48\nv_sub_f32 v39, v{21+2*i}, v48\nv_fmac_f32 v36, v38, v38\nv_fmac_f32 v37, v39, v39")
    p.e("v_add_f32 v36, v36, v37")
    reduce(36, 128)
    p.e(f"""
    v_mul_f32 v49, s{S_T0}, v40
    v_cvt_pk_bf16_f32 v49, v49, v49
    v_and_b32 v49, 0xffff0000, v49
    v_add_f32 v49, 0x{f2u(1e-5):08x}, v49
    v_cvt_pk_bf16_f32 v49, v49, v49
    v_and_b32 v49, 0xffff0000, v49
    v_sqrt_f32 v49, v49
    v_cvt_pk_bf16_f32 v48, v48, v48
    v_cvt_pk_bf16_f32 v49, v49, v49
    v_and_b32 v48, 0xffff0000, v48
    v_and_b32 v49, 0xffff0000, v49
    v_rcp_f32 v49, v49
    """)
    for i in range(8):
        a, b = 20 + 2*i, 21 + 2*i
        p.e(f"""
        v_sub_f32 v{a}, v{a}, v48
        v_sub_f32 v{b}, v{b}, v48
        v_cvt_pk_bf16_f32 v38, v{a}, v{b}
        v_lshlrev_b32 v{a}, 16, v38
        v_and_b32 v{b}, 0xffff0000, v38
        v_mul_f32 v{a}, v{a}, v49
        v_mul_f32 v{b}, v{b}, v49
        v_cvt_pk_bf16_f32 v{8+i}, v{a}, v{b}
        """)
        if i == 3: p.e(f"buffer_store_dwordx4 v[8:11], v6, {S4(S_XN)}, s3 offen{SC}")
    p.e(f"buffer_store_dwordx4 v[12:15], v17, {S4(S_XN)}, s3 offen{SC}")
    p.e(f"""
    v_xor_b32 v56, 0x80000000, v48
    v_lshrrev_b32 v57, 16, v56
    v_or_b32 v56, v56, v57
    v_mul_f32 v57, s{S_C0}, v49
    v_lshlrev_b32 v58, 3, v3
    s_lshl_b32 s{S_T1}, s2, 6
    s_add_u32 s{S_T1}, s{S_T1}, 16384
    s_mov_b64 exec, 0xff
    """)
    p.e(f"buffer_store_dwordx2 v[56:57], v58, {S4(S_FLG)}, s{S_T1} offen{SC}", tag="XST")
    p.e("s_mov_b64 exec, -1")
    p.e("s_load_dwordx2 s[60:61], s[0:1], 32\ns_load_dwordx2 s[64:65], s[0:1], 64")
    stamp(p, 5, 5)
    w0, x0, w1, x1 = dma_q(0), dma_x(0), dma_q(1), dma_x(1)
    groups = [w0[0], x0[0], x0[4], w0[1], x0[1], x0[5], w0[2], x0[2], x0[6], w0[3], x0[3], x0[7]]
    if OPT.get("early1", 0) == 0: pass
    else: groups += x1 + w1
    body = p.cur[p.mark0:]; del p.cur[p.mark0:]
    every = OPT.get("every", 20); cnt = every; f0 = OPT.get("f0", 3)
    for _ in range(f0): p.e(groups.pop(0))
    for k, ins in enumerate(body):
        p.cur.append(ins); cnt -= 1
        nxt = body[k + 1].t if k + 1 < len(body) else ""
        if cnt <= 0 and groups and ins.t.startswith("v_") and nxt.startswith("v_") and "exec" not in body[k - 1].t and "exec" not in body[k-2].t:
            p.e(groups.pop(0)); cnt = every
    for x in groups: p.e(x)
    stamp(p, 6, 5)

def dma_q(t):
    tag = f"W{t}"; g = []
    for ii in range(4):
        pre = [f"s_lshl_b32 s{S_DQ}, s{S_DT}, 19", f"s_add_u32 m0, s{S_W4K}, {wslot(t)}", f"s_add_u32 s{S_DT}, s{S_DT}, 1"] if ii == 0 else \
              [f"s_add_u32 m0, s{S_W4K}, {wslot(t)}", f"s_add_u32 s{S_DQ}, s{S_DQ}, {32768-1024}"]
        g.append(pre + [Ins(f"buffer_load_dwordx4 v{V_OQ}, {S4(S_WQ)}, s{S_DQ} offen offset:{ii*1024} lds", tag)])
    g[-1].append(f"s_and_b32 s{S_DT}, s{S_DT}, 7")
    return g
def dma_x(t):
    g = []
    for ii in range(8):
        g.append([f"s_add_u32 m0, s{S_PF}, {xslot(t)+ii*1024}", f"s_add_u32 s{S_GM}, s{S_XT}, {ii*8192}",
                  Ins(f"buffer_load_dwordx4 v{Q_OX+(ii&1)}, {S4(S_X)}, s{S_GM} offen lds", f"X{t}")])
    g[-1] += [f"s_add_u32 s{S_XT}, s{S_XT}, 128", f"s_and_b32 s{S_XT}, s{S_XT}, 0x3ff"]
    return g
def dma_g(tag):
    return [[f"s_mul_i32 s{S_DQ}, s{S_DT}, {64*3584}", f"s_mov_b32 m0, s{S_GM}", f"s_add_u32 s{S_DT}, s{S_DT}, 1",
             Ins(f"buffer_load_dwordx4 v{V_OG}, {S4(S_WG)}, s{S_DQ} offen lds", tag)],
            [f"s_add_u32 m0, s{S_GM}, 8192", f"s_and_b32 s{S_DT}, s{S_DT}, 7",
             Ins(f"buffer_load_dwordx4 v{V_OG}, {S4(S_WU)}, s{S_DQ} offen lds", tag)],
            [f"s_add_u32 m0, s{S_GM}, 8192", f"s_add_u32 s{S_DQ}, s{S_DQ}, {8*3584-1024}",
             Ins(f"buffer_load_dwordx4 v{V_OG}, {S4(S_WU)}, s{S_DQ} offen offset:1024 lds", tag)],
            [f"s_mov_b32 m0, s{S_GM}", f"s_add_u32 s{S_GM}, s{S_GM}, {SLOT}",
             Ins(f"buffer_load_dwordx4 v{V_OG}, {S4(S_WG)}, s{S_DQ} offen offset:1024 lds", tag)]]
def dma_k(ldsoff, tag):
    return [[f"s_add_u32 m0, s{S_W2K}, {ldsoff}", f"s_nop 0",
             Ins(f"buffer_load_dwordx4 v{V_OK0}, {S4(S_K)}, s{S_KT} offen lds", tag)],
            [f"s_add_u32 m0, s{S_W2K}, {ldsoff}", f"s_nop 0",
             Ins(f"buffer_load_dwordx4 v{V_OK1}, {S4(S_K)}, s{S_KT} offen offset:1024 lds", tag),
             f"s_add_u32 s{S_KT}, s{S_KT}, 8192", f"s_and_b32 s{S_KT}, s{S_KT}, 0x1ffff"]]
def dma_v(ldsoff, tag):
    return [[f"s_add_u32 m0, s{S_W2K}, {ldsoff}", f"s_nop 0",
             Ins(f"buffer_load_dwordx4 v{V_OV}, {S4(S_V)}, s{S_VT} offen lds", tag)],
            [f"s_add_u32 m0, s{S_W2K}, {ldsoff}", f"s_nop 0",
             Ins(f"buffer_load_dwordx4 v{V_OV}, {S4(S_V)}, s{S_VT} offen offset:1024 lds", tag),
             f"s_add_u32 s{S_VT}, s{S_VT}, 8192", f"s_and_b32 s{S_VT}, s{S_VT}, 0x1ffff"]]
def dma_d(pp):
    sl = (pp % 4) * SLOT; tag = f"D{pp%4}"
    return dma_v(sl, tag) + dma_k(sl + 8192, tag)
def dma_kk(): return dma_k(KKSLOT, "KK") + dma_k(KKSLOT + 8192, "KK")

def BR1(s, b): return 32 + (s & 1)*8 + b*4
def BR2(s, b): return 160 + (s % 12)*8 + b*4
def AB1(par, a): return par*16 + a*4
def AB2(par, a): return 128 + par*16 + a*4
def bload(s, ring, pre):
    u = s & 3; tag = f"{pre}{s}"
    SC = LSC()
    g = [[Ins(f"buffer_load_dwordx4 {ar(ring(s,0),4)}, v{V_OB0}, {S4(S_XN)}, s{S_BT} offen offset:{u*1024}{SC}", tag)],
         [Ins(f"buffer_load_dwordx4 {ar(ring(s,1),4)}, v{V_OB1}, {S4(S_XN)}, s{S_BT} offen offset:{u*1024}{SC}", tag)]]
    if u == 3 and not OPT.get("bfix"): g[1] += [f"s_add_u32 s{S_BT}, s{S_BT}, 4096", f"s_and_b32 s{S_BT}, s{S_BT}, 0x7fff"]
    return g
def areads_q(s):
    t, u = s >> 2, s & 3
    sl = wslot(t); hi = sl // 65536; sl -= hi * 65536
    out = [Ins(f"ds_read_b64_tr_b16 {ar(AB1(s&1,a)+2*e,2)}, v{V_AQ+4*(hi-1)+a} offset:{sl+(16*u+4*e)*256}", f"A{s}") for a in range(4) for e in range(2)]
    xs = xslot(t); xh = xs // 65536; xs -= xh * 65536
    xb = [Ins(f"ds_read_b128 {ar(BR1(s,b),4)}, v{Q_XR+4*xh+u} offset:{xs+b*4096}", f"A{s}") for b in range(2)]
    return out[:2] + xb + out[2:]
def csreads(s):
    t, u = s >> 2, s & 3
    sl = wslot(t); hi = sl // 65536; sl -= hi * 65536
    return [Ins(f"ds_read_b64_tr_b16 v[{Q_CT+(s%4)*4+2*e}:{Q_CT+(s%4)*4+2*e+1}], v{Q_CA+hi-1} offset:{sl+(16*u+4*e)*256}", f"CS{s}") for e in range(2)]
def csdots(s):
    if OPT.get("nocs"): return []
    return [f"v_dot2c_f32_bf16 v{Q_CS+(i&1)}, s{S_ONES}, v{Q_CT+(s%4)*4+i}" for i in range(4)]
def areads_g(s):
    t, u = s >> 2, s & 3
    sl = gslot(t); hi = sl // 65536; sl -= hi * 65536
    return [Ins(f"ds_read_b64_tr_b16 {ar(AB2(s&1,a)+2*e,2)}, v{V_AG+2*hi+(a&1)} offset:{sl+(a>>1)*8192+(16*u+4*e)*128}", f"AG{s}") for a in range(4) for e in range(2)]
def kreads(off, tag):
    return [Ins(f"ds_read_b128 {ar(A_KF+4*s,4)}, v{V_K+s} offset:{off}", tag) for s in range(8)]
def kreads_hi(off, tag, tmp):
    return [[f"v_add_u32 v{tmp+(s&3)}, 0x10000, v{V_K+s}",
             Ins(f"ds_read_b128 {ar(A_KF+4*s,4)}, v{tmp+(s&3)} offset:{off-65536}", tag)] for s in range(8)]
def vreads(sl, tag):
    return [Ins(f"ds_read_b64_tr_b16 {ar(A_VF+(u*4+t)*4+2*e,2)}, v{V_V+t} offset:{sl+(16*u+8*e)*256}", tag) for u in range(2) for t in range(4) for e in range(2)]

def p1q(p):
    AP = 64
    p.e(f"""
    s_mov_b32 s{S_ONES}, 0x3f803f80
    v_mov_b32 v{Q_CS}, 0
    v_mov_b32 v{Q_CS+1}, 0
    s_lshl_b32 s{S_T0}, s{S_RB}, 7
    s_lshl_b32 s{S_T2}, s{S_RB}, 11
    s_lshl_b32 s{S_T1}, s{S_W}, 9
    s_add_u32 s{S_T2}, s{S_T2}, s{S_T1}
    s_add_u32 s{S_T2}, s{S_T2}, 16384
    v_lshlrev_b32 v{Q_EP+3}, 1, v{V_FL}
    """)
    p.e(Wait(vm=["W0", "X0"])); stamp(p, 7, 5); p.e("s_barrier"); stamp(p, 8, 5)
    for x in areads_q(0) + csreads(0): p.e(x)
    p.e(f"s_waitcnt lgkmcnt(0)\ns_mov_b32 s{S_WD+2}, {1792*1024}\ns_mov_b32 s{S_WD+3}, 0x00020000")
    sc = Sched()
    def publish(p):
        p.e(f"""
        s_cmp_lg_u32 s{S_W}, 0
        s_cbranch_scc1 SY1_D
        v_readfirstlane_b32 s{S_T1}, v{Q_EP}
        s_nop 0
        s_cmp_eq_u32 s{S_T1}, 0
        s_cselect_b32 s{S_EP}, s{S_EP}, s{S_T1}
        """)
        p.e(flag_store(0, Q_EP, Q_EP + 1, "OPT_FS"))
        p.label("SY1_D")
    EPL = OPT.get("epl", 10); P1I = OPT.get("p1i", 16); P1C = OPT.get("p1c", 22)
    for s in range(32):
        t, u = s >> 2, s & 3
        mf = []
        for a in range(4):
            for b in range(2):
                d = vr(QACC(a, b), 16)
                mf.append(mfma(d, ar(AB1(s & 1, a), 4), ar(BR1(s, b), 4), d if s else "0"))
        g0 = sc.add(mf)
        if u == 3:
            vm = [f"W{t+1}", f"X{t+1}"] if t + 1 < 8 else ["KK"]
            if t == 0: vm.append("XST")
            sc.before(g0, [Wait(vm=vm, lg=[f"A{s}", f"CS{s}"] if s < 31 else ["CSW"]), "s_barrier"])
            if t == 0: sc.before(g0, publish)
        sc.before(g0, Wait(lg=[f"A{s}", f"CS{s}"] if s <= 28 else [f"A{s}"]))
        if s == 0: sc.before(g0, lambda p: (stamp(p, 1), stamp(p, 9, 5)))
        if s == 8: sc.before(g0, lambda p: stamp(p, 10, 5))
        if s % 4 == 0: sc.before(g0, lambda p, s=s: stamp(p, 1 + s // 4, 1))
        if s + 1 < 32: sc.spread(areads_q(s + 1), g0, g0 + 5)
        else:
            sc.spread([Ins(f"ds_read_b64 {ar(AP+4*a,2)}, v{Q_EP} offset:{a*512}", "AP") for a in range(4)] + kreads_hi(KKSLOT, "KF", V_T), g0, g0 + 6)
        if s <= 26: sc.spread(csreads(s + 1), g0 + 5, g0 + 6)
        if s == 27: sc.spread(csreads(28) + csreads(29), g0 + 5, g0 + 7)
        if s == 28: sc.spread(csreads(30) + csreads(31), g0 + 5, g0 + 7)
        if s <= 28: sc.spread(csdots(s), g0, g0 + 4)
        if s == 29:
            sc.before(g0, Wait(lg=["CS31"]))
            C = Q_CS
            sc.spread(csdots(29) + csdots(30) + csdots(31) + lines(f"""
            s_nop 2
            v_add_f32 v{C}, v{C}, v{C+1}
            v_mov_b32 v{C+1}, v{C}
            s_nop 1
            v_permlane32_swap_b32 v{C}, v{C+1}
            v_add_f32 v{C}, v{C}, v{C+1}
            v_cvt_pk_bf16_f32 v{C+1}, v{C}, v{C}
            v_and_b32 v{C+1}, 0xffff0000, v{C+1}
            v_sub_f32 v{C+1}, v{C}, v{C+1}
            v_cvt_pk_bf16_f32 v{C+2}, v{C}, v{C+1}
            v_and_b32 v{C}, 0xffff0000, v{C+2}
            v_sub_f32 v{C+1}, v{C+1}, v{C}
            v_cvt_pk_bf16_f32 v{C+3}, v{C+1}, 0
            v_mbcnt_lo_u32_b32 v{Q_EP}, -1, 0
            v_mbcnt_hi_u32_b32 v{Q_EP}, -1, v{Q_EP}
            v_lshlrev_b32 v{Q_EP}, 3, v{Q_EP}
            v_add_u32 v{Q_EP}, {LDS_CS}, v{Q_EP}
            s_lshl_b32 s{S_T1}, s{S_W}, 9
            v_add_u32 v{Q_EP+1}, s{S_T1}, v{Q_EP}
            """) + [Ins(f"ds_write_b64 v{Q_EP+1}, v[{C+2}:{C+3}]", "CSW")], g0, g0 + 14)
        if s == 8: sc.spread([f"v_accvgpr_write_b32 a{AP+4*a+2+i}, 0" for a in range(4) for i in range(2)] +
                             [f"v_mov_b32 v{Q_BP+i}, 0" for i in range(8)], g0, g0 + 8)
        if s == EPL: sc.fixed(g0 + 1, [Ins(f"buffer_load_dword v{V_PR}, v{Q_EP+2}, {S4(S_DBG)}, 0 offen sc1", "EPL")])
        if s == P1I:
            sc.before(g0, [Wait(vm=["EPL"]), f"v_readfirstlane_b32 s{S_EP}, v{V_PR}"])
            sc.fixed(g0 + 1, [poll_issue(0, S_T0, "P1")])
        if s == P1C:
            sc.before(g0, lambda p: poll_check(p, "SY1", 0, S_T0, "P1", S_T1))
            for b in range(2):
                sc.fixed(g0 + 1 + 2*b, [Ins(f"buffer_load_dwordx2 v[{Q_ST+2*b}:{Q_ST+2*b+1}], v{Q_EP+3}, {S4(S_FLG)}, s{S_T2} offen offset:{b*256}{SC}", "ST")])
        if s == 28:
            sc.before(g0, [Wait(vm=["ST"]), "s_mov_b32 exec_hi, 0"] +
                      [x for b in range(2) for x in (f"v_mov_b32 v{Q_BP+4*b}, v{Q_ST+2*b}", f"v_and_b32 v{Q_BP+4*b+1}, 0xffff, v{Q_ST+2*b}")] +
                      ["s_mov_b32 exec_hi, -1"] +
                      [x for b in range(2) for x in (f"v_mov_b32 v{Q_SC+2*b}, v{Q_ST+2*b+1}", f"v_mov_b32 v{Q_SC+2*b+1}, v{Q_ST+2*b+1}")])
    g0 = sc.add([mfma(vr(QACC(a, b), 16), ar(AP + 4*a, 4), vr(Q_BP + 4*b, 4), vr(QACC(a, b), 16)) for b in range(2) for a in range(4)])
    sc.before(g0, Wait(lg=["AP"]))
    for t in range(2 if OPT.get('early1') else 1, 8):
        for x in dma_x(t): sc.queue("X", x, max(0, 8*(4*(t - 3) + 3)), 8*(4*t - 1) - 60)
        for x in dma_q(t): sc.queue("W", x, max(0, 8*(4*(t - 4) + 3)), 8*(4*t - 1) - 64)
    for x in dma_kk(): sc.queue("KV", x, 8*19, 8*31 - 64)
    for i in range(2):
        for x in dma_d(i): sc.queue("KV", x, 8*23, 260)
    sc.fixed(OPT.get("pfg", 100), [Ins(f"buffer_load_dword v{V_PFD}, v227, {S4(S_WG)}, 0 offen", "PF")])
    sc.fixed(OPT.get("pfu", 190), [Ins(f"buffer_load_dword v{V_PFD}, v227, {S4(S_WU)}, 0 offen", "PF")])
    sc.emit(p)
    if sc.report: print("p1q late:", sc.report)
    p.e(f"s_lshl_b32 s{S_BT}, s{S_DT}, 12")

def qconv():
    out = []
    for k in range(64):
        b = (k >> 3) & 1
        out.append([f"v_pk_mul_f32 v[{2*k}:{2*k+1}], v[{2*k}:{2*k+1}], v[{Q_SC+2*b}:{Q_SC+2*b+1}]"])
        out.append([f"v_cvt_pk_bf16_f32 v{k}, v{2*k}, v{2*k+1}"])
    res = [out[0]]
    for k in range(64):
        if k + 1 < 64: res.append(out[2*(k+1)])
        res.append(out[2*k+1])
    return res

def qk_mf(par, first_c):
    mf = []
    for s in range(8):
        for b in range(2):
            d = vr(SB(par, b), 16)
            mf.append(mfma(d, ar(A_KF + 4*s, 4), vr(QF(b, s), 4), d if s else first_c(b)))
    return mf
def pv_mf(par):
    mf = []
    for u in range(2):
        for t in range(4):
            for b in range(2):
                d = ar(OACC(t, b), 16)
                mf.append(mfma(d, ar(A_VF + (u*4+t)*4, 4), vr(PB(par, b, u), 4), d))
    return mf
def softmax_items(par):
    out = []
    for u in range(2):
        for b in range(2):
            for i in range(0, 8, 2):
                r = SB(par, b) + 8*u + i
                out.append([f"v_exp_f32 v{r}, v{r}"])
                out.append([f"v_exp_f32 v{r+1}, v{r+1}"])
                if OPT.get("dot2"):
                    out.append(["s_nop 0"] if False else [f"v_cvt_pk_bf16_f32 v{PB(par,b,u)+i//2}, v{r}, v{r+1}"])
                    out.append([f"v_dot2c_f32_bf16 v{V_L+b}, s{S_ONES}, v{PB(par,b,u)+i//2}"])
                else:
                    out.append([f"v_add_f32 v{V_L+b}, v{V_L+b}, v{r}"])
                    out.append([f"v_add_f32 v{V_L+b}, v{V_L+b}, v{r+1}"])
                    out.append([f"v_cvt_pk_bf16_f32 v{PB(par,b,u)+i//2}, v{r}, v{r+1}"])
    if OPT.get("dot2"):
        e = [out[i:i+2] for i in range(0, 64, 4)]; c = [out[i+2:i+4] for i in range(0, 64, 4)]
        res = list(e[0])
        for k in range(16):
            if k + 1 < 16: res += e[k+1]
            else: res += [["s_nop 0"]]
            res += c[k]
        return res
    return out
HEAD, TAIL = 35, 10
def period(p, pp, qk=True, dma=True, kread=True, nexthead=True, last=False, extra=(), endvm=(), xds=()):
    par = pp & 1; sl = (pp % 4) * SLOT
    sm = softmax_items(par); smn = softmax_items(par ^ 1)
    negm = lambda b: vr(NEGM(b), 16)
    d = (dma_d(pp + 3) if dma else []) + list(extra)
    sc = Sched()
    if qk:
        sc.add(qk_mf(par ^ 1, negm))
        sc.spread(vreads(sl, "VF"), 0, 10); sc.spread(sm[HEAD:len(sm)-TAIL], 0, 16)
    else:
        for x in vreads(sl, "VF"): p.e(x)
        for x in sm[HEAD:len(sm)-TAIL]: p.e(x)
        p.e("s_nop 1")
    g0 = sc.add(pv_mf(par))
    sc.before(g0, Wait(lg=["VF"]))
    sc.spread(sm[len(sm)-TAIL:], g0, g0 + 3)
    if kread: sc.spread(kreads(sl + 8192, "KF"), g0 + 3, g0 + 12)
    if nexthead: sc.spread(smn[:HEAD], g0 + 3, g0 + 16)
    if xds: sc.spread(list(xds), g0 + 3, g0 + 12)
    n = len(sc.mf)
    for k, x in enumerate(d): sc.fixed(1 + (k * (n - 2)) // max(len(d), 1), x)
    sc.emit(p)
    if not last:
        p.e(Wait(vm=[f"D{(pp+1)%4}"] + list(endvm), lg=["KF"])); p.e("s_barrier")

def maxtree(p, par, dst, init=True):
    for b in range(2):
        s0 = SB(par, b)
        if init: p.e(f"v_max3_f32 v{dst+b}, v{s0}, v{s0+1}, v{s0+2}"); rest = list(range(3, 16))
        else: rest = list(range(16))
        while len(rest) >= 2:
            p.e(f"v_max3_f32 v{dst+b}, v{dst+b}, v{s0+rest[0]}, v{s0+rest[1]}"); rest = rest[2:]
        if rest: p.e(f"v_max_f32 v{dst+b}, v{dst+b}, v{s0+rest[0]}")
def negm_from(p, m):
    p.e(f"""
    v_mov_b32 v{m+2}, v{m}
    v_mov_b32 v{m+3}, v{m+1}
    s_nop 1
    v_permlane32_swap_b32 v{m}, v{m+2}
    v_permlane32_swap_b32 v{m+1}, v{m+3}
    v_max_f32 v{m}, v{m}, v{m+2}
    v_max_f32 v{m+1}, v{m+1}, v{m+3}
    """)
    for b in range(2):
        for i in range(16): p.e(f"v_sub_f32 v{NEGM(b)+i}, 0, v{m+b}")

def attention(p):
    T = V_T
    p.label("K2_ATT")
    p.e(Wait(lg=["KF"]))
    zero = [f"v_accvgpr_write_b32 a{i}, 0" for i in range(128)]
    sc = Sched(); sc.add(qk_mf(0, lambda b: "0")); sc.spread(zero, 0, 16)
    for k, x in enumerate(dma_d(2)): sc.fixed(1 + 4*k, x)
    sc.emit(p)
    for g in kreads_hi(KKSLOT + 8192, "KF", T + 8): p.e(g)
    p.e(f"v_mov_b32 v{V_L}, 0\nv_mov_b32 v{V_L+1}, 0\ns_add_u32 s{S_GM}, s{S_W2K}, {gslot(0)}")
    p.e(f"s_cmp_lg_u32 s{S_FLAG}, 0\ns_cbranch_scc1 K2_HAVEM")
    maxtree(p, 0, T)
    negm_from(p, T)
    p.label("K2_HAVEM")
    for b in range(2):
        for i in range(16): p.e(f"v_add_f32 v{SB(0,b)+i}, v{SB(0,b)+i}, v{NEGM(b)+i}")
    for x in softmax_items(0)[:HEAD]: p.e(x)
    p.e(Wait(vm=["D0"], lg=["KF"])); p.e("s_barrier")
    p.e(f"s_mov_b32 s{S_LOOP}, 0")
    stamp(p, 3)
    p.e(f"""
    s_lshr_b32 s{S_T0}, s2, 3
    s_lshl_b32 s{S_T0}, s{S_T0}, 2
    s_add_u32 s{S_T0}, s{S_T0}, s{S_W}
    s_and_b32 s{S_PF}, s2, 3
    s_lshl_b32 s{S_PF}, s{S_PF}, 7
    s_add_u32 s{S_PF}, s{S_PF}, s{S_T0}
    s_lshl_b32 s{S_PF}, s{S_PF}, 13
    s_lshl_b32 s{S_PFD}, s{S_T0}, 13
    """)
    pfo = [[Ins(f"buffer_load_dword v{V_PFD}, v{V_PFA}, {S4(S_WO)}, s{S_PF} offen", "PF")]]
    pfd = [[Ins(f"buffer_load_dword v{V_PFD}, v{V_PFA}, {S4(S_WD)}, s{S_PFD} offen", "PF"), f"s_xor_b32 s{S_PFD}, s{S_PFD}, 0x100000"]]
    period(p, 0)
    p.loop_begin()
    for i in range(1, 5): period(p, i, extra=dma_g("G") if i in (1, 3) else (pfo if i == 2 else pfd))
    p.loop_end("K2_LOOP", 3, [f"s_add_u32 s{S_LOOP}, s{S_LOOP}, 1", f"s_cmp_lt_u32 s{S_LOOP}, 3", "s_cbranch_scc1 K2_LOOP"])
    period(p, 13, dma=False, extra=bload(0, BR2, "C") + bload(1, BR2, "C") + bload(2, BR2, "C") + bload(3, BR2, "C"))
    g6 = dma_g("G6"); g6[0] = [f"s_mov_b32 s{S_GM}, s{S_W2K}"] + g6[0]
    period(p, 14, dma=False, kread=False, extra=g6 + dma_g("G7"), endvm=["G"])
    period(p, 15, qk=False, dma=False, kread=False, nexthead=False, last=True,
           extra=bload(4, BR2, "C") + bload(5, BR2, "C") + bload(6, BR2, "C") + bload(7, BR2, "C"), xds=areads_g(0))

V_LI = 48
def oepi_head(p):
    T = V_T
    p.e(f"""
    v_mov_b32 v{T}, v{V_L}
    v_mov_b32 v{T+1}, v{V_L+1}
    s_nop 1
    v_permlane32_swap_b32 v{V_L}, v{T}
    v_permlane32_swap_b32 v{V_L+1}, v{T+1}
    v_add_f32 v{V_L}, v{V_L}, v{T}
    v_add_f32 v{V_L+1}, v{V_L+1}, v{T+1}
    v_add_f32 v{T+1}, v{V_L}, v{V_L+1}
    s_mov_b32 s{S_T0}, 0x5d800000
    v_cmp_ngt_f32 vcc, s{S_T0}, v{T+1}
    s_nop 1
    s_cmp_lg_u64 vcc, 0
    s_cselect_b32 s{S_T1}, 1, 0
    v_mov_b32 v{T}, s{S_T1}
    v_mov_b32 v{T+1}, {LDS_FLAG}
    v_mov_b32 v{T+2}, s{S_W}
    v_lshl_add_u32 v{T+2}, v{T+2}, 2, v{T+1}
    ds_write_b32 v{T+2}, v{T}
    """)
    p.e(Wait(vm=["G7"])); p.e("s_waitcnt lgkmcnt(0)\ns_barrier")
    p.e(f"""
    ds_read_b128 v[{T+4}:{T+7}], v{T+1}
    s_add_u32 s{S_T2}, s{S_OOFF}, 4096
    s_waitcnt lgkmcnt(0)
    v_or_b32 v{T+4}, v{T+4}, v{T+5}
    v_or3_b32 v{T+4}, v{T+4}, v{T+6}, v{T+7}
    s_nop 0
    v_readfirstlane_b32 s{S_T1}, v{T+4}
    s_nop 0
    s_andn2_b32 s{S_T1}, s{S_T1}, s{S_FLAG}
    s_cmp_lg_u32 s{S_T1}, 0
    s_cbranch_scc1 K2_SLOW
    v_rcp_f32 v{V_LI}, v{V_L}
    v_rcp_f32 v{V_LI+2}, v{V_L+1}
    s_nop 0
    v_mov_b32 v{V_LI+1}, v{V_LI}
    v_mov_b32 v{V_LI+3}, v{V_LI+2}
    """)
def oepi_groups():
    out = []; k = 0
    for t in range(4):
        for b in range(2):
            for uu in range(2):
                o0 = OACC(t, b) + 8*uu
                tmp = (k % 4) * 8; pk = 32 + (k % 4) * 4; k += 1
                g = [f"v_accvgpr_read_b32 v{tmp+i}, a{o0+i}" for i in range(8)]
                g += [f"v_mul_f32 v{tmp+i}, v{tmp+i}, v{V_LI+2*b}" for i in range(8)]
                g += [f"v_cvt_pk_bf16_f32 v{pk+i//2}, v{tmp+i}, v{tmp+i+1}" for i in range(0, 8, 2)]
                off = (2*t + uu) * 1024
                so = S_OOFF if off < 4096 else S_T2
                g.append(Ins(f"buffer_store_dwordx4 v[{pk}:{pk+3}], v{V_ST0+b}, {S4(S_ACT)}, s{so} offen offset:{off % 4096}{SC}", "OST"))
                out.append(g)
    return out

def slowpath():
    p = Prog(); T = V_T
    p.label("K2_SLOW")
    p.e(f"""
    s_mov_b32 s{S_FLAG}, 1
    s_mov_b32 s{S_KT}, 0
    s_mov_b32 s{S_LOOP}, 0
    s_sub_u32 s{S_BT}, s{S_BT}, 8192
    s_and_b32 s{S_BT}, s{S_BT}, 0x7fff
    v_mov_b32 v{T}, 0xff800000
    v_mov_b32 v{T+1}, 0xff800000
    s_waitcnt vmcnt(0) lgkmcnt(0)
    """)
    p.loop_begin()
    p.e("s_barrier")
    for g in dma_k(8192, "X"): p.e(g)
    p.e("s_waitcnt vmcnt(0)\ns_barrier")
    for x in kreads(8192, "KF"): p.e(x)
    p.e("s_waitcnt lgkmcnt(0)")
    for x in qk_mf(0, lambda b: "0"): p.e(x)
    p.e("s_nop 11")
    maxtree(p, 0, T, init=False)
    p.loop_end("K2_SLOWL", 16, [f"s_add_u32 s{S_LOOP}, s{S_LOOP}, 1", f"s_cmp_lt_u32 s{S_LOOP}, 16", "s_cbranch_scc1 K2_SLOWL"])
    negm_from(p, T)
    p.e(f"s_barrier\ns_mov_b32 s{S_KT}, s{S_ROT2}\ns_mov_b32 s{S_VT}, s{S_ROT2}")
    for g in dma_kk(): p.e(g)
    for i in range(2):
        for g in dma_d(i): p.e(g)
    p.e("s_waitcnt vmcnt(0)\ns_barrier")
    for g in kreads_hi(KKSLOT, "KF", T + 8): p.e(g)
    p.e("s_branch K2_ATT")
    return p

def late_setup():
    T = V_T; VL = K_VL
    return lines(f"""
    v_mbcnt_lo_u32_b32 v{VL}, -1, 0
    v_mbcnt_hi_u32_b32 v{VL}, -1, v{VL}
    s_and_b32 s{K_KQ}, s2, 3
    s_bfe_u32 s{K_QD}, s2, 0x10005
    s_xor_b32 s{K_QD}, s{K_QD}, s{K_KQ}
    s_lshr_b32 s{S_T0}, s2, 3
    s_and_b32 s{K_CT}, s{S_T0}, 3
    s_lshr_b32 s{K_SR32}, s{S_T0}, 2
    s_lshl_b32 s{K_SR32}, s{K_SR32}, 2
    s_and_b32 s{S_T0}, s2, 4
    s_lshr_b32 s3, s2, 6
    s_add_u32 s3, s3, s{S_T0}
    s_lshl_b32 s3, s3, 7
    s_lshl_b32 s{S_T0}, s{S_T0}, 3
    s_add_u32 s{K_SR32}, s{K_SR32}, s{S_T0}
    v_lshlrev_b32 v{K_VL16}, 4, v{VL}
    v_and_b32 v{T}, 3, v{VL}
    v_bfe_u32 v{T+1}, v{VL}, 2, 1
    v_lshl_add_u32 v{T}, v{T}, 3, v{T+1}
    s_lshl_b32 s{S_T0}, s{K_KQ}, 1
    v_add_u32 v{T}, s{S_T0}, v{T}
    v_lshlrev_b32 v{V_FL2}, 2, v{T}
    v_lshrrev_b32 v{T}, 4, v{VL}
    v_and_b32 v{T+1}, 15, v{VL}
    v_lshlrev_b32 v{T+2}, 2, v{T}
    v_xor_b32 v{T+1}, v{T+1}, v{T+2}
    v_lshlrev_b32 v{T+1}, 4, v{T+1}
    v_lshl_add_u32 v{K_VSW}, v{T}, 10, v{T+1}
    s_lshl_b32 s{S_T0}, s{S_W}, 12
    s_lshl_b32 s{S_T1}, s{K_CT}, 8
    s_add_u32 s{S_T0}, s{S_T0}, s{S_T1}
    v_add_u32 v{K_VSW}, s{S_T0}, v{K_VSW}
    s_add_u32 s{S_T0}, s{K_SR32}, s{S_W}
    s_mul_i32 s{S_T0}, s{S_T0}, {ACT_KS*1024}
    v_add_u32 v{K_VSA}, s{S_T0}, v{K_VL16}
    s_lshl_b32 s{K_SSW}, s{K_KQ}, 20
    s_lshl_b32 s{K_SSA}, s{K_KQ}, 16
    v_lshrrev_b32 v{T}, 5, v{VL}
    v_bfe_u32 v{T+1}, v{VL}, 2, 2
    v_bfe_u32 v{T+2}, v{VL}, 4, 1
    v_and_b32 v{T+3}, 3, v{VL}
    v_and_b32 v{T+4}, 1, v{T+3}
    v_lshrrev_b32 v{T+5}, 1, v{T+3}
    v_lshl_add_u32 v{T+4}, v{T+4}, 1, v{T+5}
    v_lshlrev_b32 v{T+5}, 5, v{T+2}
    v_lshl_add_u32 v{T+4}, v{T+4}, 3, v{T+5}
    v_lshl_add_u32 v{T+5}, v{T}, 2, v{T+1}
    v_lshl_add_u32 v{T+6}, v{T+5}, 8, v{T+4}
    s_and_b32 s{S_T0}, s{S_W}, 1
    s_lshl_b32 s{S_T0}, s{S_T0}, 1
    v_xor_b32 v{T+7}, s{S_T0}, v{T+1}
    v_lshl_add_u32 v{K_VRA}, v{T+7}, 6, v{T+6}
    v_xor_b32 v{T+7}, 1, v{T+7}
    v_lshl_add_u32 v{K_VRA+1}, v{T+7}, 6, v{T+6}
    v_add_u32 v{K_VRA+2}, 0x10000, v{K_VRA}
    v_add_u32 v{K_VRA+3}, 0x10000, v{K_VRA+1}
    v_add_u32 v{K_VRA+4}, 0x20000, v{K_VRA}
    v_add_u32 v{K_VRA+5}, 0x20000, v{K_VRA+1}
    s_and_b32 s{S_T0}, s{S_W}, 2
    s_lshl_b32 s{S_T0}, s{S_T0}, 12
    v_add_u32 v{K_VRB}, s{S_T0}, v{K_VL16}
    v_add_u32 v{K_VRB+1}, 0x10000, v{K_VRB}
    v_add_u32 v{K_VRB+2}, 0x20000, v{K_VRB}
    s_lshl_b32 s{K_SLB}, s{S_W}, 14
    s_add_u32 s{K_SLB}, s{K_SLB}, 65536
    v_lshl_add_u32 v{T+6}, v{T+5}, 7, v{T+4}
    v_add_u32 v{T+6}, s{K_SLB}, v{T+6}
    v_lshrrev_b32 v{T+7}, 1, v{T+1}
    v_lshl_add_u32 v{K_VA0}, v{T+7}, 6, v{T+6}
    v_xor_b32 v{T+7}, 1, v{T+7}
    v_lshl_add_u32 v{K_VA0+1}, v{T+7}, 6, v{T+6}
    v_subrev_u32 v{K_VA2}, 0x10000, v{K_VA0}
    v_subrev_u32 v{K_VA2+1}, 0x10000, v{K_VA0+1}
    s_mul_i32 s{K_SWO}, s{S_W}, {28*16384}
    s_mul_i32 s{K_SA}, s{S_W}, {28*1024}
    s_add_u32 s{K_SA}, s{K_SA}, {256*1024}
    s_and_b32 s{S_T1}, s{K_QD}, 2
    s_add_u32 s{S_T1}, s{S_T1}, s{K_SR32}
    s_mul_i32 s{S_T0}, s{S_T1}, {ACT_KS*1024}
    v_add_u32 v{K_VB0}, s{S_T0}, v{K_VL16}
    v_add_u32 v{K_VB1}, {ACT_KS*1024}, v{K_VB0}
    s_lshr_b32 s{S_T0}, s{S_W}, 1
    s_add_u32 s{S_T0}, s{S_T0}, s{S_T1}
    s_lshl_b32 s{S_T0}, s{S_T0}, 15
    s_and_b32 s{S_T1}, s{S_W}, 1
    s_lshl_b32 s{S_T1}, s{S_T1}, 6
    s_add_u32 s{S_T0}, s{S_T0}, s{S_T1}
    s_lshl_b32 s{S_T1}, s{K_CT}, 8
    s_and_b32 s{K_SPO}, s{K_QD}, 1
    s_lshl_b32 s{K_SPO}, s{K_SPO}, 7
    s_add_u32 s{S_T1}, s{S_T1}, s{K_SPO}
    s_add_u32 s{S_T0}, s{S_T0}, s{S_T1}
    v_and_b32 v{T+6}, 31, v{VL}
    v_lshlrev_b32 v{T+6}, 10, v{T+6}
    v_lshl_add_u32 v{T+6}, v{T}, 4, v{T+6}
    v_add_u32 v{K_VX}, s{S_T0}, v{T+6}
    v_lshrrev_b32 v{T+6}, 3, v{VL}
    v_and_b32 v{T+7}, 7, v{VL}
    v_lshlrev_b32 v{T+5}, 2, v{T+2}
    v_xor_b32 v{T+7}, v{T+7}, v{T+5}
    v_lshlrev_b32 v{T+7}, 4, v{T+7}
    v_lshl_add_u32 v{K_VW0}, v{T+6}, 10, v{T+7}
    v_add_u32 v{K_VW0}, s{S_T1}, v{K_VW0}
    v_add_u32 v{K_VW1}, {8192-1024}, v{K_VW0}
    s_lshr_b32 s{S_T0}, s2, 2
    s_lshl_b32 s{K_SPO}, s{S_T0}, 7
    s_add_u32 s{K_SPO}, s{K_SPO}, 4096
    s_lshl_b32 s{S_T0}, s{S_T0}, 17
    s_lshl_b32 s{S_T1}, s{S_W}, 15
    s_add_u32 s{K_SST}, s{S_T0}, s{S_T1}
    s_lshl_b32 s{S_T1}, s{K_KQ}, 13
    s_add_u32 s{K_SST}, s{K_SST}, s{S_T1}
    s_lshl_b32 s{S_T1}, s{K_QD}, 15
    s_add_u32 s{S_T0}, s{S_T0}, s{S_T1}
    s_lshl_b32 s{S_T1}, s{S_W}, 11
    s_add_u32 s{K_SLD}, s{S_T0}, s{S_T1}
    """)
def ks_sw(g):
    return [[f"s_add_u32 m0, s{S_W1K}, {kslot(g)+st*4096}", "s_nop 0",
             Ins(f"buffer_load_dwordx4 v{K_VSW}, {S4(S_WO)}, s{K_SSW} offen lds", f"sw{g}"), f"s_add_u32 s{K_SSW}, s{K_SSW}, 16384"] for st in range(4)]
def ks_sa(g):
    out = [[f"s_add_u32 m0, s{S_W4K}, {kslot(g)+16384}", "s_nop 0",
            Ins(f"buffer_load_dwordx4 v{K_VSA}, {S4(S_ACT)}, s{K_SSA} offen offset:{st*1024}{LSC()} lds", f"sa{g}")] for st in range(4)]
    out[-1].append(f"s_add_u32 s{K_SSA}, s{K_SSA}, 4096")
    return out
def FA(i, nt): return (i % 3)*16 + nt*4
def FB(i, b): return (i % 3)*16 + 8 + b*4
def ks_rd(i):
    g, st = i // 4, i % 4
    sl = kslot(g); hi = sl // 65536; sl -= hi * 65536
    out = [Ins(f"ds_read_b64_tr_b16 {ar(FA(i,nt)+2*e,2)}, v{K_VRA+2*hi+nt} offset:{sl+st*4096+e*2048}", f"f{i}") for nt in range(2) for e in range(2)]
    out += [Ins(f"ds_read_b128 {ar(FB(i,b),4)}, v{K_VRB+hi} offset:{sl+16384+b*4096+st*1024}", f"f{i}") for b in range(2)]
    return out
def BR3(i, b): return 128 + (i % 14)*8 + b*4
def AB3(par, nt): return 240 + par*8 + nt*4
def kbo(i): return (i % 8) * 2048 - (65536 if (i % 16) >= 8 else 0)
def kb_wl(i):
    return [[f"s_add_u32 m0, s{K_SLB}, {kbo(i) & 0xffffffff}", "s_nop 0", Ins(f"buffer_load_dwordx4 v{K_VW0}, {S4(S_WD)}, s{K_SWO} offen lds", f"w{i}")],
            [f"s_add_u32 m0, s{K_SLB}, {kbo(i) & 0xffffffff}", "s_nop 0", Ins(f"buffer_load_dwordx4 v{K_VW1}, {S4(S_WD)}, s{K_SWO} offen offset:1024 lds", f"w{i}"),
             f"s_add_u32 s{K_SWO}, s{K_SWO}, 16384"]]
def kb_bl(i):
    return [[Ins(f"buffer_load_dwordx4 {ar(BR3(i,0),4)}, v{K_VB0}, {S4(S_ACT)}, s{K_SA} offen{LSC()}", f"b{i}")],
            [Ins(f"buffer_load_dwordx4 {ar(BR3(i,1),4)}, v{K_VB1}, {S4(S_ACT)}, s{K_SA} offen{LSC()}", f"b{i}"), f"s_add_u32 s{K_SA}, s{K_SA}, 1024"]]
def kb_rd(i):
    return [Ins(f"ds_read_b64_tr_b16 {ar(AB3(i&1,nt)+2*e,2)}, v{(K_VA0 if (i % 16) < 8 else K_VA2)+nt} offset:{(i%8)*2048+e*1024}", f"a{i}") for nt in range(2) for e in range(2)]

def hepi_groups():
    T = V_T; out = []; k = 0
    for t in range(2):
        for b in range(2):
            for uu in range(2):
                g0 = GACC(t, b) + 8*uu; u0 = GACC(t + 2, b) + 8*uu
                pk = u0; k += 1
                g = [f"v_pk_mul_f32 v[{g0+i}:{g0+i+1}], v[{g0+i}:{g0+i+1}], s[{S_NL2E}:{S_NL2E+1}]" for i in range(0, 8, 2)]
                g += [f"v_exp_f32 v{g0+i}, v{g0+i}" for i in range(8)]
                g += [f"v_add_f32 v{g0+i}, 1.0, v{g0+i}" for i in range(8)]
                g += [f"v_rcp_f32 v{g0+i}, v{g0+i}" for i in range(8)]
                g += ["s_nop 0"] + [f"v_pk_mul_f32 v[{g0+i}:{g0+i+1}], v[{g0+i}:{g0+i+1}], v[{u0+i}:{u0+i+1}]" for i in range(0, 8, 2)]
                g += [f"v_cvt_pk_bf16_f32 v{pk+i//2}, v{g0+i}, v{g0+i+1}" for i in range(0, 8, 2)]
                g.append(Ins(f"buffer_store_dwordx4 v[{pk}:{pk+3}], v{V_ST0+b}, {S4(S_ACT)}, s{S_HOFF} offen offset:{(2*t+uu)*1024}{SC}", "HST"))
                out.append(g)
    return out

class Sched2(Sched):
    def __init__(self, dense_from): Sched.__init__(self); self.dense = dense_from
    def _free(self, g):
        if g >= self.dense: return g not in self.vm
        return Sched._free(self, g)

def late(p):
    OSP = OPT.get("osp", 8); OBAR = OPT.get("obar", 18); HFIRST = OPT.get("hfirst", 4)
    HSP = OPT.get("hsp", 0); HBAR = OPT.get("hbar", 14); SYH = OPT.get("syh", 47)
    PSP = OPT.get("psp", 2); PFL = OPT.get("pfl", 14); PPI = OPT.get("ppi", 25)
    KS0, KB0 = 256, 512
    NSA0 = 5
    sc = Sched2(OPT.get("dense", KB0 - 8))
    FT = V_T + 18
    p.e("s_load_dwordx2 s[60:61], s[0:1], 88\ns_load_dwordx2 s[72:73], s[0:1], 72")
    for s in range(32):
        mf = []
        for a in range(4):
            for b in range(2):
                d = vr(GACC(a, b), 16)
                mf.append(mfma(d, ar(AB2(s & 1, a), 4), ar(BR2(s, b), 4), d if s else "0"))
        g0 = sc.add(mf)
        if s - 1 in (6, 14, 22, 30) or s - 1 == OBAR:
            vm = (["OST"] if s - 1 == OBAR else [])
            sc.before(g0, [Wait(vm=vm, lg=[f"AG{s}"]), "s_barrier"])
        sc.before(g0, Wait(vm=[f"C{s}"], lg=[f"AG{s}"]))
        if s % 4 == 0: sc.before(g0, lambda p, s=s: stamp(p, 1 + s // 4, 2))
        if s == 1: sc.before(g0, ["s_waitcnt lgkmcnt(0)"] + srd_l(S_PT, 60, 61, PART_BYTES, add=WS_PART) + srd_l(S_OUT, 72, 73, 2097152))
        if s == OBAR + 1: sc.fixed(g0, flag_store(1, FT, FT + 1))
        if s + 1 < 32: sc.spread(areads_g(s + 1), g0, g0 + 4)
        if s >= 8:
            for x in bload(s, BR2, "C"): sc.queue("C", x, max(0, 8*(s - 12) + 7), 8*s - 40)
    for k, grp in enumerate(oepi_groups()):
        e = 5 + OSP*k
        sc.spread(grp[:-1], max(0, e - OSP), e); sc.fixed(e, [grp[-1]])
    assert 5 + OSP*15 < 8*OBAR
    sc.spread(late_setup(), 8, 56)
    for i in range(64):
        g, st = i // 4, i % 4
        mf = []
        for b in range(2):
            for nt in range(2):
                d = vr((nt + 2*b) * 16, 16)
                mf.append(mfma(d, ar(FA(i, nt), 4), ar(FB(i, b), 4), "0" if i == 0 else d))
        g0 = sc.add(mf)
        if i == 0:
            def mid(p):
                stamp(p, 5); stamp(p, 9, 2)
                hg = [x[:-1] if HSP else x for x in hepi_groups()]
                p.e("s_nop 7")
                for k in range(HFIRST):
                    if k == HFIRST - OPT.get("hpoll", 2): p.e(poll_issue(1, K_SGO, "PO", V_FL2))
                    p.e(hg[k])
                stamp(p, 1, 3)
                poll_check(p, "SYO", 1, K_SGO, "PO", K_CNT, V_FL2)
                stamp(p, 6)
                vq = sum((ks_sa(g) for g in range(NSA0)), [])
                hs = sum(hg[HFIRST:], [])
                first = OPT.get("safirst", 4)
                for x in vq[:first]: p.e(x)
                vq = vq[first:]
                for k, x in enumerate(hs):
                    p.e(x)
                    if k % 10 == 5 and vq: p.e(vq.pop(0))
                for x in vq: p.e(x)
                p.e(Wait(vm=["sw0", "sa0"])); p.e("s_barrier")
                for x in ks_rd(0) + ks_rd(1): p.e(x)
            sc.before(g0, mid)
        if st == 2 and g + 1 < 16:
            sc.before(g0, [Wait(vm=[f"sw{g+1}", f"sa{g+1}"] + (["HST"] if i == HBAR else []), lg=[f"f{i+1}"]), "s_barrier"])
        if i == HBAR: sc.fixed(g0, flag_store(2, FT, FT + 1))
        if i == SYH - 5: sc.fixed(g0, [poll_issue(2, 3, "PH")])
        if i == SYH: sc.before(g0, lambda p: (stamp(p, 7), poll_check(p, "SYH", 2, 3, "PH", K_CNT)))
        sc.before(g0, Wait(lg=[f"f{i}"]))
        if i % 8 == 0: sc.before(g0, lambda p, i=i: stamp(p, 2 + i // 8, 3))
        if i + 2 < 64: sc.spread(ks_rd(i + 2), g0, g0 + 4)
        if i == 63: sc.spread([Wait(vm=["w0"])] + kb_rd(0), g0, g0 + 2)
    for g in range(16):
        free = {0: 56, 1: 56, 2: 120, 3: 184, 4: 248}.get(g, KS0 + 4*(4*(g - 5) + 2))
        need = 248 if g == 0 else KS0 + 4*(4*(g - 1) + 2)
        for x in ks_sw(g): sc.queue("sw", x, free, need - 40)
        if g >= NSA0:
            for x in ks_sa(g): sc.queue("sa", x, max(free, KS0), need - 44)
    if HSP:
        for k, grp in enumerate(hepi_groups()): sc.fixed(KS0 + 2 + HSP*k, [grp[-1]])
    assert 2 + HSP*7 < 4*HBAR
    for i in range(28):
        mf = []
        for b in range(2):
            for nt in range(2):
                d = vr(64 + (nt + 2*b) * 16, 16)
                mf.append(mfma(d, ar(AB3(i & 1, nt), 4), ar(BR3(i, b), 4), "0" if i == 0 else d))
        g0 = sc.add(mf)
        if i == 0: sc.before(g0, lambda p: (stamp(p, 8), stamp(p, 10, 3)))
        if i % 4 == 0: sc.before(g0, lambda p, i=i: stamp(p, 1 + i // 4, 4))
        if i + 1 < 28: sc.before(g0, [Wait(vm=[f"w{i+1}", f"b{i}"])] + kb_rd(i + 1))
        else: sc.before(g0, Wait(vm=[f"b{i}"]))
        if i == PFL:
            sc.before(g0, lines(f"""
            s_lshl_b32 s{S_FO}, s{S_W}, 4
            s_add_u32 s{S_FO}, s{S_FO}, s{K_SPO}
            s_lshl_b32 s{S_T0}, s{K_KQ}, 2
            s_add_u32 s{S_FO}, s{S_FO}, s{S_T0}
            s_lshl_b32 s{S_T0}, s{K_QD}, 4
            s_add_u32 s{K_SPO}, s{K_SPO}, s{S_T0}
            v_and_b32 v{V_FL}, 12, v{V_FL}
            """) + [Wait(vm=["PSS"])])
            sc.fixed(g0, flag_store(0, FT, FT + 1))
        if i == PPI: sc.fixed(g0, [poll_issue(0, K_SPO, "PP")])
        sc.before(g0, Wait(lg=[f"a{i}"]))
        if i == 0: sc.before(g0, "s_barrier")
        for x in kb_wl(i): sc.queue("w", x, KS0 + 4*50 if i < 8 else (KB0 if i < 16 else KB0 + 4*(i - 16)), KB0 + 4*(i - 1) - 40)
        for x in kb_bl(i): sc.queue("b", x, KS0 + 4*SYH if i < 14 else KB0 + 4*(i - 14) + 3, KB0 + 4*i - 40)
    for k in range(8):
        r = 8*k; pk = 128 + 4*k; e = KB0 + OPT.get('ps0', 6) + PSP*k
        grp = [f"v_cvt_pk_bf16_f32 v{pk+i}, v{r+2*i}, v{r+2*i+1}" for i in range(4)]
        if k == 4: grp.append(f"s_add_u32 s{K_SST}, s{K_SST}, 4096")
        sc.spread(grp, e - 2, e)
        sc.fixed(e, [Ins(f"buffer_store_dwordx4 v[{pk}:{pk+3}], v{K_VL16}, {S4(S_PT)}, s{K_SST} offen offset:{(k%4)*1024}{SC}", "PSS")])
    sc.queue("x", [Ins(f"buffer_load_dwordx4 v[176:179], v{K_VX}, {S4(S_X)}, 0 offen", "X")], KB0 + 64, 700)
    sc.queue("x", [Ins(f"buffer_load_dwordx4 v[180:183], v{K_VX}, {S4(S_X)}, 0 offen offset:32", "X")], KB0 + 64, 700)
    sc.emit(p)
    if sc.report: print("late:", len(sc.report), sc.report[:60])
    stamp(p, 9); stamp(p, 8, 4)
    T = V_T
    poll_check(p, "SYP", 0, K_SPO, "PP", K_CNT)
    stamp(p, 10)
    for src in range(4):
        p.e(f"buffer_load_dwordx4 v[{144+8*src}:{147+8*src}], v{K_VL16}, {S4(S_PT)}, s{K_SLD} offen{SC}", tag=f"PL{src}")
        p.e(f"buffer_load_dwordx4 v[{148+8*src}:{151+8*src}], v{K_VL16}, {S4(S_PT)}, s{K_SLD} offen offset:1024{SC}", tag=f"PL{src}")
        p.e(f"s_add_u32 s{K_SLD}, s{K_SLD}, 8192")
    p.e(f"""
    v_add_u32 v{T}, s{K_SLB}, v{K_VL16}
    s_add_u32 s{S_T0}, s{S_W4K}, 65536
    v_add_u32 v{T+1}, s{S_T0}, v{K_VL16}
    """)
    for order in range(16):
        r = 64 + 4*order
        p.e(f"ds_write_b128 v{T}, v[{r}:{r+3}] offset:{order*1024}")
    p.e("s_waitcnt lgkmcnt(0)\ns_barrier")
    for sw_ in range(4):
        for rg in range(4):
            d = 64 + sw_*16 + rg*4
            p.e(f"ds_read_b128 v[{d}:{d+3}], v{T+1} offset:{sw_*16384+rg*1024}", tag=f"R{sw_}")
    def pk(op, d, a, b): return f"v_pk_{op}_f32 v[{d}:{d+1}], v[{a}:{a+1}], {b}"
    for i in range(8): p.e(f"v_lshlrev_b32 v{48+2*i}, 16, v{176+i}\nv_and_b32 v{49+2*i}, 0xffff0000, v{176+i}")
    p.e(Wait(lg=["R1"]))
    for i in range(0, 16, 2): p.e(pk("add", 64+i, 64+i, f"v[{80+i}:{81+i}]"))
    p.e("s_waitcnt lgkmcnt(0)")
    for i in range(0, 16, 2): p.e(pk("add", 96+i, 96+i, f"v[{112+i}:{113+i}]"))
    for i in range(0, 16, 2): p.e(pk("add", 64+i, 64+i, f"v[{96+i}:{97+i}]"))
    for i in range(0, 16, 2): p.e(pk("mul", 16+i, 64+i, f"s[{S_NL2E}:{S_NL2E+1}]"))
    for i in range(16): p.e(f"v_exp_f32 v{16+i}, v{16+i}")
    for i in range(16): p.e(f"v_add_f32 v{16+i}, 1.0, v{16+i}")
    for i in range(16): p.e(f"v_rcp_f32 v{16+i}, v{16+i}")
    for i in range(0, 16, 2): p.e(pk("mul", 64+i, 64+i, f"v[{16+i}:{17+i}]"))
    for src in range(4):
        p.e(Wait(vm=[f"PL{src}"]))
        d = 0 if src == 0 else 16
        for i in range(8): p.e(f"v_lshlrev_b32 v{d+2*i}, 16, v{144+8*src+i}\nv_and_b32 v{d+2*i+1}, 0xffff0000, v{144+8*src+i}")
        if src:
            for i in range(0, 16, 2): p.e(pk("add", i, i, f"v[{16+i}:{17+i}]"))
    for i in range(0, 16, 2): p.e(f"v_pk_fma_f32 v[{i}:{i+1}], v[{i}:{i+1}], v[{64+i}:{65+i}], v[{48+i}:{49+i}]")
    for i in range(8): p.e(f"v_cvt_pk_bf16_f32 v{32+i}, v{2*i}, v{2*i+1}")
    p.e(f"""
    buffer_store_dwordx4 v[32:35], v{K_VX}, {S4(S_OUT)}, 0 offen{" sc1" if OPT.get("osc") else ""}
    buffer_store_dwordx4 v[36:39], v{K_VX}, {S4(S_OUT)}, 0 offen offset:32{" sc1" if OPT.get("osc") else ""}
    """)
    stamp(p, 11)

def gen():
    p = Prog()
    setup(p)
    layernorm(p)
    p1q(p)
    stamp(p, 2); stamp(p, 9, 1); stamp(p, 11, 5)
    srd(p, S_WO, 60, 61, 4096*1024)
    p.e("s_nop 7")
    for g in qconv(): p.e(g)
    attention(p)
    stamp(p, 4)
    oepi_head(p)
    late(p)
    stamp_flush(p, 12)
    p.label("K_END")
    p.e("s_endpgm")
    return p, slowpath()

KD = """.section .rodata,"a"
.p2align 6
.amdhsa_kernel {name}
  .amdhsa_next_free_vgpr 512
  .amdhsa_next_free_sgpr 102
  .amdhsa_accum_offset 256
  .amdhsa_group_segment_fixed_size 0
  .amdhsa_kernarg_size 96
  .amdhsa_user_sgpr_count 2
  .amdhsa_user_sgpr_kernarg_segment_ptr 1
  .amdhsa_system_sgpr_workgroup_id_x 1
.end_amdhsa_kernel
"""
HEADER = open("cdna_kernels/" + NAME + ".s.ref").read().split("; Override launch")[0]

def build(out):
    k, slow = gen()
    errs = []
    for nm, pr in (("k", k), ("slow", slow)):
        resolve(pr)
        errs += check(pr.trace(), nm)
        if nm == 'k': errs += check_tags(pr.trace())
    for e in errs[:40]: print("HAZARD", e)
    if errs: print(len(errs), "problems")
    nm = NAME + "_kernel"
    s = HEADER + f"; @launch grid=(256,1,1) block=(256,1,1) lds={LDS_TOTAL}\n"
    s += '.amdgcn_target "amdgcn-amd-amdhsa--gfx950"\n.text\n'
    s += f".globl {nm}\n.p2align 8\n.type {nm},@function\n{nm}:\n{k.text()}{slow.text()}CODE_END:\n"
    s += KD.format(name=nm)
    open(out, "w").write(s)
    return len(errs)

if __name__ == "__main__":
    out = sys.argv[1] if len(sys.argv) > 1 else "cdna_kernels/" + NAME + ".s"
    STAMPS = "stamps" in sys.argv[2:]
    for a in sys.argv[2:]:
        if "=" in a: OPT[a.split("=")[0]] = int(a.split("=")[1])
    if OPT.get("dot2"): HEAD, TAIL = 28, 9
    sys.exit(1 if build(out) else 0)
```

```python
import sys, struct, math
from asmlib import *

NAME = "recurrent_scan__sliding_block_cached__glu_gated_glu__prompt"
WS_XN = 0
XN_BYTES = 2 << 20
WS_FLG = 3 << 20
WS_ACT = 4 << 20
ACT_KS = 368
ACT_BYTES = 64 * ACT_KS * 1024
WS_PART = 32 << 20
PART_BYTES = 8 << 20
WS_DBG = 64 << 20
LOG2E = 1.4426950408889634
def f2u(x): return struct.unpack("<I", struct.pack("<f", x))[0]
QSCALE = f2u(LOG2E / math.sqrt(128.0))
STAMPS = False
OPT = {}
SC = " sc1"
def LSC(): return "" if OPT.get("plainld") else (" sc1 nt" if OPT.get("ntld") else " sc1")

def vr(b, n=1): return f"v{b}" if n == 1 else f"v[{b}:{b+n-1}]"
def ar(b, n=1): return f"a{b}" if n == 1 else f"a[{b}:{b+n-1}]"
def S4(b): return f"s[{b}:{b+3}]"
def lines(s): return [x.strip() for x in s.strip().split("\n") if x.strip()]
def singles(l): return [[x] for x in l]

def srd_l(d, lo, hi, nbytes, add=None):
    out = [f"s_mov_b32 s{d}, s{lo}", f"s_mov_b32 s{d+1}, s{hi}"] if add is None else [f"s_add_u32 s{d}, s{lo}, {add}", f"s_addc_u32 s{d+1}, s{hi}, 0"]
    return out + [f"s_mov_b32 s{d+2}, {nbytes}", f"s_mov_b32 s{d+3}, 0x00020000"]
def srd(p, *a, **k): p.e(srd_l(*a, **k))

def stamp(p, k, ph=0):
    if OPT.get("ph", 0) != ph and k != 0: return
    if STAMPS: p.e(f"{'s_memtime' if OPT.get('cyc') else 's_memrealtime'} s[{76+2*k}:{77+2*k}]")
def stamp_flush(p, n):
    if not STAMPS: return
    if OPT.get("dbgst"):
        p.e(f"s_load_dwordx2 s[60:61], s[0:1], 80\ns_waitcnt lgkmcnt(0) vmcnt(0)\ns_cmp_lg_u32 s{S_W}, 0\ns_cbranch_scc1 K_END")
        srd(p, 4, 60, 61, 256)
        p.e("v_mov_b32 v0, 0\ns_mov_b64 exec, 1")
        for k in range(n):
            p.e(f"s_sub_u32 s3, s{76+2*k}, s{S_EP}\ns_add_u32 s3, s3, 100\nv_mov_b32 v2, s3\nbuffer_atomic_add v2, v0, s[4:7], 0 offen offset:{8+4*k} sc1\ns_nop 1")
            if k in (0, n - 1): p.e(f"buffer_atomic_umax v2, v0, s[4:7], 0 offen offset:{4 if k == 0 else 56} sc1\ns_nop 1")
        p.e("s_waitcnt vmcnt(0)")
        return
    p.e("s_load_dwordx2 s[60:61], s[0:1], 88\ns_waitcnt lgkmcnt(0) vmcnt(0)")
    srd(p, 4, 60, 61, 1 << 20, add=WS_DBG)
    p.e(f"s_lshl_b32 s3, s2, 8\ns_lshl_b32 s70, s{S_W}, 6\ns_add_u32 s3, s3, s70\nv_mov_b32 v0, 0")
    for k in range(n):
        p.e(f"v_mov_b32 v2, s{76+2*k}\nbuffer_store_dword v2, v0, s[4:7], s3 offen offset:{4*k}\ns_nop 1")
    p.e("s_waitcnt vmcnt(0)")

def mfma(d, a, b, c): return f"v_mfma_f32_32x32x16_bf16 {d}, {a}, {b}, {c}"

S_X = 4
S_WQ, S_WG, S_WU, S_XN, S_K, S_V, S_ACT = 8, 12, 16, 20, 24, 28, 32
S_WO, S_OUT, S_PT, S_WD = 8, 28, 24, 64
S_W, S_J, S_RB, S_W2K, S_W1K = 36, 37, 38, 39, 40
S_DT, S_DQ, S_GM, S_BT, S_KT, S_VT = 41, 42, 43, 44, 45, 46
S_LOOP, S_FLAG, S_ROT2 = 47, 48, 49
S_C0, S_NL2E = 50, 52
S_T0, S_T1, S_T2 = 54, 55, 56
S_HOFF, S_OOFF, S_PF = 57, 58, 59
S_EP, S_FO = 62, 63
S_FLG, S_DBG = 68, 72
S_W4K = 100
S_ONES = 51
S_PFD = 101
V_PFW = 251
K_SSW, K_SSA, K_SR32, K_CT, K_KQ, K_SPO, K_CNT, K_SST = 45, 46, 47, 48, 49, 50, 51, 59
K_SLD, K_SWO, K_SA, K_SLB = 72, 73, 74, 75
K_QD = 38
V_AQ, V_AG, V_OQ, V_OG, V_OB0, V_OB1 = 192, 200, 206, 207, 208, 209
V_K, V_V, V_OK0, V_OK1, V_OV, V_ST0, V_ST1 = 210, 218, 222, 223, 224, 225, 226
V_L = 228
V_T = 230
V_PFA, V_PFD, V_FL, V_PR = 252, 253, 254, 255
V_FL2 = 227
V_LP = 246
Q_XR, Q_OX, Q_CA, Q_CT, Q_CS, Q_ST, Q_BP, Q_EP, Q_SC = 128, 136, 138, 140, 156, 160, 164, 172, 176
S_XT, S_W8K = 44, 3
Q_PX, Q_PW = 180, 181
K_SGO = 3
K_VSW, K_VSA, K_VL16, K_VL, K_VRB, K_VX = 192, 193, 194, 195, 196, 199
K_VRA, K_VB0, K_VB1, K_VW0, K_VW1, K_VA0, K_VA2 = 210, 216, 217, 218, 219, 220, 222
def QACC(t, b): return (t*2 + b) * 16
def GACC(a, b): return 64 + (a*2 + b) * 16
A_KF, A_VF = 192, 224
def QF(b, s): return ((s >> 1)*2 + b)*8 + (s & 1)*4
def SB(par, b): return 64 + par*32 + b*16
def PB(par, b, u): return 128 + par*16 + b*8 + u*4
def NEGM(b): return 160 + b*16
def OACC(t, b): return (t*2 + b) * 16
SLOT = 16384
KKSLOT = 6 * SLOT
def wslot(t): return (6 + t % 4) * SLOT
def xslot(t): return ((t + 1) % 3) * 32768
LDS_CS = 7 * SLOT
def gslot(t): return (4 + t) * SLOT if t < 6 else (t - 6) * SLOT
def kslot(g): return ((g + 1) % 5) * 32768
LDS_LN = 0
LDS_FLAG = 3 * SLOT + 8192
LDS_TOTAL = 163840

def FSH(): return OPT.get('fsh', 7)
def SYO_(sy): return sy * (1024 if FSH() == 2 else 4)
STAT0, PFL0 = 32768, 65536
def flag_store(sy, vd, vz, tag="FS", one=None):
    body = [f"v_mov_b32 v{vd}, s{S_EP}", f"v_mov_b32 v{vz}, 0", "s_mov_b64 exec, 1",
            Ins(f"buffer_store_dword v{vd}, v{vz}, {S4(S_FLG)}, s{S_FO} offen offset:{SYO_(sy)} sc1", "OPT_FS" if one else tag),
            "s_mov_b64 exec, -1"]
    if one and OPT.get("one", 1): body = [f"s_cmp_lg_u32 s{S_W}, 0", f"s_cbranch_scc1 FS_{one}"] + body + [Ins(f"FS_{one}:")]
    return body
def poll_issue(sy, goff, tag, vfl=None):
    return Ins(f"buffer_load_dword v{V_PR}, v{vfl or V_FL}, {S4(S_FLG)}, s{goff} offen offset:{SYO_(sy)} sc1", tag)
def poll_check(p, lbl, sy, goff, tag, cnt, vfl=None):
    p.e(Wait(vm=[tag]))
    p.e(f"v_cmp_ne_u32 vcc, s{S_EP}, v{V_PR}\ns_mov_b32 s{cnt}, 0\ns_cbranch_vccz {lbl}_OK")
    p.label(f"{lbl}_P")
    p.e("s_sleep 2")
    p.e(poll_issue(sy, goff, "OPT_POLL", vfl))
    p.e(f"""
    s_add_u32 s{cnt}, s{cnt}, 1
    s_waitcnt vmcnt(0)
    v_cmp_ne_u32 vcc, s{S_EP}, v{V_PR}
    s_cmp_gt_u32 s{cnt}, 0x40000
    s_cbranch_scc1 {lbl}_OK
    s_cbranch_vccnz {lbl}_P
    """)
    p.label(f"{lbl}_OK")

def setup(p):
    T = V_T; L = T + 1
    p.e("s_cmp_ge_u32 s2, 256\ns_cbranch_scc1 K_END")
    p.e("s_load_dwordx8 s[60:67], s[0:1], 0")
    p.e("s_getpc_b64 s[42:43]")
    p.label("CODE0")
    p.e("s_load_dwordx4 s[68:71], s[0:1], 48\ns_load_dwordx4 s[72:75], s[0:1], 80")
    stamp(p, 0)
    if OPT.get("cp0", 1):
        p.e(f"v_and_b32 v1, {OPT.get('cp0n', 31)}, v0\nv_lshlrev_b32 v1, 7, v1")
        p.e(f"global_load_dword v{V_PFD}, v1, s[42:43]", tag="PF")
    if OPT.get("cpf", 2) == 1:
        p.e(f"v_lshlrev_b32 v1, 7, v0\nv_add_u32 v2, 32768, v1\nv_min_u32 v2, CODE_END-CODE0-4, v2")
        p.e(f"global_load_dword v{V_PFD}, v1, s[42:43]", tag="PF")
        p.e(f"global_load_dword v{V_PFD}, v2, s[42:43]", tag="PF")
    p.e(f"""
    v_lshrrev_b32 v{T}, 6, v0
    v_and_b32 v{L}, 63, v0
    v_and_b32 v3, 7, v{L}
    v_readfirstlane_b32 s{S_W}, v{T}
    v_lshrrev_b32 v4, 3, v{L}
    v_lshlrev_b32 v5, 10, v3
    v_lshl_add_u32 v5, v4, 4, v5
    v_lshl_add_u32 v5, v{T}, 8, v5
    s_lshl_b32 s3, s2, 13
    s_and_b32 s{S_T0}, s2, 7
    s_lshr_b32 s{S_T1}, s2, 3
    s_and_b32 s{S_T1}, s{S_T1}, 3
    s_lshr_b32 s{S_RB}, s2, 5
    s_lshl_b32 s{S_J}, s{S_T0}, 2
    s_add_u32 s{S_J}, s{S_J}, s{S_T1}
    s_lshl_b32 s{S_W2K}, s{S_W}, 11
    s_lshl_b32 s{S_W1K}, s{S_W}, 10
    s_lshl_b32 s{S_W4K}, s{S_W}, 12
    s_mul_i32 s{S_DT}, s{S_T1}, {OPT.get('roth', 0)}
    s_add_u32 s{S_DT}, s{S_DT}, s{S_RB}
    s_and_b32 s{S_DT}, s{S_DT}, {OPT.get('rotm', 7)}
    s_lshl_b32 s{S_ROT2}, s{S_RB}, 2
    s_add_u32 s{S_ROT2}, s{S_ROT2}, s{S_T1}
    s_lshr_b32 s{S_ROT2}, s{S_ROT2}, 1
    s_lshl_b32 s{S_ROT2}, s{S_ROT2}, 13
    s_waitcnt lgkmcnt(0)
    """)
    stamp(p, 1, 5)
    srd(p, S_X, 60, 61, 2097152)
    p.e(f"buffer_load_dwordx4 v[8:11], v5, {S4(S_X)}, s3 offen", tag="X")
    p.e(f"buffer_load_dwordx4 v[12:15], v5, {S4(S_X)}, s3 offen offset:128", tag="X")
    if OPT.get("cpf", 2) == 2:
        p.e(f"""
        v_and_b32 v1, 3, v{L}
        v_lshl_add_u32 v1, v{T}, 2, v1
        s_lshr_b32 s{S_T2}, s2, 3
        s_lshl_b32 s{S_T2}, s{S_T2}, 11
        v_lshlrev_b32 v1, 7, v1
        v_add_u32 v1, s{S_T2}, v1
        v_min_u32 v1, CODE_END-CODE0-4, v1
        """)
        p.e(f"global_load_dword v{V_PFD}, v1, s[42:43]", tag="PF")
    srd(p, S_XN, 74, 75, XN_BYTES, add=WS_XN)
    srd(p, S_ACT, 74, 75, ACT_BYTES, add=WS_ACT)
    p.e(f"s_add_u32 s{S_KT}, s74, {WS_FLG}\ns_addc_u32 s{S_VT}, s75, 0")
    p.e(f"s_mov_b32 s{S_DBG+2}, 256\ns_mov_b32 s{S_DBG+3}, 0x00020000")
    p.e(f"s_lshl_b32 s{S_T1}, s{S_T0}, 19\ns_add_u32 s{S_T1}, s{S_T1}, {1536*256}")
    srd(p, S_K, 62, 63, 131072, add=f"s{S_T1}")
    srd(p, S_V, 64, 65, 131072, add=f"s{S_T1}")
    p.e(f"""
    s_lshl_b32 s{S_FO}, s2, {FSH()}
    v_and_b32 v{V_FL}, 31, v{L}
    v_lshlrev_b32 v{Q_EP+3}, 3, v{V_FL}
    v_lshlrev_b32 v{V_FL}, {FSH()}, v{V_FL}
    v_mov_b32 v{Q_EP+2}, 0
    s_or_b32 s{S_T1}, s2, s{S_W}
    s_cmp_lg_u32 s{S_T1}, 0
    s_cbranch_scc1 EPD
    s_memrealtime s[60:61]
    s_waitcnt lgkmcnt(0)
    s_or_b32 s{S_EP}, s60, 1
    v_mov_b32 v{Q_EP}, s{S_EP}
    s_mov_b64 exec, 1
    """)
    p.e(f"buffer_store_dword v{Q_EP}, v{Q_EP+2}, {S4(S_DBG)}, 0 offen sc1", tag="OPT_EP")
    p.e("s_mov_b64 exec, -1")
    p.label("EPD")
    p.e(f"""
    v_lshrrev_b32 v{T+2}, 4, v{L}
    v_and_b32 v{T+3}, 15, v{L}
    v_lshlrev_b32 v{T+4}, 2, v{T+2}
    v_xor_b32 v{T+4}, v{T+3}, v{T+4}
    v_lshlrev_b32 v{T+4}, 4, v{T+4}
    v_lshl_add_u32 v{T+5}, v{T}, 4, v{T+2}
    v_lshl_add_u32 v{V_OQ}, v{T+5}, 13, v{T+4}
    s_lshl_b32 s{S_T1}, s{S_J}, 8
    s_sub_u32 s{S_T2}, {4194304}, s{S_T1}
    """)
    srd(p, S_WQ, 66, 67, f"s{S_T2}", add=f"s{S_T1}")
    p.e(f"""
    v_lshrrev_b32 v{T+6}, 1, v4
    v_xor_b32 v{T+7}, v3, v{T+6}
    v_lshlrev_b32 v{T+7}, 4, v{T+7}
    v_lshl_add_u32 v{Q_OX}, v4, 10, v{T+7}
    s_lshl_b32 s{S_T1}, s{S_RB}, 18
    s_lshl_b32 s{S_T2}, s{S_W}, 16
    s_add_u32 s{S_T1}, s{S_T1}, s{S_T2}
    v_add_u32 v{Q_OX}, s{S_T1}, v{Q_OX}
    v_xor_b32 v{Q_OX+1}, 64, v{Q_OX}
    s_lshl_b32 s{S_XT}, s{S_DT}, 7
    s_lshl_b32 s{S_PF}, s{S_W}, 13
    """)
    if OPT.get("coop", 1):
        p.e(f"""
        s_and_b32 s{S_T1}, s{S_J}, 3
        s_lshl_b32 s{S_T1}, s{S_T1}, 16
        s_lshl_b32 s{S_T2}, s{S_RB}, 18
        s_add_u32 s{S_T1}, s{S_T1}, s{S_T2}
        s_lshl_b32 s{S_T2}, s{S_W}, 14
        s_add_u32 s{S_T1}, s{S_T1}, s{S_T2}
        v_bfe_u32 v{T+6}, v{L}, 4, 1
        v_add_u32 v{T+6}, s{S_DT}, v{T+6}
        v_lshlrev_b32 v{T+7}, 10, v{T+3}
        v_add_u32 v{T+7}, s{S_T1}, v{T+7}
        """)
        for k in range(4):
            p.e(f"v_add_u32 v{T+8}, {2*k}, v{T+6}\nv_and_b32 v{T+8}, 7, v{T+8}\nv_lshl_add_u32 v{Q_PX+k}, v{T+8}, 7, v{T+7}")
            if k == 0: p.e(f"buffer_load_dword v{V_PFD}, v{Q_PX}, {S4(S_X)}, 0 offen", tag="PF")
    p.mark0 = len(p.cur)
    p.e(f"""
    s_lshr_b32 s{S_HOFF}, s{S_T0}, 1
    s_mul_i32 s{S_HOFF}, s{S_HOFF}, 7
    s_and_b32 s{S_T1}, s{S_J}, 7
    s_add_u32 s{S_HOFF}, s{S_HOFF}, s{S_T1}
    s_cmp_eq_u32 s{S_T1}, 7
    s_cselect_b32 s{S_OOFF}, 1, 0
    s_lshl_b32 s{S_T1}, s{S_HOFF}, 7
    s_sub_u32 s{S_T2}, {512*3584}, s{S_T1}
    s_cmp_lg_u32 s{S_OOFF}, 0
    s_cselect_b32 s{S_T2}, 0, s{S_T2}
    """)
    srd(p, S_WG, 68, 69, f"s{S_T2}", add=f"s{S_T1}")
    srd(p, S_WU, 70, 71, f"s{S_T2}", add=f"s{S_T1}")
    srd(p, S_FLG, S_KT, S_VT, 262144)
    p.e(f"""
    s_mov_b32 s{S_C0}, 0x{QSCALE:08x}
    s_mov_b32 s{S_NL2E}, 0x{f2u(-LOG2E):08x}
    s_mov_b32 s{S_NL2E+1}, 0x{f2u(-LOG2E):08x}
    s_mov_b32 s{S_FLAG}, 0
    s_mov_b32 s{S_KT}, s{S_ROT2}
    s_mov_b32 s{S_VT}, s{S_ROT2}
    s_lshl_b32 s{S_HOFF}, s{S_HOFF}, 12
    s_add_u32 s{S_HOFF}, s{S_HOFF}, {256*1024}
    s_cmp_lg_u32 s{S_OOFF}, 0
    s_cselect_b32 s{S_HOFF}, 0x40000000, s{S_HOFF}
    s_lshl_b32 s{S_OOFF}, s{S_J}, 13
    {"s_mov_b32 s%d, 0x40000000" % S_OOFF if OPT.get("nost") else ""}
    {"s_mov_b32 s%d, 0x40000000" % S_HOFF if OPT.get("nost") else ""}
    v_lshrrev_b32 v6, 1, v4
    v_lshlrev_b32 v6, 10, v6
    v_and_b32 v7, 1, v4
    v_lshl_add_u32 v6, v7, 9, v6
    v_lshl_add_u32 v6, v3, 4, v6
    v_lshl_add_u32 v6, v{T}, 13, v6
    v_add_u32 v17, 4096, v6
    v_lshlrev_b32 v16, 4, v3
    v_add_u32 v16, {LDS_LN}, v16
    v_lshl_add_u32 v7, v{T}, 2, v16
    v_lshrrev_b32 v{T+2}, 5, v{L}
    v_bfe_u32 v{T+3}, v{L}, 4, 1
    v_bfe_u32 v{T+4}, v{L}, 2, 2
    v_and_b32 v{T+5}, 3, v{L}
    v_and_b32 v{T+6}, 1, v{T+5}
    v_lshrrev_b32 v{T+7}, 1, v{T+5}
    v_lshl_add_u32 v{T+6}, v{T+6}, 1, v{T+7}
    v_lshlrev_b32 v{T+7}, 5, v{T+3}
    v_lshl_add_u32 v{T+8}, v{T+6}, 3, v{T+7}
    v_lshl_add_u32 v{T+9}, v{T+5}, 3, v{T+7}
    v_lshl_add_u32 v{T+10}, v{T+2}, 3, v{T+4}
    v_lshl_add_u32 v{T+11}, v{T+10}, 8, v{T+8}
    v_add_u32 v{T+11}, 0x10000, v{T+11}
    """)
    for t in range(4):
        p.e(f"""
        v_xor_b32 v{T+12}, {t}, v{T+4}
        v_lshl_add_u32 v{V_AQ+t}, v{T+12}, 6, v{T+11}
        v_add_u32 v{V_AQ+4+t}, 0x10000, v{V_AQ+t}
        """)
    p.e(f"""
    v_xor_b32 v{T+12}, s{S_W}, v{T+4}
    v_lshl_add_u32 v{Q_CA}, v{T+12}, 6, v{T+11}
    v_add_u32 v{Q_CA+1}, 0x10000, v{Q_CA}
    v_and_b32 v{T+12}, 31, v{L}
    v_bfe_u32 v{T+13}, v{L}, 1, 3
    v_lshlrev_b32 v{T+12}, 7, v{T+12}
    v_add_u32 v{T+12}, s{S_PF}, v{T+12}
    """)
    for u in range(4):
        p.e(f"""
        v_add_u32 v{T+14}, {2*u}, v{T+2}
        v_xor_b32 v{T+14}, v{T+14}, v{T+13}
        v_lshl_add_u32 v{Q_XR+u}, v{T+14}, 4, v{T+12}
        v_add_u32 v{Q_XR+4+u}, 0x10000, v{Q_XR+u}
        """)

def deferred_setup():
    T = V_T; L = T + 1; A, B = S_LOOP, S_PFD
    out = lines(f"""
    s_lshl_b32 s{A}, s{S_RB}, 6
    v_add_u32 v227, s{A}, v{L}
    v_mul_u32_u24 v227, 3584, v227
    v_lshrrev_b32 v{T+3}, 4, v{L}
    v_and_b32 v{T+5}, 15, v{L}
    v_lshlrev_b32 v{T+6}, 2, v{T+3}
    v_xor_b32 v{T+6}, v{T+5}, v{T+6}
    v_lshlrev_b32 v{T+6}, 4, v{T+6}
    v_lshl_add_u32 v{T+7}, v{T}, 3, v{T+3}
    v_lshl_add_u32 v{V_OV}, v{T+7}, 8, v{T+6}
    v_xor_b32 v{T+6}, v{T+5}, v{T+7}
    v_and_b32 v{T+6}, 15, v{T+6}
    v_lshlrev_b32 v{T+6}, 4, v{T+6}
    v_lshl_add_u32 v{V_OK0}, v{T+7}, 8, v{T+6}
    v_add_u32 v{T+8}, 4, v{T+7}
    v_xor_b32 v{T+6}, v{T+5}, v{T+8}
    v_and_b32 v{T+6}, 15, v{T+6}
    v_lshlrev_b32 v{T+6}, 4, v{T+6}
    v_lshl_add_u32 v{V_OK1}, v{T+7}, 8, v{T+6}
    v_and_b32 v{T+7}, 7, v{L}
    v_and_b32 v{T+8}, 1, v{T+3}
    v_lshlrev_b32 v{T+8}, 2, v{T+8}
    v_xor_b32 v{T+7}, v{T+7}, v{T+8}
    v_lshlrev_b32 v{T+7}, 4, v{T+7}
    v_lshrrev_b32 v{T+6}, 3, v{L}
    v_lshl_add_u32 v{T+6}, v{T}, 4, v{T+6}
    v_mul_u32_u24 v{T+6}, 3584, v{T+6}
    v_add_u32 v{V_OG}, v{T+6}, v{T+7}
    s_lshl_b32 s{B}, s{S_RB}, 3
    s_lshl_b32 s{A}, s{S_W}, 1
    s_add_u32 s{B}, s{B}, s{A}
    s_lshl_b32 s{A}, s{B}, 15
    v_lshlrev_b32 v{T+6}, 4, v{L}
    v_add_u32 v{V_OB0}, s{A}, v{T+6}
    v_add_u32 v{V_OB1}, 32768, v{V_OB0}
    s_mul_i32 s{A}, s{B}, {ACT_KS*1024}
    v_add_u32 v{V_ST0}, s{A}, v{T+6}
    v_add_u32 v{V_ST1}, {ACT_KS*1024}, v{V_ST0}
    v_lshlrev_b32 v{V_PFA}, 7, v{L}
    v_lshl_add_u32 v{T+11}, v{T+2}, 2, v{T+4}
    v_lshl_add_u32 v{T+11}, v{T+11}, 8, v{T+9}
    """)
    for t in range(4):
        out += [f"v_xor_b32 v{T+12}, {t}, v{T+4}", f"v_lshl_add_u32 v{V_V+t}, v{T+12}, 6, v{T+11}"]
    out += [f"v_lshrrev_b32 v{T+14}, 1, v{T+4}", f"v_lshl_add_u32 v{T+11}, v{T+10}, 7, v{T+9}"]
    for t in range(2):
        out += [f"v_xor_b32 v{T+12}, {t}, v{T+14}", f"v_lshl_add_u32 v{V_AG+t}, v{T+12}, 6, v{T+11}",
                f"v_add_u32 v{V_AG+2+t}, 0x10000, v{V_AG+t}", f"v_add_u32 v{V_AG+4+t}, 0x20000, v{V_AG+t}"]
    out += [f"v_and_b32 v{T+12}, 31, v{L}", f"v_lshlrev_b32 v{T+12}, 8, v{T+12}"]
    for s in range(8):
        out += [f"v_add_u32 v{T+14}, {2*s}, v{T+2}", f"v_xor_b32 v{T+14}, v{T+14}, v{T+5}", f"v_lshl_add_u32 v{V_K+s}, v{T+14}, 4, v{T+12}"]
    return out

NW0 = 2
def layernorm(p):
    p.e(f"""
    s_lshr_b32 s{S_T1}, s2, 2
    s_lshl_b32 s{S_T1}, s{S_T1}, 15
    s_and_b32 s{S_T2}, s2, 3
    s_lshl_b32 s{S_T2}, s{S_T2}, 7
    s_add_u32 s3, s{S_T1}, s{S_T2}
    s_mov_b32 s{S_T0}, 0x3b000000
    """)
    stamp(p, 3, 5)
    p.e(Wait(vm=["X"]))
    stamp(p, 4, 5)
    for i in range(8):
        p.e(f"v_lshlrev_b32 v{20+2*i}, 16, v{8+i}\nv_and_b32 v{21+2*i}, 0xffff0000, v{8+i}")
    def reduce(src, off):
        p.e(f"""
        s_nop 1
        v_add_f32_dpp v{src}, v{src}, v{src} row_ror:8 row_mask:0xf bank_mask:0xf
        v_mov_b32 v41, v{src}
        s_nop 1
        v_permlane16_swap_b32 v{src}, v41
        v_add_f32 v{src}, v{src}, v41
        v_mov_b32 v41, v{src}
        s_nop 1
        v_permlane32_swap_b32 v{src}, v41
        v_add_f32 v{src}, v{src}, v41
        ds_write_b32 v7, v{src} offset:{off}
        s_waitcnt lgkmcnt(0)
        s_barrier
        ds_read_b128 v[44:47], v16 offset:{off}
        s_waitcnt lgkmcnt(0)
        v_add_f32 v44, v44, v45
        v_add_f32 v46, v46, v47
        v_add_f32 v40, v44, v46
        """)
    p.e("v_add_f32 v36, v20, v21\nv_add_f32 v37, v22, v23")
    for i in range(2, 8, 2):
        p.e(f"v_add_f32 v36, v36, v{20+2*i}\nv_add_f32 v37, v37, v{21+2*i}\nv_add_f32 v36, v36, v{22+2*i}\nv_add_f32 v37, v37, v{23+2*i}")
    p.e("v_add_f32 v36, v36, v37")
    reduce(36, 0)
    stamp(p, 6, 5)
    p.e(f"v_mul_f32 v48, s{S_T0}, v40")
    p.e("v_mov_b32 v36, 0\nv_mov_b32 v37, 0")
    for i in range(8):
        p.e(f"v_sub_f32 v38, v{20+2*i}, v48\nv_sub_f32 v39, v{21+2*i}, v48\nv_fmac_f32 v36, v38, v38\nv_fmac_f32 v37, v39, v39")
    p.e("v_add_f32 v36, v36, v37")
    reduce(36, 128)
    p.e(f"""
    v_mul_f32 v49, s{S_T0}, v40
    v_cvt_pk_bf16_f32 v49, v49, v49
    v_and_b32 v49, 0xffff0000, v49
    v_add_f32 v49, 0x{f2u(1e-5):08x}, v49
    v_cvt_pk_bf16_f32 v49, v49, v49
    v_and_b32 v49, 0xffff0000, v49
    v_sqrt_f32 v49, v49
    v_cvt_pk_bf16_f32 v48, v48, v48
    v_cvt_pk_bf16_f32 v49, v49, v49
    v_and_b32 v48, 0xffff0000, v48
    v_and_b32 v49, 0xffff0000, v49
    v_rcp_f32 v49, v49
    """)
    for i in range(8):
        a, b = 20 + 2*i, 21 + 2*i
        p.e(f"""
        v_sub_f32 v{a}, v{a}, v48
        v_sub_f32 v{b}, v{b}, v48
        v_cvt_pk_bf16_f32 v38, v{a}, v{b}
        v_lshlrev_b32 v{a}, 16, v38
        v_and_b32 v{b}, 0xffff0000, v38
        v_mul_f32 v{a}, v{a}, v49
        v_mul_f32 v{b}, v{b}, v49
        v_cvt_pk_bf16_f32 v{8+i}, v{a}, v{b}
        """)
        if i == 3: p.e(f"buffer_store_dwordx4 v[8:11], v6, {S4(S_XN)}, s3 offen{SC}")
    p.e(f"buffer_store_dwordx4 v[12:15], v17, {S4(S_XN)}, s3 offen{SC}")
    p.e(f"""
    v_xor_b32 v56, 0x80000000, v48
    v_lshrrev_b32 v57, 16, v56
    v_or_b32 v56, v56, v57
    v_mul_f32 v57, s{S_C0}, v49
    v_lshlrev_b32 v58, 3, v3
    s_lshl_b32 s{S_T1}, s2, 6
    s_add_u32 s{S_T1}, s{S_T1}, {STAT0}
    s_cmp_lg_u32 s{S_W}, 0
    s_cselect_b32 s{S_T1}, 0x40000000, s{S_T1}
    s_mov_b64 exec, 0xff
    """)
    p.e(f"buffer_store_dwordx2 v[56:57], v58, {S4(S_FLG)}, s{S_T1} offen{SC}", tag="XST")
    p.e("s_mov_b64 exec, -1")
    p.e("s_load_dwordx2 s[60:61], s[0:1], 32\ns_load_dwordx2 s[64:65], s[0:1], 64")
    stamp(p, 5, 5)
    w0, x0, w1, x1 = dma_q(0), dma_x(0), dma_q(1), dma_x(1)
    groups = w0 + x0 if OPT.get('coop', 1) else [w0[0], x0[0], x0[4], w0[1], x0[1], x0[5], w0[2], x0[2], x0[6], w0[3], x0[3], x0[7]]
    if OPT.get("early1", 0) == 0: pass
    else: groups += x1 + w1
    if OPT.get("dropw"): groups = x0
    if OPT.get("dropx"): groups = w0 + [x0[7]]
    if OPT.get("dropx") == 2: groups = w0[:1] + [x0[7]]
    body = p.cur[p.mark0:]; del p.cur[p.mark0:]
    every = OPT.get("every", 20); cnt = every; f0 = OPT.get("f0", 4)
    for _ in range(min(f0, len(groups))): p.e(groups.pop(0))
    stamp(p, 2, 5)
    for k, ins in enumerate(body):
        p.cur.append(ins); cnt -= 1
        nxt = body[k + 1].t if k + 1 < len(body) else ""
        if cnt <= 0 and groups and ins.t.startswith("v_") and nxt.startswith("v_") and "exec" not in body[k - 1].t and "exec" not in body[k-2].t:
            p.e(groups.pop(0)); cnt = every
    for x in groups: p.e(x)

def dma_q(t):
    tag = f"W{t}"; g = []
    for ii in range(4):
        pre = [f"s_lshl_b32 s{S_DQ}, s{S_DT}, 19", f"s_add_u32 m0, s{S_W4K}, {wslot(t)}", f"s_add_u32 s{S_DT}, s{S_DT}, 1"] if ii == 0 else \
              [f"s_add_u32 m0, s{S_W4K}, {wslot(t)}", f"s_add_u32 s{S_DQ}, s{S_DQ}, {32768-1024}"]
        g.append(pre + [Ins(f"buffer_load_dwordx4 v{V_OQ}, {S4(S_WQ)}, s{S_DQ} offen offset:{ii*1024} lds", tag)])
    g[-1].append(f"s_and_b32 s{S_DT}, s{S_DT}, 7")
    return g
def dma_x(t):
    g = []
    for ii in range(8):
        g.append([f"s_add_u32 m0, s{S_PF}, {xslot(t)+ii*1024}", f"s_add_u32 s{S_GM}, s{S_XT}, {ii*8192}",
                  Ins(f"buffer_load_dwordx4 v{Q_OX+(ii&1)}, {S4(S_X)}, s{S_GM} offen lds", f"X{t}")])
    g[-1] += [f"s_add_u32 s{S_XT}, s{S_XT}, 128", f"s_and_b32 s{S_XT}, s{S_XT}, 0x3ff"]
    return g
def dma_g(tag):
    return [[f"s_mul_i32 s{S_DQ}, s{S_DT}, {64*3584}", f"s_mov_b32 m0, s{S_GM}", f"s_add_u32 s{S_DT}, s{S_DT}, 1",
             Ins(f"buffer_load_dwordx4 v{V_OG}, {S4(S_WG)}, s{S_DQ} offen lds", tag)],
            [f"s_add_u32 m0, s{S_GM}, 8192", f"s_and_b32 s{S_DT}, s{S_DT}, 7",
             Ins(f"buffer_load_dwordx4 v{V_OG}, {S4(S_WU)}, s{S_DQ} offen lds", tag)],
            [f"s_add_u32 m0, s{S_GM}, 8192", f"s_add_u32 s{S_DQ}, s{S_DQ}, {8*3584-1024}",
             Ins(f"buffer_load_dwordx4 v{V_OG}, {S4(S_WU)}, s{S_DQ} offen offset:1024 lds", tag)],
            [f"s_mov_b32 m0, s{S_GM}", f"s_add_u32 s{S_GM}, s{S_GM}, {SLOT}",
             Ins(f"buffer_load_dwordx4 v{V_OG}, {S4(S_WG)}, s{S_DQ} offen offset:1024 lds", tag)]]
def dma_k(ldsoff, tag):
    return [[f"s_add_u32 m0, s{S_W2K}, {ldsoff}", f"s_nop 0",
             Ins(f"buffer_load_dwordx4 v{V_OK0}, {S4(S_K)}, s{S_KT} offen lds", tag)],
            [f"s_add_u32 m0, s{S_W2K}, {ldsoff}", f"s_nop 0",
             Ins(f"buffer_load_dwordx4 v{V_OK1}, {S4(S_K)}, s{S_KT} offen offset:1024 lds", tag),
             f"s_add_u32 s{S_KT}, s{S_KT}, 8192", f"s_and_b32 s{S_KT}, s{S_KT}, 0x1ffff"]]
def dma_v(ldsoff, tag):
    return [[f"s_add_u32 m0, s{S_W2K}, {ldsoff}", f"s_nop 0",
             Ins(f"buffer_load_dwordx4 v{V_OV}, {S4(S_V)}, s{S_VT} offen lds", tag)],
            [f"s_add_u32 m0, s{S_W2K}, {ldsoff}", f"s_nop 0",
             Ins(f"buffer_load_dwordx4 v{V_OV}, {S4(S_V)}, s{S_VT} offen offset:1024 lds", tag),
             f"s_add_u32 s{S_VT}, s{S_VT}, 8192", f"s_and_b32 s{S_VT}, s{S_VT}, 0x1ffff"]]
def dma_d(pp):
    sl = (pp % 4) * SLOT; tag = f"D{pp%4}"
    return dma_v(sl, tag) + dma_k(sl + 8192, tag)
def dma_kk(): return dma_k(KKSLOT, "KK") + dma_k(KKSLOT + 8192, "KK")

def BR1(s, b): return 32 + (s & 1)*8 + b*4
def BR2(s, b): return 160 + (s % 12)*8 + b*4
def AB1(par, a): return par*16 + a*4
def AB2(par, a): return 128 + par*16 + a*4
def bload(s, ring, pre):
    u = s & 3; tag = f"{pre}{s}"
    SC = LSC()
    g = [[Ins(f"buffer_load_dwordx4 {ar(ring(s,0),4)}, v{V_OB0}, {S4(S_XN)}, s{S_BT} offen offset:{u*1024}{SC}", tag)],
         [Ins(f"buffer_load_dwordx4 {ar(ring(s,1),4)}, v{V_OB1}, {S4(S_XN)}, s{S_BT} offen offset:{u*1024}{SC}", tag)]]
    if u == 3 and not OPT.get("bfix"): g[1] += [f"s_add_u32 s{S_BT}, s{S_BT}, 4096", f"s_and_b32 s{S_BT}, s{S_BT}, 0x7fff"]
    return g
def areads_q(s):
    t, u = s >> 2, s & 3
    sl = wslot(t); hi = sl // 65536; sl -= hi * 65536
    out = [Ins(f"ds_read_b64_tr_b16 {ar(AB1(s&1,a)+2*e,2)}, v{V_AQ+4*(hi-1)+a} offset:{sl+(16*u+4*e)*256}", f"A{s}") for a in range(4) for e in range(2)]
    xs = xslot(t); xh = xs // 65536; xs -= xh * 65536
    xb = [Ins(f"ds_read_b128 {ar(BR1(s,b),4)}, v{Q_XR+4*xh+u} offset:{xs+b*4096}", f"A{s}") for b in range(2)]
    return out[:2] + xb + out[2:]
def csreads(s):
    t, u = s >> 2, s & 3
    sl = wslot(t); hi = sl // 65536; sl -= hi * 65536
    return [Ins(f"ds_read_b64_tr_b16 v[{Q_CT+(s%4)*4+2*e}:{Q_CT+(s%4)*4+2*e+1}], v{Q_CA+hi-1} offset:{sl+(16*u+4*e)*256}", f"CS{s}") for e in range(2)]
def csdots(s):
    if OPT.get("nocs"): return []
    return [f"v_dot2c_f32_bf16 v{Q_CS+(i&1)}, s{S_ONES}, v{Q_CT+(s%4)*4+i}" for i in range(4)]
def areads_g(s):
    t, u = s >> 2, s & 3
    sl = gslot(t); hi = sl // 65536; sl -= hi * 65536
    return [Ins(f"ds_read_b64_tr_b16 {ar(AB2(s&1,a)+2*e,2)}, v{V_AG+2*hi+(a&1)} offset:{sl+(a>>1)*8192+(16*u+4*e)*128}", f"AG{s}") for a in range(4) for e in range(2)]
def kreads(off, tag):
    return [Ins(f"ds_read_b128 {ar(A_KF+4*s,4)}, v{V_K+s} offset:{off}", tag) for s in range(8)]
def kreads_hi(off, tag, tmp):
    return [[f"v_add_u32 v{tmp+(s&3)}, 0x10000, v{V_K+s}",
             Ins(f"ds_read_b128 {ar(A_KF+4*s,4)}, v{tmp+(s&3)} offset:{off-65536}", tag)] for s in range(8)]
def vreads(sl, tag):
    return [Ins(f"ds_read_b64_tr_b16 {ar(A_VF+(u*4+t)*4+2*e,2)}, v{V_V+t} offset:{sl+(16*u+8*e)*256}", tag) for u in range(2) for t in range(4) for e in range(2)]

def p1q(p):
    AP = 64
    p.e(f"""
    s_mov_b32 s{S_ONES}, 0x3f803f80
    v_mov_b32 v{Q_CS}, 0
    v_mov_b32 v{Q_CS+1}, 0
    s_lshl_b32 s{S_T0}, s{S_RB}, {5+FSH()}
    s_lshl_b32 s{S_T2}, s{S_RB}, 11
    s_lshl_b32 s{S_T1}, s{S_W}, 9
    s_add_u32 s{S_T2}, s{S_T2}, s{S_T1}
    s_add_u32 s{S_T2}, s{S_T2}, {STAT0}
    """)
    if OPT.get("coop", 1): p.e(f"buffer_load_dword v{V_PFD}, v{Q_PX+1}, {S4(S_X)}, 0 offen", tag="PF")
    p.e(f"buffer_load_dword v{V_PR}, v{Q_EP+2}, {S4(S_DBG)}, 0 offen sc1", tag="EPL")
    p.e(Wait(vm=["W0", "X0"])); stamp(p, 7, 5); p.e("s_barrier"); stamp(p, 8, 5)
    for x in areads_q(0) + csreads(0): p.e(x)
    p.e(f"s_waitcnt lgkmcnt(0)\ns_mov_b32 s{S_WD+2}, {1792*1024}\ns_mov_b32 s{S_WD+3}, 0x00020000")
    sc = Sched()
    def publish(p):
        p.e(Wait(vm=["EPL"]))
        p.e(f"v_readfirstlane_b32 s{S_EP}, v{V_PR}\ns_mov_b32 s{S_T1}, 0\ns_cmp_lg_u32 s{S_EP}, 0\ns_cbranch_scc1 EP_OK")
        p.label("EP_P")
        p.e("s_sleep 2")
        p.e(f"buffer_load_dword v{V_PR}, v{Q_EP+2}, {S4(S_DBG)}, 0 offen sc1", tag="OPT_POLL")
        p.e(f"""
        s_add_u32 s{S_T1}, s{S_T1}, 1
        s_waitcnt vmcnt(0)
        v_readfirstlane_b32 s{S_EP}, v{V_PR}
        s_cmp_gt_u32 s{S_T1}, 0x40000
        s_cbranch_scc1 EP_OK
        s_cmp_eq_u32 s{S_EP}, 0
        s_cbranch_scc1 EP_P
        """)
        p.label("EP_OK")
        p.e(flag_store(0, Q_EP, Q_EP + 1, one='X'))
    PUB = OPT.get("pub", 1); P1I = OPT.get("p1i", 16); P1C = OPT.get("p1c", 22)
    for s in range(32):
        t, u = s >> 2, s & 3
        mf = []
        for a in range(4):
            for b in range(2):
                d = vr(QACC(a, b), 16)
                mf.append(mfma(d, ar(AB1(s & 1, a), 4), ar(BR1(s, b), 4), d if s else "0"))
        g0 = sc.add(mf)
        if u == 3:
            vm = [f"W{t+1}", f"X{t+1}"] if t + 1 < 8 else ["KK"]
            if t == PUB: vm.append("XST")
            sc.before(g0, [Wait(vm=vm, lg=[f"A{s}", f"CS{s}"] if s < 31 else ["CSW"]), "s_barrier"])
            if t == PUB: sc.before(g0, publish)
        sc.before(g0, Wait(lg=[f"A{s}", f"CS{s}"] if s <= 28 else [f"A{s}"]))
        if s == 0: sc.before(g0, lambda p: (stamp(p, 1), stamp(p, 9, 5)))
        if s == 8: sc.before(g0, lambda p: stamp(p, 10, 5))
        if s % 4 == 0: sc.before(g0, lambda p, s=s: stamp(p, 1 + s // 4, 1))
        if s + 1 < 32: sc.spread(areads_q(s + 1), g0, g0 + 5)
        else:
            sc.spread([Ins(f"ds_read_b64 {ar(AP+4*a,2)}, v{Q_EP} offset:{a*512}", "AP") for a in range(4)] + kreads_hi(KKSLOT, "KF", V_T), g0, g0 + 6)
        if s <= 26: sc.spread(csreads(s + 1), g0 + 5, g0 + 6)
        if s == 27: sc.spread(csreads(28) + csreads(29), g0 + 5, g0 + 7)
        if s == 28: sc.spread(csreads(30) + csreads(31), g0 + 5, g0 + 7)
        if s <= 28: sc.spread(csdots(s), g0, g0 + 4)
        if s == 29:
            sc.before(g0, Wait(lg=["CS31"]))
            C = Q_CS
            sc.spread(csdots(29) + csdots(30) + csdots(31) + lines(f"""
            s_nop 2
            v_add_f32 v{C}, v{C}, v{C+1}
            v_mov_b32 v{C+1}, v{C}
            s_nop 1
            v_permlane32_swap_b32 v{C}, v{C+1}
            v_add_f32 v{C}, v{C}, v{C+1}
            v_cvt_pk_bf16_f32 v{C+1}, v{C}, v{C}
            v_and_b32 v{C+1}, 0xffff0000, v{C+1}
            v_sub_f32 v{C+1}, v{C}, v{C+1}
            v_cvt_pk_bf16_f32 v{C+2}, v{C}, v{C+1}
            v_and_b32 v{C}, 0xffff0000, v{C+2}
            v_sub_f32 v{C+1}, v{C+1}, v{C}
            v_cvt_pk_bf16_f32 v{C+3}, v{C+1}, 0
            v_mbcnt_lo_u32_b32 v{Q_EP}, -1, 0
            v_mbcnt_hi_u32_b32 v{Q_EP}, -1, v{Q_EP}
            v_lshlrev_b32 v{Q_EP}, 3, v{Q_EP}
            v_add_u32 v{Q_EP}, {LDS_CS}, v{Q_EP}
            s_lshl_b32 s{S_T1}, s{S_W}, 9
            v_add_u32 v{Q_EP+1}, s{S_T1}, v{Q_EP}
            """) + [Ins(f"ds_write_b64 v{Q_EP+1}, v[{C+2}:{C+3}]", "CSW")], g0, g0 + 14)
        if s == 8: sc.spread([f"v_accvgpr_write_b32 a{AP+4*a+2+i}, 0" for a in range(4) for i in range(2)] +
                             [f"v_mov_b32 v{Q_BP+i}, 0" for i in range(8)], g0, g0 + 8)
        if s == P1I: sc.fixed(g0 + 1, [poll_issue(0, S_T0, "P1")])
        if s == P1C:
            sc.before(g0, lambda p: poll_check(p, "SY1", 0, S_T0, "P1", S_T1))
            for b in range(2):
                sc.fixed(g0 + 1 + 2*b, [Ins(f"buffer_load_dwordx2 v[{Q_ST+2*b}:{Q_ST+2*b+1}], v{Q_EP+3}, {S4(S_FLG)}, s{S_T2} offen offset:{b*256}{SC}", "ST")])
        if s == 28:
            sc.before(g0, [Wait(vm=["ST"]), "s_mov_b32 exec_hi, 0"] +
                      [x for b in range(2) for x in (f"v_mov_b32 v{Q_BP+4*b}, v{Q_ST+2*b}", f"v_and_b32 v{Q_BP+4*b+1}, 0xffff, v{Q_ST+2*b}")] +
                      ["s_mov_b32 exec_hi, -1"] +
                      [x for b in range(2) for x in (f"v_mov_b32 v{Q_SC+2*b}, v{Q_ST+2*b+1}", f"v_mov_b32 v{Q_SC+2*b+1}, v{Q_ST+2*b+1}")])
    sc.spread(deferred_setup(), 4, 92)
    g0 = sc.add([mfma(vr(QACC(a, b), 16), ar(AP + 4*a, 4), vr(Q_BP + 4*b, 4), vr(QACC(a, b), 16)) for b in range(2) for a in range(4)])
    sc.before(g0, Wait(lg=["AP"]))
    for t in range(2 if OPT.get('early1') else 1, 8):
        for x in dma_x(t): sc.queue("X", x, max(0, 8*(4*(t - 3) + 3)), 8*(4*t - 1) - 60)
        for x in dma_q(t): sc.queue("W", x, max(0, 8*(4*(t - 4) + 3)), 8*(4*t - 1) - 64)
    for x in dma_kk(): sc.queue("KV", x, 8*19, 8*31 - 64)
    for i in range(2):
        for x in dma_d(i): sc.queue("KV", x, 8*23, 260)
    if OPT.get("coop", 1):
        for k, gp in enumerate((OPT.get("cx2", 50), OPT.get("cx3", 114))):
            sc.fixed(gp, [Ins(f"buffer_load_dword v{V_PFD}, v{Q_PX+2+k}, {S4(S_X)}, 0 offen", "PF")])
    sc.fixed(OPT.get("pfg", 140), [Ins(f"buffer_load_dword v{V_PFD}, v227, {S4(S_WG)}, 0 offen", "PF")])
    sc.fixed(OPT.get("pfu", 220), [Ins(f"buffer_load_dword v{V_PFD}, v227, {S4(S_WU)}, 0 offen", "PF")])
    sc.emit(p)
    if sc.report: print("p1q late:", sc.report)
    if OPT.get("coop", 1):
        p.e(f"s_and_b32 s{S_DT}, s{S_J}, 3\ns_lshl_b32 s{S_DT}, s{S_DT}, 1\ns_add_u32 s{S_DT}, s{S_DT}, s{S_RB}\ns_and_b32 s{S_DT}, s{S_DT}, 7")
    p.e(f"s_lshl_b32 s{S_BT}, s{S_DT}, 12")

def qconv():
    out = []
    for k in range(64):
        b = (k >> 3) & 1
        out.append([f"v_pk_mul_f32 v[{2*k}:{2*k+1}], v[{2*k}:{2*k+1}], v[{Q_SC+2*b}:{Q_SC+2*b+1}]"])
        out.append([f"v_cvt_pk_bf16_f32 v{k}, v{2*k}, v{2*k+1}"])
    res = [out[0]]
    for k in range(64):
        if k + 1 < 64: res.append(out[2*(k+1)])
        res.append(out[2*k+1])
    return res

def qk_mf(par, first_c):
    mf = []
    for s in range(8):
        for b in range(2):
            d = vr(SB(par, b), 16)
            mf.append(mfma(d, ar(A_KF + 4*s, 4), vr(QF(b, s), 4), d if s else first_c(b)))
    return mf
def pv_mf(par):
    mf = []
    for u in range(2):
        for t in range(4):
            for b in range(2):
                d = ar(OACC(t, b), 16)
                mf.append(mfma(d, ar(A_VF + (u*4+t)*4, 4), vr(PB(par, b, u), 4), d))
    return mf
def softmax_items(par):
    out = []
    for u in range(2):
        for b in range(2):
            for i in range(0, 8, 2):
                r = SB(par, b) + 8*u + i
                out.append([f"v_exp_f32 v{r}, v{r}"])
                out.append([f"v_exp_f32 v{r+1}, v{r+1}"])
                if OPT.get("dot2"):
                    out.append(["s_nop 0"] if False else [f"v_cvt_pk_bf16_f32 v{PB(par,b,u)+i//2}, v{r}, v{r+1}"])
                    out.append([f"v_dot2c_f32_bf16 v{V_L+b}, s{S_ONES}, v{PB(par,b,u)+i//2}"])
                elif OPT.get("pkl"):
                    out.append([f"v_cvt_pk_bf16_f32 v{PB(par,b,u)+i//2}, v{r}, v{r+1}"])
                    out.append([f"v_pk_add_f32 v[{V_LP+2*b}:{V_LP+2*b+1}], v[{V_LP+2*b}:{V_LP+2*b+1}], v[{r}:{r+1}]"])
                else:
                    out.append([f"v_add_f32 v{V_L+b}, v{V_L+b}, v{r}"])
                    out.append([f"v_add_f32 v{V_L+b}, v{V_L+b}, v{r+1}"])
                    out.append([f"v_cvt_pk_bf16_f32 v{PB(par,b,u)+i//2}, v{r}, v{r+1}"])
    if OPT.get("dot2") or OPT.get("pkl"):
        e = [out[i:i+2] for i in range(0, 64, 4)]; c = [out[i+2:i+4] for i in range(0, 64, 4)]
        res = list(e[0])
        for k in range(16):
            if k + 1 < 16: res += e[k+1]
            else: res += [["s_nop 0"]]
            res += c[k]
        return res
    return out
HEAD, TAIL = 35, 10
def period(p, pp, qk=True, dma=True, kread=True, nexthead=True, last=False, extra=(), endvm=(), xds=()):
    par = pp & 1; sl = (pp % 4) * SLOT
    sm = softmax_items(par); smn = softmax_items(par ^ 1)
    negm = lambda b: vr(NEGM(b), 16)
    d = (dma_d(pp + 3) if dma else []) + list(extra)
    sc = Sched()
    if qk:
        sc.add(qk_mf(par ^ 1, negm))
        sc.spread(vreads(sl, "VF"), 0, 10); sc.spread(sm[HEAD:len(sm)-TAIL], 0, 16)
    else:
        for x in vreads(sl, "VF"): p.e(x)
        for x in sm[HEAD:len(sm)-TAIL]: p.e(x)
        p.e("s_nop 1")
    g0 = sc.add(pv_mf(par))
    sc.before(g0, Wait(lg=["VF"]))
    sc.spread(sm[len(sm)-TAIL:], g0, g0 + 3)
    if kread: sc.spread(kreads(sl + 8192, "KF"), g0 + 3, g0 + 12)
    if nexthead: sc.spread(smn[:HEAD], g0 + 3, g0 + 16)
    if xds: sc.spread(list(xds), g0 + 3, g0 + 12)
    n = len(sc.mf)
    for k, x in enumerate(d): sc.fixed(1 + (k * (n - 2)) // max(len(d), 1), x)
    sc.emit(p)
    if not last:
        p.e(Wait(vm=[f"D{(pp+1)%4}"] + list(endvm), lg=["KF"])); p.e("s_barrier")

def maxtree(p, par, dst, init=True):
    for b in range(2):
        s0 = SB(par, b)
        if init: p.e(f"v_max3_f32 v{dst+b}, v{s0}, v{s0+1}, v{s0+2}"); rest = list(range(3, 16))
        else: rest = list(range(16))
        while len(rest) >= 2:
            p.e(f"v_max3_f32 v{dst+b}, v{dst+b}, v{s0+rest[0]}, v{s0+rest[1]}"); rest = rest[2:]
        if rest: p.e(f"v_max_f32 v{dst+b}, v{dst+b}, v{s0+rest[0]}")
def negm_from(p, m):
    p.e(f"""
    v_mov_b32 v{m+2}, v{m}
    v_mov_b32 v{m+3}, v{m+1}
    s_nop 1
    v_permlane32_swap_b32 v{m}, v{m+2}
    v_permlane32_swap_b32 v{m+1}, v{m+3}
    v_max_f32 v{m}, v{m}, v{m+2}
    v_max_f32 v{m+1}, v{m+1}, v{m+3}
    """)
    for b in range(2):
        for i in range(16): p.e(f"v_sub_f32 v{NEGM(b)+i}, 0, v{m+b}")

def attention(p):
    T = V_T
    p.label("K2_ATT")
    p.e(Wait(lg=["KF"]))
    zero = [f"v_accvgpr_write_b32 a{i}, 0" for i in range(128)]
    sc = Sched(); sc.add(qk_mf(0, lambda b: "0")); sc.spread(zero, 0, 16)
    for k, x in enumerate(dma_d(2)): sc.fixed(1 + 4*k, x)
    sc.emit(p)
    for g in kreads_hi(KKSLOT + 8192, "KF", T + 8): p.e(g)
    for i in range(4): p.e(f"v_mov_b32 v{V_LP+i}, 0")
    p.e(f"v_mov_b32 v{V_L}, 0\nv_mov_b32 v{V_L+1}, 0\ns_add_u32 s{S_GM}, s{S_W2K}, {gslot(0)}")
    p.e(f"s_cmp_lg_u32 s{S_FLAG}, 0\ns_cbranch_scc1 K2_HAVEM")
    maxtree(p, 0, T)
    negm_from(p, T)
    p.label("K2_HAVEM")
    for b in range(2):
        for i in range(16): p.e(f"v_add_f32 v{SB(0,b)+i}, v{SB(0,b)+i}, v{NEGM(b)+i}")
    for x in softmax_items(0)[:HEAD]: p.e(x)
    p.e(Wait(vm=["D0"], lg=["KF"])); p.e("s_barrier")
    p.e(f"s_mov_b32 s{S_LOOP}, 0")
    stamp(p, 3)
    p.e(f"""
    s_lshr_b32 s{S_T0}, s2, 3
    s_lshl_b32 s{S_T0}, s{S_T0}, 2
    s_add_u32 s{S_T0}, s{S_T0}, s{S_W}
    s_and_b32 s{S_PF}, s2, 3
    s_lshl_b32 s{S_PF}, s{S_PF}, 7
    s_add_u32 s{S_PF}, s{S_PF}, s{S_T0}
    s_lshl_b32 s{S_PF}, s{S_PF}, 13
    s_lshl_b32 s{S_PFD}, s{S_T0}, 13
    """)
    pfo = [[Ins(f"buffer_load_dword v{V_PFD}, v{V_PFA}, {S4(S_WO)}, s{S_PF} offen", "PF")]]
    pfd = [[Ins(f"buffer_load_dword v{V_PFD}, v{V_PFA}, {S4(S_WD)}, s{S_PFD} offen", "PF"), f"s_xor_b32 s{S_PFD}, s{S_PFD}, 0x100000"]]
    if OPT.get("nopfo"): pfo = []
    if OPT.get("nopfd"): pfd = []
    period(p, 0)
    p.loop_begin()
    for i in range(1, 5): period(p, i, extra=dma_g("G") if i in (1, 3) else (pfo if i == 2 else pfd))
    p.loop_end("K2_LOOP", 3, [f"s_add_u32 s{S_LOOP}, s{S_LOOP}, 1", f"s_cmp_lt_u32 s{S_LOOP}, 3", "s_cbranch_scc1 K2_LOOP"])
    period(p, 13, dma=False, extra=bload(0, BR2, "C") + bload(1, BR2, "C") + bload(2, BR2, "C") + bload(3, BR2, "C"))
    g6 = dma_g("G6"); g6[0] = [f"s_mov_b32 s{S_GM}, s{S_W2K}"] + g6[0]
    period(p, 14, dma=False, kread=False, extra=g6 + dma_g("G7"), endvm=["G"])
    period(p, 15, qk=False, dma=False, kread=False, nexthead=False, last=True,
           extra=bload(4, BR2, "C") + bload(5, BR2, "C") + bload(6, BR2, "C") + bload(7, BR2, "C"), xds=areads_g(0))

V_LI = 48
def oepi_head(p):
    T = V_T
    if OPT.get("pkl"): p.e(f"v_add_f32 v{V_L}, v{V_LP}, v{V_LP+1}\nv_add_f32 v{V_L+1}, v{V_LP+2}, v{V_LP+3}")
    p.e(f"""
    v_mov_b32 v{T}, v{V_L}
    v_mov_b32 v{T+1}, v{V_L+1}
    s_nop 1
    v_permlane32_swap_b32 v{V_L}, v{T}
    v_permlane32_swap_b32 v{V_L+1}, v{T+1}
    v_add_f32 v{V_L}, v{V_L}, v{T}
    v_add_f32 v{V_L+1}, v{V_L+1}, v{T+1}
    v_add_f32 v{T+1}, v{V_L}, v{V_L+1}
    s_mov_b32 s{S_T0}, 0x5d800000
    v_cmp_ngt_f32 vcc, s{S_T0}, v{T+1}
    s_nop 1
    s_cmp_lg_u64 vcc, 0
    s_cselect_b32 s{S_T1}, 1, 0
    v_mov_b32 v{T}, s{S_T1}
    v_mov_b32 v{T+1}, {LDS_FLAG}
    v_mov_b32 v{T+2}, s{S_W}
    v_lshl_add_u32 v{T+2}, v{T+2}, 2, v{T+1}
    ds_write_b32 v{T+2}, v{T}
    """)
    p.e(Wait(vm=["G7"])); p.e("s_waitcnt lgkmcnt(0)\ns_barrier")
    p.e(f"""
    ds_read_b128 v[{T+4}:{T+7}], v{T+1}
    s_add_u32 s{S_T2}, s{S_OOFF}, 4096
    s_waitcnt lgkmcnt(0)
    v_or_b32 v{T+4}, v{T+4}, v{T+5}
    v_or3_b32 v{T+4}, v{T+4}, v{T+6}, v{T+7}
    s_nop 0
    v_readfirstlane_b32 s{S_T1}, v{T+4}
    s_nop 0
    s_andn2_b32 s{S_T1}, s{S_T1}, s{S_FLAG}
    s_cmp_lg_u32 s{S_T1}, 0
    s_cbranch_scc1 K2_SLOW
    v_rcp_f32 v{V_LI}, v{V_L}
    v_rcp_f32 v{V_LI+2}, v{V_L+1}
    s_nop 0
    v_mov_b32 v{V_LI+1}, v{V_LI}
    v_mov_b32 v{V_LI+3}, v{V_LI+2}
    """)
def oepi_groups():
    out = []; k = 0
    for t in range(4):
        for b in range(2):
            for uu in range(2):
                o0 = OACC(t, b) + 8*uu
                tmp = (k % 4) * 8; pk = 32 + (k % 4) * 4; k += 1
                g = [f"v_accvgpr_read_b32 v{tmp+i}, a{o0+i}" for i in range(8)]
                g += [f"v_mul_f32 v{tmp+i}, v{tmp+i}, v{V_LI+2*b}" for i in range(8)]
                g += [f"v_cvt_pk_bf16_f32 v{pk+i//2}, v{tmp+i}, v{tmp+i+1}" for i in range(0, 8, 2)]
                off = (2*t + uu) * 1024
                so = S_OOFF if off < 4096 else S_T2
                g.append(Ins(f"buffer_store_dwordx4 v[{pk}:{pk+3}], v{V_ST0+b}, {S4(S_ACT)}, s{so} offen offset:{off % 4096}{SC}", "OST"))
                out.append(g)
    return out

def slowpath():
    p = Prog(); T = V_T
    p.label("K2_SLOW")
    p.e(f"""
    s_mov_b32 s{S_FLAG}, 1
    s_mov_b32 s{S_KT}, 0
    s_mov_b32 s{S_LOOP}, 0
    s_sub_u32 s{S_BT}, s{S_BT}, 8192
    s_and_b32 s{S_BT}, s{S_BT}, 0x7fff
    v_mov_b32 v{T}, 0xff800000
    v_mov_b32 v{T+1}, 0xff800000
    s_waitcnt vmcnt(0) lgkmcnt(0)
    """)
    p.loop_begin()
    p.e("s_barrier")
    for g in dma_k(8192, "X"): p.e(g)
    p.e("s_waitcnt vmcnt(0)\ns_barrier")
    for x in kreads(8192, "KF"): p.e(x)
    p.e("s_waitcnt lgkmcnt(0)")
    for x in qk_mf(0, lambda b: "0"): p.e(x)
    p.e("s_nop 11")
    maxtree(p, 0, T, init=False)
    p.loop_end("K2_SLOWL", 16, [f"s_add_u32 s{S_LOOP}, s{S_LOOP}, 1", f"s_cmp_lt_u32 s{S_LOOP}, 16", "s_cbranch_scc1 K2_SLOWL"])
    negm_from(p, T)
    p.e(f"s_barrier\ns_mov_b32 s{S_KT}, s{S_ROT2}\ns_mov_b32 s{S_VT}, s{S_ROT2}")
    for g in dma_kk(): p.e(g)
    for i in range(2):
        for g in dma_d(i): p.e(g)
    p.e("s_waitcnt vmcnt(0)\ns_barrier")
    for g in kreads_hi(KKSLOT, "KF", T + 8): p.e(g)
    p.e("s_branch K2_ATT")
    return p

def late_setup():
    T = V_T; VL = K_VL
    return lines(f"""
    v_mbcnt_lo_u32_b32 v{VL}, -1, 0
    v_mbcnt_hi_u32_b32 v{VL}, -1, v{VL}
    s_and_b32 s{K_KQ}, s2, 3
    s_bfe_u32 s{K_QD}, s2, 0x10005
    s_xor_b32 s{K_QD}, s{K_QD}, s{K_KQ}
    s_lshr_b32 s{S_T0}, s2, 3
    s_and_b32 s{K_CT}, s{S_T0}, 3
    s_lshr_b32 s{K_SR32}, s{S_T0}, 2
    s_lshl_b32 s{K_SR32}, s{K_SR32}, 2
    s_and_b32 s{S_T0}, s2, 4
    s_lshr_b32 s3, s2, 6
    s_add_u32 s3, s3, s{S_T0}
    s_lshl_b32 s3, s3, {5+FSH()}
    s_lshl_b32 s{S_T0}, s{S_T0}, 3
    s_add_u32 s{K_SR32}, s{K_SR32}, s{S_T0}
    v_lshlrev_b32 v{K_VL16}, 4, v{VL}
    v_and_b32 v{T}, 3, v{VL}
    v_bfe_u32 v{T+1}, v{VL}, 2, 1
    v_lshl_add_u32 v{T}, v{T}, 3, v{T+1}
    s_lshl_b32 s{S_T0}, s{K_KQ}, 1
    v_add_u32 v{T}, s{S_T0}, v{T}
    v_lshlrev_b32 v{V_FL2}, {FSH()}, v{T}
    v_lshrrev_b32 v{T}, 4, v{VL}
    v_and_b32 v{T+1}, 15, v{VL}
    v_lshlrev_b32 v{T+2}, 2, v{T}
    v_xor_b32 v{T+1}, v{T+1}, v{T+2}
    v_lshlrev_b32 v{T+1}, 4, v{T+1}
    v_lshl_add_u32 v{K_VSW}, v{T}, 10, v{T+1}
    s_lshl_b32 s{S_T0}, s{S_W}, 12
    s_lshl_b32 s{S_T1}, s{K_CT}, 8
    s_add_u32 s{S_T0}, s{S_T0}, s{S_T1}
    v_add_u32 v{K_VSW}, s{S_T0}, v{K_VSW}
    s_add_u32 s{S_T0}, s{K_SR32}, s{S_W}
    s_mul_i32 s{S_T0}, s{S_T0}, {ACT_KS*1024}
    v_add_u32 v{K_VSA}, s{S_T0}, v{K_VL16}
    s_lshl_b32 s{K_SSW}, s{K_KQ}, 20
    s_lshl_b32 s{K_SSA}, s{K_KQ}, 16
    v_lshrrev_b32 v{T}, 5, v{VL}
    v_bfe_u32 v{T+1}, v{VL}, 2, 2
    v_bfe_u32 v{T+2}, v{VL}, 4, 1
    v_and_b32 v{T+3}, 3, v{VL}
    v_and_b32 v{T+4}, 1, v{T+3}
    v_lshrrev_b32 v{T+5}, 1, v{T+3}
    v_lshl_add_u32 v{T+4}, v{T+4}, 1, v{T+5}
    v_lshlrev_b32 v{T+5}, 5, v{T+2}
    v_lshl_add_u32 v{T+4}, v{T+4}, 3, v{T+5}
    v_lshl_add_u32 v{T+5}, v{T}, 2, v{T+1}
    v_lshl_add_u32 v{T+6}, v{T+5}, 8, v{T+4}
    s_and_b32 s{S_T0}, s{S_W}, 1
    s_lshl_b32 s{S_T0}, s{S_T0}, 1
    v_xor_b32 v{T+7}, s{S_T0}, v{T+1}
    v_lshl_add_u32 v{K_VRA}, v{T+7}, 6, v{T+6}
    v_xor_b32 v{T+7}, 1, v{T+7}
    v_lshl_add_u32 v{K_VRA+1}, v{T+7}, 6, v{T+6}
    v_add_u32 v{K_VRA+2}, 0x10000, v{K_VRA}
    v_add_u32 v{K_VRA+3}, 0x10000, v{K_VRA+1}
    v_add_u32 v{K_VRA+4}, 0x20000, v{K_VRA}
    v_add_u32 v{K_VRA+5}, 0x20000, v{K_VRA+1}
    s_and_b32 s{S_T0}, s{S_W}, 2
    s_lshl_b32 s{S_T0}, s{S_T0}, 12
    v_add_u32 v{K_VRB}, s{S_T0}, v{K_VL16}
    v_add_u32 v{K_VRB+1}, 0x10000, v{K_VRB}
    v_add_u32 v{K_VRB+2}, 0x20000, v{K_VRB}
    s_lshl_b32 s{K_SLB}, s{S_W}, 14
    s_add_u32 s{K_SLB}, s{K_SLB}, 65536
    v_lshl_add_u32 v{T+6}, v{T+5}, 7, v{T+4}
    v_add_u32 v{T+6}, s{K_SLB}, v{T+6}
    v_lshrrev_b32 v{T+7}, 1, v{T+1}
    v_lshl_add_u32 v{K_VA0}, v{T+7}, 6, v{T+6}
    v_xor_b32 v{T+7}, 1, v{T+7}
    v_lshl_add_u32 v{K_VA0+1}, v{T+7}, 6, v{T+6}
    v_subrev_u32 v{K_VA2}, 0x10000, v{K_VA0}
    v_subrev_u32 v{K_VA2+1}, 0x10000, v{K_VA0+1}
    s_mul_i32 s{K_SWO}, s{S_W}, {28*16384}
    s_mul_i32 s{K_SA}, s{S_W}, {28*1024}
    s_add_u32 s{K_SA}, s{K_SA}, {256*1024}
    s_and_b32 s{S_T1}, s{K_QD}, 2
    s_add_u32 s{S_T1}, s{S_T1}, s{K_SR32}
    s_mul_i32 s{S_T0}, s{S_T1}, {ACT_KS*1024}
    v_add_u32 v{K_VB0}, s{S_T0}, v{K_VL16}
    v_add_u32 v{K_VB1}, {ACT_KS*1024}, v{K_VB0}
    s_lshr_b32 s{S_T0}, s{S_W}, 1
    s_add_u32 s{S_T0}, s{S_T0}, s{S_T1}
    s_lshl_b32 s{S_T0}, s{S_T0}, 15
    s_and_b32 s{S_T1}, s{S_W}, 1
    s_lshl_b32 s{S_T1}, s{S_T1}, 6
    s_add_u32 s{S_T0}, s{S_T0}, s{S_T1}
    s_lshl_b32 s{S_T1}, s{K_CT}, 8
    s_and_b32 s{K_SPO}, s{K_QD}, 1
    s_lshl_b32 s{K_SPO}, s{K_SPO}, 7
    s_add_u32 s{S_T1}, s{S_T1}, s{K_SPO}
    s_add_u32 s{S_T0}, s{S_T0}, s{S_T1}
    v_and_b32 v{T+6}, 31, v{VL}
    v_lshlrev_b32 v{T+6}, 10, v{T+6}
    v_lshl_add_u32 v{T+6}, v{T}, 4, v{T+6}
    v_add_u32 v{K_VX}, s{S_T0}, v{T+6}
    v_lshrrev_b32 v{T+6}, 3, v{VL}
    v_and_b32 v{T+7}, 7, v{VL}
    v_lshlrev_b32 v{T+5}, 2, v{T+2}
    v_xor_b32 v{T+7}, v{T+7}, v{T+5}
    v_lshlrev_b32 v{T+7}, 4, v{T+7}
    v_lshl_add_u32 v{K_VW0}, v{T+6}, 10, v{T+7}
    v_add_u32 v{K_VW0}, s{S_T1}, v{K_VW0}
    v_add_u32 v{K_VW1}, {8192-1024}, v{K_VW0}
    s_lshr_b32 s{S_T0}, s2, 2
    s_lshl_b32 s{K_SPO}, s{S_T0}, {7 if FSH() == 2 else 4+FSH()}
    s_add_u32 s{K_SPO}, s{K_SPO}, {PFL0}
    s_lshl_b32 s{S_T0}, s{S_T0}, 17
    s_lshl_b32 s{S_T1}, s{S_W}, 15
    s_add_u32 s{K_SST}, s{S_T0}, s{S_T1}
    s_lshl_b32 s{S_T1}, s{K_KQ}, 13
    s_add_u32 s{K_SST}, s{K_SST}, s{S_T1}
    s_lshl_b32 s{S_T1}, s{K_QD}, 15
    s_add_u32 s{S_T0}, s{S_T0}, s{S_T1}
    s_lshl_b32 s{S_T1}, s{S_W}, 11
    s_add_u32 s{K_SLD}, s{S_T0}, s{S_T1}
    """)
def ks_sw(g):
    return [[f"s_add_u32 m0, s{S_W1K}, {kslot(g)+st*4096}", "s_nop 0",
             Ins(f"buffer_load_dwordx4 v{K_VSW}, {S4(S_WO)}, s{K_SSW} offen lds", f"sw{g}"), f"s_add_u32 s{K_SSW}, s{K_SSW}, {0 if OPT.get('wfix') else 16384}"] for st in range(4)]
def ks_sa(g):
    out = [[f"s_add_u32 m0, s{S_W4K}, {kslot(g)+16384}", "s_nop 0",
            Ins(f"buffer_load_dwordx4 v{K_VSA}, {S4(S_ACT)}, s{K_SSA} offen offset:{st*1024}{LSC()} lds", f"sa{g}")] for st in range(4)]
    out[-1].append(f"s_add_u32 s{K_SSA}, s{K_SSA}, {0 if OPT.get('afix') else 4096}")
    return out
def FA(i, nt): return (i % 3)*16 + nt*4
def FB(i, b): return (i % 3)*16 + 8 + b*4
def ks_rd(i):
    g, st = i // 4, i % 4
    sl = kslot(g); hi = sl // 65536; sl -= hi * 65536
    out = [Ins(f"ds_read_b64_tr_b16 {ar(FA(i,nt)+2*e,2)}, v{K_VRA+2*hi+nt} offset:{sl+st*4096+e*2048}", f"f{i}") for nt in range(2) for e in range(2)]
    out += [Ins(f"ds_read_b128 {ar(FB(i,b),4)}, v{K_VRB+hi} offset:{sl+16384+b*4096+st*1024}", f"f{i}") for b in range(2)]
    return out
def BR3(i, b): return 128 + (i % 14)*8 + b*4
def AB3(par, nt): return 240 + par*8 + nt*4
def kbo(i): return (i % 8) * 2048 - (65536 if (i % 16) >= 8 else 0)
def kb_wl(i):
    return [[f"s_add_u32 m0, s{K_SLB}, {kbo(i) & 0xffffffff}", "s_nop 0", Ins(f"buffer_load_dwordx4 v{K_VW0}, {S4(S_WD)}, s{K_SWO} offen lds", f"w{i}")],
            [f"s_add_u32 m0, s{K_SLB}, {kbo(i) & 0xffffffff}", "s_nop 0", Ins(f"buffer_load_dwordx4 v{K_VW1}, {S4(S_WD)}, s{K_SWO} offen offset:1024 lds", f"w{i}"),
             f"s_add_u32 s{K_SWO}, s{K_SWO}, {0 if OPT.get('wfix') else 16384}"]]
def kb_bl(i):
    return [[Ins(f"buffer_load_dwordx4 {ar(BR3(i,0),4)}, v{K_VB0}, {S4(S_ACT)}, s{K_SA} offen{LSC()}", f"b{i}")],
            [Ins(f"buffer_load_dwordx4 {ar(BR3(i,1),4)}, v{K_VB1}, {S4(S_ACT)}, s{K_SA} offen{LSC()}", f"b{i}"), f"s_add_u32 s{K_SA}, s{K_SA}, {0 if OPT.get('afix') else 1024}"]]
def kb_rd(i):
    return [Ins(f"ds_read_b64_tr_b16 {ar(AB3(i&1,nt)+2*e,2)}, v{(K_VA0 if (i % 16) < 8 else K_VA2)+nt} offset:{(i%8)*2048+e*1024}", f"a{i}") for nt in range(2) for e in range(2)]

def hepi_groups():
    T = V_T; out = []; k = 0
    for t in range(2):
        for b in range(2):
            for uu in range(2):
                g0 = GACC(t, b) + 8*uu; u0 = GACC(t + 2, b) + 8*uu
                pk = u0; k += 1
                g = [f"v_pk_mul_f32 v[{g0+i}:{g0+i+1}], v[{g0+i}:{g0+i+1}], s[{S_NL2E}:{S_NL2E+1}]" for i in range(0, 8, 2)]
                g += [f"v_exp_f32 v{g0+i}, v{g0+i}" for i in range(8)]
                g += [f"v_add_f32 v{g0+i}, 1.0, v{g0+i}" for i in range(8)]
                g += [f"v_rcp_f32 v{g0+i}, v{g0+i}" for i in range(8)]
                g += ["s_nop 0"] + [f"v_pk_mul_f32 v[{g0+i}:{g0+i+1}], v[{g0+i}:{g0+i+1}], v[{u0+i}:{u0+i+1}]" for i in range(0, 8, 2)]
                g += [f"v_cvt_pk_bf16_f32 v{pk+i//2}, v{g0+i}, v{g0+i+1}" for i in range(0, 8, 2)]
                g.append(Ins(f"buffer_store_dwordx4 v[{pk}:{pk+3}], v{V_ST0+b}, {S4(S_ACT)}, s{S_HOFF} offen offset:{(2*t+uu)*1024}{SC}", "HST"))
                out.append(g)
    return out

class Sched2(Sched):
    def __init__(self, dense_from): Sched.__init__(self); self.dense = dense_from
    def _free(self, g):
        if g >= self.dense: return g not in self.vm
        return Sched._free(self, g)

def late(p):
    OSP = OPT.get("osp", 8); OBAR = OPT.get("obar", 18); HFIRST = OPT.get("hfirst", 4)
    HSP = OPT.get("hsp", 0); HBAR = OPT.get("hbar", 14); SYH = OPT.get("syh", 47)
    PSP = OPT.get("psp", 2); PFL = OPT.get("pfl", 14); PPI = OPT.get("ppi", 25)
    KS0, KB0 = 256, 512
    NSA0 = 5
    ESY = OPT.get('esy', 29)
    NSE = min(4, (32 - ESY)) if ESY else 0
    sc = Sched2(OPT.get("dense", KB0 - 8))
    FT = V_T + 18
    p.e("s_load_dwordx2 s[60:61], s[0:1], 88\ns_load_dwordx2 s[72:73], s[0:1], 72")
    for s in range(32):
        mf = []
        for a in range(4):
            for b in range(2):
                d = vr(GACC(a, b), 16)
                mf.append(mfma(d, ar(AB2(s & 1, a), 4), ar(BR2(s, b), 4), d if s else "0"))
        g0 = sc.add(mf)
        if s - 1 in (6, 14, 22, 30) or s - 1 == OBAR:
            vm = (["OST"] if s - 1 == OBAR else [])
            sc.before(g0, [Wait(vm=vm, lg=[f"AG{s}"]), "s_barrier"])
        sc.before(g0, Wait(vm=[f"C{s}"], lg=[f"AG{s}"]))
        if s % 4 == 0: sc.before(g0, lambda p, s=s: stamp(p, 1 + s // 4, 2))
        if s == 1: sc.before(g0, ["s_waitcnt lgkmcnt(0)"] + srd_l(S_PT, 60, 61, PART_BYTES, add=WS_PART) + srd_l(S_OUT, 72, 73, 2097152))
        if s == OBAR + 1: sc.fixed(g0, flag_store(1, FT, FT + 1, one='O'))
        if ESY and s == ESY - OPT.get("esl", 4): sc.fixed(g0 + 2, [poll_issue(1, K_SGO, "PO", V_FL2)])
        if ESY and s == ESY: sc.before(g0, lambda p: poll_check(p, "SYO", 1, K_SGO, "PO", K_CNT, V_FL2))
        if s + 1 < 32: sc.spread(areads_g(s + 1), g0, g0 + 4)
        if s >= 8:
            for x in bload(s, BR2, "C"): sc.queue("C", x, max(0, 8*(s - 12) + 7), 8*s - 40)
    for k, grp in enumerate(oepi_groups()):
        e = 5 + OSP*k
        sc.spread(grp[:-1], max(0, e - OSP), e); sc.fixed(e, [grp[-1]])
    assert 5 + OSP*15 < 8*OBAR
    sc.spread(late_setup(), 8, 56)
    for i in range(64):
        g, st = i // 4, i % 4
        mf = []
        for b in range(2):
            for nt in range(2):
                d = vr((nt + 2*b) * 16, 16)
                mf.append(mfma(d, ar(FA(i, nt), 4), ar(FB(i, b), 4), "0" if i == 0 else d))
        g0 = sc.add(mf)
        if i == 0:
            def mid(p):
                stamp(p, 5); stamp(p, 9, 2)
                hg = [x[:-1] if HSP else x for x in hepi_groups()]
                p.e("s_nop 7")
                hf = 0 if ESY else HFIRST
                for k in range(hf):
                    if k == hf - OPT.get("hpoll", 2): p.e(poll_issue(1, K_SGO, "PO", V_FL2))
                    p.e(hg[k])
                stamp(p, 1, 3)
                if not ESY: poll_check(p, "SYO", 1, K_SGO, "PO", K_CNT, V_FL2)
                stamp(p, 6)
                vq = sum((ks_sa(g) for g in range(NSE, NSA0)), [])
                hs = sum(hg[hf:], [])
                first = OPT.get("safirst", 4)
                for x in vq[:first]: p.e(x)
                vq = vq[first:]
                for k, x in enumerate(hs):
                    p.e(x)
                    if k % 10 == 5 and vq: p.e(vq.pop(0))
                for x in vq: p.e(x)
                p.e(Wait(vm=["sw0", "sa0"])); p.e("s_barrier")
                for x in ks_rd(0) + ks_rd(1): p.e(x)
            sc.before(g0, mid)
        if st == 2 and g + 1 < 16:
            sc.before(g0, [Wait(vm=[f"sw{g+1}", f"sa{g+1}"] + (["HST"] if i == HBAR else []), lg=[f"f{i+1}"]), "s_barrier"])
        if i == HBAR: sc.fixed(g0, flag_store(2, FT, FT + 1, one='H'))
        if i == SYH - 5: sc.fixed(g0, [poll_issue(2, 3, "PH")])
        if i == SYH: sc.before(g0, lambda p: (stamp(p, 7), poll_check(p, "SYH", 2, 3, "PH", K_CNT)))
        sc.before(g0, Wait(lg=[f"f{i}"]))
        if i % 8 == 0: sc.before(g0, lambda p, i=i: stamp(p, 2 + i // 8, 3))
        if i + 2 < 64: sc.spread(ks_rd(i + 2), g0, g0 + 4)
        if i == 63: sc.spread([Wait(vm=["w0"])] + kb_rd(0), g0, g0 + 2)
    for g in range(16):
        free = {0: 56, 1: 56, 2: 120, 3: 184, 4: 248}.get(g, KS0 + 4*(4*(g - 5) + 2))
        need = 248 if g == 0 else KS0 + 4*(4*(g - 1) + 2)
        for x in ks_sw(g): sc.queue("sw", x, free, need - 40)
        if g >= NSA0:
            for x in ks_sa(g): sc.queue("sa", x, max(free, KS0), need - 44)
        elif g < NSE:
            for x in ks_sa(g): sc.queue("sa", x, max(free, 8*ESY), 100)
    if HSP:
        for k, grp in enumerate(hepi_groups()): sc.fixed(KS0 + 2 + HSP*k, [grp[-1]])
    assert 2 + HSP*7 < 4*HBAR
    for i in range(28):
        mf = []
        for b in range(2):
            for nt in range(2):
                d = vr(64 + (nt + 2*b) * 16, 16)
                mf.append(mfma(d, ar(AB3(i & 1, nt), 4), ar(BR3(i, b), 4), "0" if i == 0 else d))
        g0 = sc.add(mf)
        if i == 0: sc.before(g0, lambda p: (stamp(p, 8), stamp(p, 10, 3)))
        if i % 4 == 0: sc.before(g0, lambda p, i=i: stamp(p, 1 + i // 4, 4))
        if i + 1 < 28: sc.before(g0, [Wait(vm=[f"w{i+1}", f"b{i}"])] + kb_rd(i + 1))
        else: sc.before(g0, Wait(vm=[f"b{i}"]))
        if i == PFL:
            sc.before(g0, lines(f"""
            s_lshl_b32 s{S_FO}, s{S_W}, {2+FSH()}
            s_add_u32 s{S_FO}, s{S_FO}, s{K_SPO}
            s_lshl_b32 s{S_T0}, s{K_KQ}, {FSH()}
            s_add_u32 s{S_FO}, s{S_FO}, s{S_T0}
            s_lshl_b32 s{S_T0}, s{K_QD}, {2+FSH()}
            s_add_u32 s{K_SPO}, s{K_SPO}, s{S_T0}
            v_and_b32 v{V_FL}, {3 << FSH()}, v{V_FL}
            """) + [Wait(vm=["PSS"])])
            sc.fixed(g0, flag_store(0, FT, FT + 1))
        if i == PPI: sc.fixed(g0, [poll_issue(0, K_SPO, "PP")])
        sc.before(g0, Wait(lg=[f"a{i}"]))
        if i == 0: sc.before(g0, "s_barrier")
        for x in kb_wl(i): sc.queue("w", x, KS0 + 4*50 if i < 8 else (KB0 if i < 16 else KB0 + 4*(i - 16)), KB0 + 4*(i - 1) - 40)
        for x in kb_bl(i): sc.queue("b", x, KS0 + 4*SYH if i < 14 else KB0 + 4*(i - 14) + 3, KB0 + 4*i - 40)
    for k in range(8):
        r = 8*k; pk = 128 + 4*k; e = KB0 + OPT.get('ps0', 6) + PSP*k
        grp = [f"v_cvt_pk_bf16_f32 v{pk+i}, v{r+2*i}, v{r+2*i+1}" for i in range(4)]
        if k == 4: grp.append(f"s_add_u32 s{K_SST}, s{K_SST}, 4096")
        sc.spread(grp, e - 2, e)
        sc.fixed(e, [Ins(f"buffer_store_dwordx4 v[{pk}:{pk+3}], v{K_VL16}, {S4(S_PT)}, s{K_SST} offen offset:{(k%4)*1024}{SC}", "PSS")])
    sc.queue("x", [Ins(f"buffer_load_dwordx4 v[176:179], v{K_VX}, {S4(S_X)}, 0 offen", "X")], KB0 + 64, 700)
    sc.queue("x", [Ins(f"buffer_load_dwordx4 v[180:183], v{K_VX}, {S4(S_X)}, 0 offen offset:32", "X")], KB0 + 64, 700)
    sc.emit(p)
    for gp, grp in sc.vm.items():
        for x in grp:
            if isinstance(x, Ins) and x.tag in [f"sa{g}" for g in range(NSE)]: assert gp < KS0, (gp, x.t)
    if sc.report: print("late:", len(sc.report), sc.report[:60])
    stamp(p, 9); stamp(p, 8, 4)
    T = V_T
    poll_check(p, "SYP", 0, K_SPO, "PP", K_CNT)
    stamp(p, 10)
    for src in range(4):
        p.e(f"buffer_load_dwordx4 v[{144+8*src}:{147+8*src}], v{K_VL16}, {S4(S_PT)}, s{K_SLD} offen{SC}", tag=f"PL{src}")
        p.e(f"buffer_load_dwordx4 v[{148+8*src}:{151+8*src}], v{K_VL16}, {S4(S_PT)}, s{K_SLD} offen offset:1024{SC}", tag=f"PL{src}")
        p.e(f"s_add_u32 s{K_SLD}, s{K_SLD}, 8192")
    p.e(f"""
    v_add_u32 v{T}, s{K_SLB}, v{K_VL16}
    s_add_u32 s{S_T0}, s{S_W4K}, 65536
    v_add_u32 v{T+1}, s{S_T0}, v{K_VL16}
    """)
    for order in range(16):
        r = 64 + 4*order
        p.e(f"ds_write_b128 v{T}, v[{r}:{r+3}] offset:{order*1024}")
    p.e("s_waitcnt lgkmcnt(0)\ns_barrier")
    for sw_ in range(4):
        for rg in range(4):
            d = 64 + sw_*16 + rg*4
            p.e(f"ds_read_b128 v[{d}:{d+3}], v{T+1} offset:{sw_*16384+rg*1024}", tag=f"R{sw_}")
    def pk(op, d, a, b): return f"v_pk_{op}_f32 v[{d}:{d+1}], v[{a}:{a+1}], {b}"
    for i in range(8): p.e(f"v_lshlrev_b32 v{48+2*i}, 16, v{176+i}\nv_and_b32 v{49+2*i}, 0xffff0000, v{176+i}")
    p.e(Wait(lg=["R1"]))
    for i in range(0, 16, 2): p.e(pk("add", 64+i, 64+i, f"v[{80+i}:{81+i}]"))
    p.e("s_waitcnt lgkmcnt(0)")
    for i in range(0, 16, 2): p.e(pk("add", 96+i, 96+i, f"v[{112+i}:{113+i}]"))
    for i in range(0, 16, 2): p.e(pk("add", 64+i, 64+i, f"v[{96+i}:{97+i}]"))
    for i in range(0, 16, 2): p.e(pk("mul", 16+i, 64+i, f"s[{S_NL2E}:{S_NL2E+1}]"))
    for i in range(16): p.e(f"v_exp_f32 v{16+i}, v{16+i}")
    for i in range(16): p.e(f"v_add_f32 v{16+i}, 1.0, v{16+i}")
    for i in range(16): p.e(f"v_rcp_f32 v{16+i}, v{16+i}")
    for i in range(0, 16, 2): p.e(pk("mul", 64+i, 64+i, f"v[{16+i}:{17+i}]"))
    for src in range(4):
        p.e(Wait(vm=[f"PL{src}"]))
        d = 0 if src == 0 else 16
        for i in range(8): p.e(f"v_lshlrev_b32 v{d+2*i}, 16, v{144+8*src+i}\nv_and_b32 v{d+2*i+1}, 0xffff0000, v{144+8*src+i}")
        if src:
            for i in range(0, 16, 2): p.e(pk("add", i, i, f"v[{16+i}:{17+i}]"))
    for i in range(0, 16, 2): p.e(f"v_pk_fma_f32 v[{i}:{i+1}], v[{i}:{i+1}], v[{64+i}:{65+i}], v[{48+i}:{49+i}]")
    for i in range(8): p.e(f"v_cvt_pk_bf16_f32 v{32+i}, v{2*i}, v{2*i+1}")
    p.e(f"""
    buffer_store_dwordx4 v[32:35], v{K_VX}, {S4(S_OUT)}, 0 offen{" sc1" if OPT.get("osc") else ""}
    buffer_store_dwordx4 v[36:39], v{K_VX}, {S4(S_OUT)}, 0 offen offset:32{" sc1" if OPT.get("osc") else ""}
    """)
    stamp(p, 11)

def gen():
    p = Prog()
    setup(p)
    layernorm(p)
    p1q(p)
    stamp(p, 2); stamp(p, 9, 1); stamp(p, 11, 5)
    srd(p, S_WO, 60, 61, 4096*1024)
    p.e("s_nop 7")
    for g in qconv(): p.e(g)
    attention(p)
    stamp(p, 4)
    oepi_head(p)
    late(p)
    stamp_flush(p, 12)
    p.label("K_END")
    p.e("s_endpgm")
    return p, slowpath()

KD = """.section .rodata,"a"
.p2align 6
.amdhsa_kernel {name}
  .amdhsa_next_free_vgpr 512
  .amdhsa_next_free_sgpr 102
  .amdhsa_accum_offset 256
  .amdhsa_group_segment_fixed_size 0
  .amdhsa_kernarg_size 96
  .amdhsa_user_sgpr_count 2
  .amdhsa_user_sgpr_kernarg_segment_ptr 1
  .amdhsa_system_sgpr_workgroup_id_x 1
.end_amdhsa_kernel
"""
HEADER = open("cdna_kernels/" + NAME + ".s.ref").read().split("; Override launch")[0]

def build(out):
    k, slow = gen()
    errs = []
    for nm, pr in (("k", k), ("slow", slow)):
        resolve(pr)
        errs += check(pr.trace(), nm)
        if nm == 'k': errs += check_tags(pr.trace())
    for e in errs[:40]: print("HAZARD", e)
    if errs: print(len(errs), "problems")
    nm = NAME + "_kernel"
    s = HEADER + f"; @launch grid=(256,1,1) block=(256,1,1) lds={LDS_TOTAL}\n"
    s += '.amdgcn_target "amdgcn-amd-amdhsa--gfx950"\n.text\n'
    s += f".globl {nm}\n.p2align 8\n.type {nm},@function\n{nm}:\n{k.text()}{slow.text()}CODE_END:\n"
    s += KD.format(name=nm)
    open(out, "w").write(s)
    return len(errs)

if __name__ == "__main__":
    out = sys.argv[1] if len(sys.argv) > 1 else "cdna_kernels/" + NAME + ".s"
    STAMPS = "stamps" in sys.argv[2:]
    for a in sys.argv[2:]:
        if "=" in a: OPT[a.split("=")[0]] = int(a.split("=")[1])
    if OPT.get("dot2") or OPT.get("pkl"): HEAD, TAIL = 28, 9
    sys.exit(1 if build(out) else 0)
```

```python
import sys, struct, math
from asmlib import *

NAME = "recurrent_scan__sliding_block_cached__glu_gated_glu__prompt"
WS_XN = 0
XN_BYTES = 2 << 20
WS_FLG = 3 << 20
WS_ACT = 4 << 20
ACT_KS = 368
ACT_BYTES = 64 * ACT_KS * 1024
WS_PART = 32 << 20
PART_BYTES = 8 << 20
WS_DBG = 64 << 20
LOG2E = 1.4426950408889634
def f2u(x): return struct.unpack("<I", struct.pack("<f", x))[0]
QSCALE = f2u(LOG2E / math.sqrt(128.0))
STAMPS = False
OPT = {}
SC = " sc1"
def LSC(): return "" if OPT.get("plainld") else (" sc1 nt" if OPT.get("ntld") else " sc1")

def vr(b, n=1): return f"v{b}" if n == 1 else f"v[{b}:{b+n-1}]"
def ar(b, n=1): return f"a{b}" if n == 1 else f"a[{b}:{b+n-1}]"
def S4(b): return f"s[{b}:{b+3}]"
def lines(s): return [x.strip() for x in s.strip().split("\n") if x.strip()]
def singles(l): return [[x] for x in l]

def srd_l(d, lo, hi, nbytes, add=None):
    out = [f"s_mov_b32 s{d}, s{lo}", f"s_mov_b32 s{d+1}, s{hi}"] if add is None else [f"s_add_u32 s{d}, s{lo}, {add}", f"s_addc_u32 s{d+1}, s{hi}, 0"]
    return out + [f"s_mov_b32 s{d+2}, {nbytes}", f"s_mov_b32 s{d+3}, 0x00020000"]
def srd(p, *a, **k): p.e(srd_l(*a, **k))

def stamp(p, k, ph=0):
    if OPT.get("ph", 0) != ph and k != 0: return
    if STAMPS: p.e(f"{'s_memtime' if OPT.get('cyc') else 's_memrealtime'} s[{76+2*k}:{77+2*k}]")
def stamp_flush(p, n):
    if not STAMPS: return
    if OPT.get("dbgst"):
        p.e(f"s_load_dwordx2 s[60:61], s[0:1], 80\ns_waitcnt lgkmcnt(0) vmcnt(0)\ns_cmp_lg_u32 s{S_W}, 0\ns_cbranch_scc1 K_END")
        srd(p, 4, 60, 61, 256)
        p.e("v_mov_b32 v0, 0\ns_mov_b64 exec, 1")
        for k in range(n):
            p.e(f"s_sub_u32 s3, s{76+2*k}, s{S_EP}\ns_add_u32 s3, s3, 100\nv_mov_b32 v2, s3\nbuffer_atomic_add v2, v0, s[4:7], 0 offen offset:{8+4*k} sc1\ns_nop 1")
            if k in (0, n - 1): p.e(f"buffer_atomic_umax v2, v0, s[4:7], 0 offen offset:{4 if k == 0 else 56} sc1\ns_nop 1")
        p.e("s_waitcnt vmcnt(0)")
        return
    p.e("s_load_dwordx2 s[60:61], s[0:1], 88\ns_waitcnt lgkmcnt(0) vmcnt(0)")
    srd(p, 4, 60, 61, 1 << 20, add=WS_DBG)
    p.e(f"s_lshl_b32 s3, s2, 8\ns_lshl_b32 s70, s{S_W}, 6\ns_add_u32 s3, s3, s70\nv_mov_b32 v0, 0")
    for k in range(n):
        p.e(f"v_mov_b32 v2, s{76+2*k}\nbuffer_store_dword v2, v0, s[4:7], s3 offen offset:{4*k}\ns_nop 1")
    p.e("s_waitcnt vmcnt(0)")

def mfma(d, a, b, c): return f"v_mfma_f32_32x32x16_bf16 {d}, {a}, {b}, {c}"

S_X = 4
S_WQ, S_WG, S_WU, S_XN, S_K, S_V, S_ACT = 8, 12, 16, 20, 24, 28, 32
S_WO, S_OUT, S_PT, S_WD = 8, 28, 24, 64
S_W, S_J, S_RB, S_W2K, S_W1K = 36, 37, 38, 39, 40
S_DT, S_DQ, S_GM, S_BT, S_KT, S_VT = 41, 42, 43, 44, 45, 46
S_LOOP, S_FLAG, S_ROT2 = 47, 48, 49
S_C0, S_NL2E = 50, 52
S_T0, S_T1, S_T2 = 54, 55, 56
S_HOFF, S_OOFF, S_PF = 57, 58, 59
S_EP, S_FO = 62, 63
S_FLG, S_DBG = 68, 72
S_W4K = 100
S_ONES = 51
S_PFD = 101
V_PFW = 251
K_SSW, K_SSA, K_SR32, K_CT, K_KQ, K_SPO, K_CNT, K_SST = 45, 46, 47, 48, 49, 50, 51, 59
K_SLD, K_SWO, K_SA, K_SLB = 72, 73, 74, 75
K_QD = 38
V_AQ, V_AG, V_OQ, V_OG, V_OB0, V_OB1 = 192, 200, 206, 207, 208, 209
V_K, V_V, V_OK0, V_OK1, V_OV, V_ST0, V_ST1 = 210, 218, 222, 223, 224, 225, 226
V_L = 228
V_T = 230
V_PFA, V_PFD, V_FL, V_PR = 252, 253, 254, 255
V_FL2 = 227
V_LP = 246
Q_XR, Q_OX, Q_CA, Q_CT, Q_CS, Q_ST, Q_BP, Q_EP, Q_SC = 128, 136, 138, 140, 156, 160, 164, 172, 176
S_XT, S_W8K = 44, 3
Q_PX, Q_PW = 180, 181
K_SGO = 3
K_VSW, K_VSA, K_VL16, K_VL, K_VRB, K_VX = 192, 193, 194, 195, 196, 199
K_VRA, K_VB0, K_VB1, K_VW0, K_VW1, K_VA0, K_VA2 = 210, 216, 217, 218, 219, 220, 222
def QACC(t, b): return (t*2 + b) * 16
def GACC(a, b): return 64 + (a*2 + b) * 16
A_KF, A_VF = 192, 224
def QF(b, s): return ((s >> 1)*2 + b)*8 + (s & 1)*4
def SB(par, b): return 64 + par*32 + b*16
def PB(par, b, u): return 128 + par*16 + b*8 + u*4
def NEGM(b): return 160 + b*16
def OACC(t, b): return (t*2 + b) * 16
SLOT = 16384
KKSLOT = 6 * SLOT
def wslot(t): return (6 + t % 4) * SLOT
def xslot(t): return ((t + 1) % 3) * 32768
LDS_CS = 7 * SLOT
def gslot(t): return (4 + t) * SLOT if t < 6 else (t - 6) * SLOT
def kslot(g): return ((g + 1) % 5) * 32768
LDS_LN = 0
LDS_FLAG = 3 * SLOT + 8192
LDS_TOTAL = 163840

def FSH(): return OPT.get('fsh', 7)
def SYO_(sy): return sy * (1024 if FSH() == 2 else 4)
STAT0, PFL0 = 32768, 65536
def flag_store(sy, vd, vz, tag="FS", one=None):
    body = [f"v_mov_b32 v{vd}, s{S_EP}", f"v_mov_b32 v{vz}, 0", "s_mov_b64 exec, 1",
            Ins(f"buffer_store_dword v{vd}, v{vz}, {S4(S_FLG)}, s{S_FO} offen offset:{SYO_(sy)} sc1", "OPT_FS" if one else tag),
            "s_mov_b64 exec, -1"]
    if one and OPT.get("one", 1): body = [f"s_cmp_lg_u32 s{S_W}, 0", f"s_cbranch_scc1 FS_{one}"] + body + [Ins(f"FS_{one}:")]
    return body
def poll_issue(sy, goff, tag, vfl=None):
    return Ins(f"buffer_load_dword v{V_PR}, v{vfl or V_FL}, {S4(S_FLG)}, s{goff} offen offset:{SYO_(sy)} sc1", tag)
def poll_check(p, lbl, sy, goff, tag, cnt, vfl=None):
    p.e(Wait(vm=[tag]))
    p.e(f"v_cmp_ne_u32 vcc, s{S_EP}, v{V_PR}\ns_mov_b32 s{cnt}, 0\ns_cbranch_vccz {lbl}_OK")
    p.label(f"{lbl}_P")
    p.e("s_sleep 2")
    p.e(poll_issue(sy, goff, "OPT_POLL", vfl))
    p.e(f"""
    s_add_u32 s{cnt}, s{cnt}, 1
    s_waitcnt vmcnt(0)
    v_cmp_ne_u32 vcc, s{S_EP}, v{V_PR}
    s_cmp_gt_u32 s{cnt}, 0x40000
    s_cbranch_scc1 {lbl}_OK
    s_cbranch_vccnz {lbl}_P
    """)
    p.label(f"{lbl}_OK")

def setup(p):
    T = V_T; L = T + 1
    p.e("s_cmp_ge_u32 s2, 256\ns_cbranch_scc1 K_END")
    p.e("s_load_dwordx8 s[60:67], s[0:1], 0")
    p.e("s_getpc_b64 s[42:43]")
    p.label("CODE0")
    p.e("s_load_dwordx4 s[68:71], s[0:1], 48\ns_load_dwordx4 s[72:75], s[0:1], 80")
    stamp(p, 0)
    if OPT.get("cp0", 1):
        p.e(f"v_and_b32 v1, {OPT.get('cp0n', 31)}, v0\nv_lshlrev_b32 v1, 7, v1")
        p.e(f"global_load_dword v{V_PFD}, v1, s[42:43]", tag="PF")
    if OPT.get("cpf", 2) == 1:
        p.e(f"v_lshlrev_b32 v1, 7, v0\nv_add_u32 v2, 32768, v1\nv_min_u32 v2, CODE_END-CODE0-4, v2")
        p.e(f"global_load_dword v{V_PFD}, v1, s[42:43]", tag="PF")
        p.e(f"global_load_dword v{V_PFD}, v2, s[42:43]", tag="PF")
    p.e(f"""
    v_lshrrev_b32 v{T}, 6, v0
    v_and_b32 v{L}, 63, v0
    v_and_b32 v3, 7, v{L}
    v_readfirstlane_b32 s{S_W}, v{T}
    v_lshrrev_b32 v4, 3, v{L}
    v_lshlrev_b32 v5, 10, v3
    v_lshl_add_u32 v5, v4, 4, v5
    v_lshl_add_u32 v5, v{T}, 8, v5
    s_lshl_b32 s3, s2, 13
    s_and_b32 s{S_T0}, s2, 7
    s_lshr_b32 s{S_T1}, s2, 3
    s_and_b32 s{S_T1}, s{S_T1}, 3
    s_lshr_b32 s{S_RB}, s2, 5
    s_lshl_b32 s{S_J}, s{S_T0}, 2
    s_add_u32 s{S_J}, s{S_J}, s{S_T1}
    s_lshl_b32 s{S_W2K}, s{S_W}, 11
    s_lshl_b32 s{S_W1K}, s{S_W}, 10
    s_lshl_b32 s{S_W4K}, s{S_W}, 12
    s_mul_i32 s{S_DT}, s{S_T1}, {OPT.get('roth', 0)}
    s_add_u32 s{S_DT}, s{S_DT}, s{S_RB}
    s_and_b32 s{S_DT}, s{S_DT}, {OPT.get('rotm', 7)}
    s_lshl_b32 s{S_ROT2}, s{S_RB}, 2
    s_add_u32 s{S_ROT2}, s{S_ROT2}, s{S_T1}
    s_lshr_b32 s{S_ROT2}, s{S_ROT2}, 1
    s_lshl_b32 s{S_ROT2}, s{S_ROT2}, 13
    s_waitcnt lgkmcnt(0)
    """)
    stamp(p, 1, 5)
    srd(p, S_X, 60, 61, 2097152)
    p.e(f"buffer_load_dwordx4 v[8:11], v5, {S4(S_X)}, s3 offen", tag="X")
    p.e(f"buffer_load_dwordx4 v[12:15], v5, {S4(S_X)}, s3 offen offset:128", tag="X")
    if OPT.get("cpf", 2) == 2:
        p.e(f"""
        v_and_b32 v1, 3, v{L}
        v_lshl_add_u32 v1, v{T}, 2, v1
        s_lshr_b32 s{S_T2}, s2, 3
        s_lshl_b32 s{S_T2}, s{S_T2}, 11
        v_lshlrev_b32 v1, 7, v1
        v_add_u32 v1, s{S_T2}, v1
        v_min_u32 v1, CODE_END-CODE0-4, v1
        """)
        p.e(f"global_load_dword v{V_PFD}, v1, s[42:43]", tag="PF")
    srd(p, S_XN, 74, 75, XN_BYTES, add=WS_XN)
    srd(p, S_ACT, 74, 75, ACT_BYTES, add=WS_ACT)
    p.e(f"s_add_u32 s{S_KT}, s74, {WS_FLG}\ns_addc_u32 s{S_VT}, s75, 0")
    p.e(f"s_mov_b32 s{S_DBG+2}, 256\ns_mov_b32 s{S_DBG+3}, 0x00020000")
    p.e(f"s_lshl_b32 s{S_T1}, s{S_T0}, 19\ns_add_u32 s{S_T1}, s{S_T1}, {1536*256}")
    srd(p, S_K, 62, 63, 131072, add=f"s{S_T1}")
    srd(p, S_V, 64, 65, 131072, add=f"s{S_T1}")
    p.e(f"""
    s_lshl_b32 s{S_FO}, s2, {FSH()}
    v_and_b32 v{V_FL}, 31, v{L}
    v_lshlrev_b32 v{Q_EP+3}, 3, v{V_FL}
    v_lshlrev_b32 v{V_FL}, {FSH()}, v{V_FL}
    v_mov_b32 v{Q_EP+2}, 0
    s_or_b32 s{S_T1}, s2, s{S_W}
    s_cmp_lg_u32 s{S_T1}, 0
    s_cbranch_scc1 EPD
    s_memrealtime s[60:61]
    s_waitcnt lgkmcnt(0)
    s_or_b32 s{S_EP}, s60, 1
    v_mov_b32 v{Q_EP}, s{S_EP}
    s_mov_b64 exec, 1
    """)
    p.e(f"buffer_store_dword v{Q_EP}, v{Q_EP+2}, {S4(S_DBG)}, 0 offen sc1", tag="OPT_EP")
    p.e("s_mov_b64 exec, -1")
    p.label("EPD")
    p.e(f"""
    v_lshrrev_b32 v{T+2}, 4, v{L}
    v_and_b32 v{T+3}, 15, v{L}
    v_lshlrev_b32 v{T+4}, 2, v{T+2}
    v_xor_b32 v{T+4}, v{T+3}, v{T+4}
    v_lshlrev_b32 v{T+4}, 4, v{T+4}
    v_lshl_add_u32 v{T+5}, v{T}, 4, v{T+2}
    v_lshl_add_u32 v{V_OQ}, v{T+5}, 13, v{T+4}
    s_lshl_b32 s{S_T1}, s{S_J}, 8
    s_sub_u32 s{S_T2}, {4194304}, s{S_T1}
    """)
    srd(p, S_WQ, 66, 67, f"s{S_T2}", add=f"s{S_T1}")
    p.e(f"""
    v_lshrrev_b32 v{T+6}, 1, v4
    v_xor_b32 v{T+7}, v3, v{T+6}
    v_lshlrev_b32 v{T+7}, 4, v{T+7}
    v_lshl_add_u32 v{Q_OX}, v4, 10, v{T+7}
    s_lshl_b32 s{S_T1}, s{S_RB}, 18
    s_lshl_b32 s{S_T2}, s{S_W}, 16
    s_add_u32 s{S_T1}, s{S_T1}, s{S_T2}
    v_add_u32 v{Q_OX}, s{S_T1}, v{Q_OX}
    v_xor_b32 v{Q_OX+1}, 64, v{Q_OX}
    s_lshl_b32 s{S_XT}, s{S_DT}, 7
    s_lshl_b32 s{S_PF}, s{S_W}, 13
    """)
    if OPT.get("coop", 1):
        p.e(f"""
        s_and_b32 s{S_T1}, s{S_J}, 3
        s_lshl_b32 s{S_T1}, s{S_T1}, 16
        s_lshl_b32 s{S_T2}, s{S_RB}, 18
        s_add_u32 s{S_T1}, s{S_T1}, s{S_T2}
        s_lshl_b32 s{S_T2}, s{S_W}, 14
        s_add_u32 s{S_T1}, s{S_T1}, s{S_T2}
        v_bfe_u32 v{T+6}, v{L}, 4, 1
        v_add_u32 v{T+6}, s{S_DT}, v{T+6}
        v_lshlrev_b32 v{T+7}, 10, v{T+3}
        v_add_u32 v{T+7}, s{S_T1}, v{T+7}
        """)
        for k in range(4):
            p.e(f"v_add_u32 v{T+8}, {2*k}, v{T+6}\nv_and_b32 v{T+8}, 7, v{T+8}\nv_lshl_add_u32 v{Q_PX+k}, v{T+8}, 7, v{T+7}")
            if k == 0: p.e(f"buffer_load_dword v{V_PFD}, v{Q_PX}, {S4(S_X)}, 0 offen", tag="PF")
    p.mark0 = len(p.cur)
    p.e(f"""
    s_lshr_b32 s{S_HOFF}, s{S_T0}, 1
    s_mul_i32 s{S_HOFF}, s{S_HOFF}, 7
    s_and_b32 s{S_T1}, s{S_J}, 7
    s_add_u32 s{S_HOFF}, s{S_HOFF}, s{S_T1}
    s_cmp_eq_u32 s{S_T1}, 7
    s_cselect_b32 s{S_OOFF}, 1, 0
    s_lshl_b32 s{S_T1}, s{S_HOFF}, 7
    s_sub_u32 s{S_T2}, {512*3584}, s{S_T1}
    s_cmp_lg_u32 s{S_OOFF}, 0
    s_cselect_b32 s{S_T2}, 0, s{S_T2}
    """)
    srd(p, S_WG, 68, 69, f"s{S_T2}", add=f"s{S_T1}")
    srd(p, S_WU, 70, 71, f"s{S_T2}", add=f"s{S_T1}")
    srd(p, S_FLG, S_KT, S_VT, 262144)
    p.e(f"""
    s_mov_b32 s{S_C0}, 0x{QSCALE:08x}
    s_mov_b32 s{S_NL2E}, 0x{f2u(-LOG2E):08x}
    s_mov_b32 s{S_NL2E+1}, 0x{f2u(-LOG2E):08x}
    s_mov_b32 s{S_FLAG}, 0
    s_mov_b32 s{S_KT}, s{S_ROT2}
    s_mov_b32 s{S_VT}, s{S_ROT2}
    s_lshl_b32 s{S_HOFF}, s{S_HOFF}, 12
    s_add_u32 s{S_HOFF}, s{S_HOFF}, {256*1024}
    s_cmp_lg_u32 s{S_OOFF}, 0
    s_cselect_b32 s{S_HOFF}, 0x40000000, s{S_HOFF}
    s_lshl_b32 s{S_OOFF}, s{S_J}, 13
    {"s_mov_b32 s%d, 0x40000000" % S_OOFF if OPT.get("nost") else ""}
    {"s_mov_b32 s%d, 0x40000000" % S_HOFF if OPT.get("nost") else ""}
    v_lshrrev_b32 v6, 1, v4
    v_lshlrev_b32 v6, 10, v6
    v_and_b32 v7, 1, v4
    v_lshl_add_u32 v6, v7, 9, v6
    v_lshl_add_u32 v6, v3, 4, v6
    v_lshl_add_u32 v6, v{T}, 13, v6
    v_add_u32 v17, 4096, v6
    v_lshlrev_b32 v16, 4, v3
    v_add_u32 v16, {LDS_LN}, v16
    v_lshl_add_u32 v7, v{T}, 2, v16
    v_lshrrev_b32 v{T+2}, 5, v{L}
    v_bfe_u32 v{T+3}, v{L}, 4, 1
    v_bfe_u32 v{T+4}, v{L}, 2, 2
    v_and_b32 v{T+5}, 3, v{L}
    v_and_b32 v{T+6}, 1, v{T+5}
    v_lshrrev_b32 v{T+7}, 1, v{T+5}
    v_lshl_add_u32 v{T+6}, v{T+6}, 1, v{T+7}
    v_lshlrev_b32 v{T+7}, 5, v{T+3}
    v_lshl_add_u32 v{T+8}, v{T+6}, 3, v{T+7}
    v_lshl_add_u32 v{T+9}, v{T+5}, 3, v{T+7}
    v_lshl_add_u32 v{T+10}, v{T+2}, 3, v{T+4}
    v_lshl_add_u32 v{T+11}, v{T+10}, 8, v{T+8}
    v_add_u32 v{T+11}, 0x10000, v{T+11}
    """)
    for t in range(4):
        p.e(f"""
        v_xor_b32 v{T+12}, {t}, v{T+4}
        v_lshl_add_u32 v{V_AQ+t}, v{T+12}, 6, v{T+11}
        v_add_u32 v{V_AQ+4+t}, 0x10000, v{V_AQ+t}
        """)
    p.e(f"""
    v_xor_b32 v{T+12}, s{S_W}, v{T+4}
    v_lshl_add_u32 v{Q_CA}, v{T+12}, 6, v{T+11}
    v_add_u32 v{Q_CA+1}, 0x10000, v{Q_CA}
    v_and_b32 v{T+12}, 31, v{L}
    v_bfe_u32 v{T+13}, v{L}, 1, 3
    v_lshlrev_b32 v{T+12}, 7, v{T+12}
    v_add_u32 v{T+12}, s{S_PF}, v{T+12}
    """)
    for u in range(4):
        p.e(f"""
        v_add_u32 v{T+14}, {2*u}, v{T+2}
        v_xor_b32 v{T+14}, v{T+14}, v{T+13}
        v_lshl_add_u32 v{Q_XR+u}, v{T+14}, 4, v{T+12}
        v_add_u32 v{Q_XR+4+u}, 0x10000, v{Q_XR+u}
        """)

def deferred_setup():
    T = V_T; L = T + 1; A, B = S_LOOP, S_PFD
    out = lines(f"""
    s_lshl_b32 s{A}, s{S_RB}, 6
    v_add_u32 v227, s{A}, v{L}
    v_mul_u32_u24 v227, 3584, v227
    v_lshrrev_b32 v{T+3}, 4, v{L}
    v_and_b32 v{T+5}, 15, v{L}
    v_lshlrev_b32 v{T+6}, 2, v{T+3}
    v_xor_b32 v{T+6}, v{T+5}, v{T+6}
    v_lshlrev_b32 v{T+6}, 4, v{T+6}
    v_lshl_add_u32 v{T+7}, v{T}, 3, v{T+3}
    v_lshl_add_u32 v{V_OV}, v{T+7}, 8, v{T+6}
    v_xor_b32 v{T+6}, v{T+5}, v{T+7}
    v_and_b32 v{T+6}, 15, v{T+6}
    v_lshlrev_b32 v{T+6}, 4, v{T+6}
    v_lshl_add_u32 v{V_OK0}, v{T+7}, 8, v{T+6}
    v_add_u32 v{T+8}, 4, v{T+7}
    v_xor_b32 v{T+6}, v{T+5}, v{T+8}
    v_and_b32 v{T+6}, 15, v{T+6}
    v_lshlrev_b32 v{T+6}, 4, v{T+6}
    v_lshl_add_u32 v{V_OK1}, v{T+7}, 8, v{T+6}
    v_and_b32 v{T+7}, 7, v{L}
    v_and_b32 v{T+8}, 1, v{T+3}
    v_lshlrev_b32 v{T+8}, 2, v{T+8}
    v_xor_b32 v{T+7}, v{T+7}, v{T+8}
    v_lshlrev_b32 v{T+7}, 4, v{T+7}
    v_lshrrev_b32 v{T+6}, 3, v{L}
    v_lshl_add_u32 v{T+6}, v{T}, 4, v{T+6}
    v_mul_u32_u24 v{T+6}, 3584, v{T+6}
    v_add_u32 v{V_OG}, v{T+6}, v{T+7}
    s_lshl_b32 s{B}, s{S_RB}, 3
    s_lshl_b32 s{A}, s{S_W}, 1
    s_add_u32 s{B}, s{B}, s{A}
    s_lshl_b32 s{A}, s{B}, 15
    v_lshlrev_b32 v{T+6}, 4, v{L}
    v_add_u32 v{V_OB0}, s{A}, v{T+6}
    v_add_u32 v{V_OB1}, 32768, v{V_OB0}
    s_mul_i32 s{A}, s{B}, {ACT_KS*1024}
    v_add_u32 v{V_ST0}, s{A}, v{T+6}
    v_add_u32 v{V_ST1}, {ACT_KS*1024}, v{V_ST0}
    v_lshlrev_b32 v{V_PFA}, 7, v{L}
    v_lshl_add_u32 v{T+11}, v{T+2}, 2, v{T+4}
    v_lshl_add_u32 v{T+11}, v{T+11}, 8, v{T+9}
    """)
    for t in range(4):
        out += [f"v_xor_b32 v{T+12}, {t}, v{T+4}", f"v_lshl_add_u32 v{V_V+t}, v{T+12}, 6, v{T+11}"]
    out += [f"v_lshrrev_b32 v{T+14}, 1, v{T+4}", f"v_lshl_add_u32 v{T+11}, v{T+10}, 7, v{T+9}"]
    for t in range(2):
        out += [f"v_xor_b32 v{T+12}, {t}, v{T+14}", f"v_lshl_add_u32 v{V_AG+t}, v{T+12}, 6, v{T+11}",
                f"v_add_u32 v{V_AG+2+t}, 0x10000, v{V_AG+t}", f"v_add_u32 v{V_AG+4+t}, 0x20000, v{V_AG+t}"]
    out += [f"v_and_b32 v{T+12}, 31, v{L}", f"v_lshlrev_b32 v{T+12}, 8, v{T+12}"]
    for s in range(8):
        out += [f"v_add_u32 v{T+14}, {2*s}, v{T+2}", f"v_xor_b32 v{T+14}, v{T+14}, v{T+5}", f"v_lshl_add_u32 v{V_K+s}, v{T+14}, 4, v{T+12}"]
    return out

NW0 = 2
def layernorm(p):
    p.e(f"""
    s_lshr_b32 s{S_T1}, s2, 2
    s_lshl_b32 s{S_T1}, s{S_T1}, 15
    s_and_b32 s{S_T2}, s2, 3
    s_lshl_b32 s{S_T2}, s{S_T2}, 7
    s_add_u32 s3, s{S_T1}, s{S_T2}
    s_mov_b32 s{S_T0}, 0x3b000000
    """)
    stamp(p, 3, 5)
    p.e(Wait(vm=["X"]))
    stamp(p, 4, 5)
    for i in range(8):
        p.e(f"v_lshlrev_b32 v{20+2*i}, 16, v{8+i}\nv_and_b32 v{21+2*i}, 0xffff0000, v{8+i}")
    def reduce(src, off):
        p.e(f"""
        s_nop 1
        v_add_f32_dpp v{src}, v{src}, v{src} row_ror:8 row_mask:0xf bank_mask:0xf
        v_mov_b32 v41, v{src}
        s_nop 1
        v_permlane16_swap_b32 v{src}, v41
        v_add_f32 v{src}, v{src}, v41
        v_mov_b32 v41, v{src}
        s_nop 1
        v_permlane32_swap_b32 v{src}, v41
        v_add_f32 v{src}, v{src}, v41
        ds_write_b32 v7, v{src} offset:{off}
        s_waitcnt lgkmcnt(0)
        s_barrier
        ds_read_b128 v[44:47], v16 offset:{off}
        s_waitcnt lgkmcnt(0)
        v_add_f32 v44, v44, v45
        v_add_f32 v46, v46, v47
        v_add_f32 v40, v44, v46
        """)
    p.e("v_add_f32 v36, v20, v21\nv_add_f32 v37, v22, v23")
    for i in range(2, 8, 2):
        p.e(f"v_add_f32 v36, v36, v{20+2*i}\nv_add_f32 v37, v37, v{21+2*i}\nv_add_f32 v36, v36, v{22+2*i}\nv_add_f32 v37, v37, v{23+2*i}")
    p.e("v_add_f32 v36, v36, v37")
    reduce(36, 0)
    stamp(p, 6, 5)
    p.e(f"v_mul_f32 v48, s{S_T0}, v40")
    p.e("v_mov_b32 v36, 0\nv_mov_b32 v37, 0")
    for i in range(8):
        p.e(f"v_sub_f32 v38, v{20+2*i}, v48\nv_sub_f32 v39, v{21+2*i}, v48\nv_fmac_f32 v36, v38, v38\nv_fmac_f32 v37, v39, v39")
    p.e("v_add_f32 v36, v36, v37")
    reduce(36, 128)
    p.e(f"""
    v_mul_f32 v49, s{S_T0}, v40
    v_cvt_pk_bf16_f32 v49, v49, v49
    v_and_b32 v49, 0xffff0000, v49
    v_add_f32 v49, 0x{f2u(1e-5):08x}, v49
    v_cvt_pk_bf16_f32 v49, v49, v49
    v_and_b32 v49, 0xffff0000, v49
    v_sqrt_f32 v49, v49
    v_cvt_pk_bf16_f32 v48, v48, v48
    v_cvt_pk_bf16_f32 v49, v49, v49
    v_and_b32 v48, 0xffff0000, v48
    v_and_b32 v49, 0xffff0000, v49
    v_rcp_f32 v49, v49
    """)
    for i in range(8):
        a, b = 20 + 2*i, 21 + 2*i
        p.e(f"""
        v_sub_f32 v{a}, v{a}, v48
        v_sub_f32 v{b}, v{b}, v48
        v_cvt_pk_bf16_f32 v38, v{a}, v{b}
        v_lshlrev_b32 v{a}, 16, v38
        v_and_b32 v{b}, 0xffff0000, v38
        v_mul_f32 v{a}, v{a}, v49
        v_mul_f32 v{b}, v{b}, v49
        v_cvt_pk_bf16_f32 v{8+i}, v{a}, v{b}
        """)
        if i == 3: p.e(f"buffer_store_dwordx4 v[8:11], v6, {S4(S_XN)}, s3 offen{SC}")
    p.e(f"buffer_store_dwordx4 v[12:15], v17, {S4(S_XN)}, s3 offen{SC}")
    p.e(f"""
    v_xor_b32 v56, 0x80000000, v48
    v_lshrrev_b32 v57, 16, v56
    v_or_b32 v56, v56, v57
    v_mul_f32 v57, s{S_C0}, v49
    v_lshlrev_b32 v58, 3, v3
    s_lshl_b32 s{S_T1}, s2, 6
    s_add_u32 s{S_T1}, s{S_T1}, {STAT0}
    s_cmp_lg_u32 s{S_W}, 0
    s_cselect_b32 s{S_T1}, 0x40000000, s{S_T1}
    s_mov_b64 exec, 0xff
    """)
    p.e(f"buffer_store_dwordx2 v[56:57], v58, {S4(S_FLG)}, s{S_T1} offen{SC}", tag="XST")
    p.e("s_mov_b64 exec, -1")
    p.e("s_load_dwordx2 s[60:61], s[0:1], 32\ns_load_dwordx2 s[64:65], s[0:1], 64")
    stamp(p, 5, 5)
    w0, x0, w1, x1 = dma_q(0), dma_x(0), dma_q(1), dma_x(1)
    groups = w0 + x0 if OPT.get('coop', 1) else [w0[0], x0[0], x0[4], w0[1], x0[1], x0[5], w0[2], x0[2], x0[6], w0[3], x0[3], x0[7]]
    if OPT.get("early1", 0) == 0: pass
    else: groups += x1 + w1
    if OPT.get("dropw"): groups = x0
    if OPT.get("dropx"): groups = w0 + [x0[7]]
    if OPT.get("dropx") == 2: groups = w0[:1] + [x0[7]]
    body = p.cur[p.mark0:]; del p.cur[p.mark0:]
    every = OPT.get("every", 20); cnt = every; f0 = OPT.get("f0", 4)
    for _ in range(min(f0, len(groups))): p.e(groups.pop(0))
    stamp(p, 2, 5)
    for k, ins in enumerate(body):
        p.cur.append(ins); cnt -= 1
        nxt = body[k + 1].t if k + 1 < len(body) else ""
        if cnt <= 0 and groups and ins.t.startswith("v_") and nxt.startswith("v_") and "exec" not in body[k - 1].t and "exec" not in body[k-2].t:
            p.e(groups.pop(0)); cnt = every
    for x in groups: p.e(x)

def dma_q(t):
    tag = f"W{t}"; g = []
    for ii in range(4):
        pre = [f"s_lshl_b32 s{S_DQ}, s{S_DT}, 19", f"s_add_u32 m0, s{S_W4K}, {wslot(t)}", f"s_add_u32 s{S_DT}, s{S_DT}, 1"] if ii == 0 else \
              [f"s_add_u32 m0, s{S_W4K}, {wslot(t)}", f"s_add_u32 s{S_DQ}, s{S_DQ}, {32768-1024}"]
        g.append(pre + [Ins(f"buffer_load_dwordx4 v{V_OQ}, {S4(S_WQ)}, s{S_DQ} offen offset:{ii*1024} lds", tag)])
    g[-1].append(f"s_and_b32 s{S_DT}, s{S_DT}, 7")
    return g
def dma_x(t):
    g = []
    for ii in range(8):
        g.append([f"s_add_u32 m0, s{S_PF}, {xslot(t)+ii*1024}", f"s_add_u32 s{S_GM}, s{S_XT}, {ii*8192}",
                  Ins(f"buffer_load_dwordx4 v{Q_OX+(ii&1)}, {S4(S_X)}, s{S_GM} offen lds", f"X{t}")])
    g[-1] += [f"s_add_u32 s{S_XT}, s{S_XT}, 128", f"s_and_b32 s{S_XT}, s{S_XT}, 0x3ff"]
    return g
def dma_g(tag):
    return [[f"s_mul_i32 s{S_DQ}, s{S_DT}, {64*3584}", f"s_mov_b32 m0, s{S_GM}", f"s_add_u32 s{S_DT}, s{S_DT}, 1",
             Ins(f"buffer_load_dwordx4 v{V_OG}, {S4(S_WG)}, s{S_DQ} offen lds", tag)],
            [f"s_add_u32 m0, s{S_GM}, 8192", f"s_and_b32 s{S_DT}, s{S_DT}, 7",
             Ins(f"buffer_load_dwordx4 v{V_OG}, {S4(S_WU)}, s{S_DQ} offen lds", tag)],
            [f"s_add_u32 m0, s{S_GM}, 8192", f"s_add_u32 s{S_DQ}, s{S_DQ}, {8*3584-1024}",
             Ins(f"buffer_load_dwordx4 v{V_OG}, {S4(S_WU)}, s{S_DQ} offen offset:1024 lds", tag)],
            [f"s_mov_b32 m0, s{S_GM}", f"s_add_u32 s{S_GM}, s{S_GM}, {SLOT}",
             Ins(f"buffer_load_dwordx4 v{V_OG}, {S4(S_WG)}, s{S_DQ} offen offset:1024 lds", tag)]]
def dma_k(ldsoff, tag):
    return [[f"s_add_u32 m0, s{S_W2K}, {ldsoff}", f"s_nop 0",
             Ins(f"buffer_load_dwordx4 v{V_OK0}, {S4(S_K)}, s{S_KT} offen lds", tag)],
            [f"s_add_u32 m0, s{S_W2K}, {ldsoff}", f"s_nop 0",
             Ins(f"buffer_load_dwordx4 v{V_OK1}, {S4(S_K)}, s{S_KT} offen offset:1024 lds", tag),
             f"s_add_u32 s{S_KT}, s{S_KT}, 8192", f"s_and_b32 s{S_KT}, s{S_KT}, 0x1ffff"]]
def dma_v(ldsoff, tag):
    return [[f"s_add_u32 m0, s{S_W2K}, {ldsoff}", f"s_nop 0",
             Ins(f"buffer_load_dwordx4 v{V_OV}, {S4(S_V)}, s{S_VT} offen lds", tag)],
            [f"s_add_u32 m0, s{S_W2K}, {ldsoff}", f"s_nop 0",
             Ins(f"buffer_load_dwordx4 v{V_OV}, {S4(S_V)}, s{S_VT} offen offset:1024 lds", tag),
             f"s_add_u32 s{S_VT}, s{S_VT}, 8192", f"s_and_b32 s{S_VT}, s{S_VT}, 0x1ffff"]]
def dma_d(pp):
    sl = (pp % 4) * SLOT; tag = f"D{pp%4}"
    return dma_v(sl, tag) + dma_k(sl + 8192, tag)
def dma_kk(): return dma_k(KKSLOT, "KK") + dma_k(KKSLOT + 8192, "KK")

def BR1(s, b): return 32 + (s & 1)*8 + b*4
def BR2(s, b): return 160 + (s % 12)*8 + b*4
def AB1(par, a): return par*16 + a*4
def AB2(par, a): return 128 + par*16 + a*4
def bload(s, ring, pre):
    u = s & 3; tag = f"{pre}{s}"
    SC = LSC()
    g = [[Ins(f"buffer_load_dwordx4 {ar(ring(s,0),4)}, v{V_OB0}, {S4(S_XN)}, s{S_BT} offen offset:{u*1024}{SC}", tag)],
         [Ins(f"buffer_load_dwordx4 {ar(ring(s,1),4)}, v{V_OB1}, {S4(S_XN)}, s{S_BT} offen offset:{u*1024}{SC}", tag)]]
    if u == 3 and not OPT.get("bfix"): g[1] += [f"s_add_u32 s{S_BT}, s{S_BT}, 4096", f"s_and_b32 s{S_BT}, s{S_BT}, 0x7fff"]
    return g
def areads_q(s):
    t, u = s >> 2, s & 3
    sl = wslot(t); hi = sl // 65536; sl -= hi * 65536
    out = [Ins(f"ds_read_b64_tr_b16 {ar(AB1(s&1,a)+2*e,2)}, v{V_AQ+4*(hi-1)+a} offset:{sl+(16*u+4*e)*256}", f"A{s}") for a in range(4) for e in range(2)]
    xs = xslot(t); xh = xs // 65536; xs -= xh * 65536
    xb = [Ins(f"ds_read_b128 {ar(BR1(s,b),4)}, v{Q_XR+4*xh+u} offset:{xs+b*4096}", f"A{s}") for b in range(2)]
    return out[:2] + xb + out[2:]
def csreads(s):
    t, u = s >> 2, s & 3
    sl = wslot(t); hi = sl // 65536; sl -= hi * 65536
    return [Ins(f"ds_read_b64_tr_b16 v[{Q_CT+(s%4)*4+2*e}:{Q_CT+(s%4)*4+2*e+1}], v{Q_CA+hi-1} offset:{sl+(16*u+4*e)*256}", f"CS{s}") for e in range(2)]
def csdots(s):
    if OPT.get("nocs"): return []
    return [f"v_dot2c_f32_bf16 v{Q_CS+(i&1)}, s{S_ONES}, v{Q_CT+(s%4)*4+i}" for i in range(4)]
def areads_g(s):
    t, u = s >> 2, s & 3
    sl = gslot(t); hi = sl // 65536; sl -= hi * 65536
    return [Ins(f"ds_read_b64_tr_b16 {ar(AB2(s&1,a)+2*e,2)}, v{V_AG+2*hi+(a&1)} offset:{sl+(a>>1)*8192+(16*u+4*e)*128}", f"AG{s}") for a in range(4) for e in range(2)]
def kreads(off, tag):
    return [Ins(f"ds_read_b128 {ar(A_KF+4*s,4)}, v{V_K+s} offset:{off}", tag) for s in range(8)]
def kreads_hi(off, tag, tmp):
    return [[f"v_add_u32 v{tmp+(s&3)}, 0x10000, v{V_K+s}",
             Ins(f"ds_read_b128 {ar(A_KF+4*s,4)}, v{tmp+(s&3)} offset:{off-65536}", tag)] for s in range(8)]
def vreads(sl, tag):
    return [Ins(f"ds_read_b64_tr_b16 {ar(A_VF+(u*4+t)*4+2*e,2)}, v{V_V+t} offset:{sl+(16*u+8*e)*256}", tag) for u in range(2) for t in range(4) for e in range(2)]

def p1q(p):
    AP = 64
    p.e(f"""
    s_mov_b32 s{S_ONES}, 0x3f803f80
    v_mov_b32 v{Q_CS}, 0
    v_mov_b32 v{Q_CS+1}, 0
    s_lshl_b32 s{S_T0}, s{S_RB}, {5+FSH()}
    s_lshl_b32 s{S_T2}, s{S_RB}, 11
    s_lshl_b32 s{S_T1}, s{S_W}, 9
    s_add_u32 s{S_T2}, s{S_T2}, s{S_T1}
    s_add_u32 s{S_T2}, s{S_T2}, {STAT0}
    """)
    if OPT.get("coop", 1): p.e(f"buffer_load_dword v{V_PFD}, v{Q_PX+1}, {S4(S_X)}, 0 offen", tag="PF")
    p.e(f"buffer_load_dword v{V_PR}, v{Q_EP+2}, {S4(S_DBG)}, 0 offen sc1", tag="EPL")
    p.e(Wait(vm=["W0", "X0"])); stamp(p, 7, 5); p.e("s_barrier"); stamp(p, 8, 5)
    for x in areads_q(0) + csreads(0): p.e(x)
    p.e(f"s_waitcnt lgkmcnt(0)\ns_mov_b32 s{S_WD+2}, {1792*1024}\ns_mov_b32 s{S_WD+3}, 0x00020000")
    sc = Sched()
    def publish(p):
        p.e(Wait(vm=["EPL"]))
        p.e(f"v_readfirstlane_b32 s{S_EP}, v{V_PR}\ns_mov_b32 s{S_T1}, 0\ns_cmp_lg_u32 s{S_EP}, 0\ns_cbranch_scc1 EP_OK")
        p.label("EP_P")
        p.e("s_sleep 2")
        p.e(f"buffer_load_dword v{V_PR}, v{Q_EP+2}, {S4(S_DBG)}, 0 offen sc1", tag="OPT_POLL")
        p.e(f"""
        s_add_u32 s{S_T1}, s{S_T1}, 1
        s_waitcnt vmcnt(0)
        v_readfirstlane_b32 s{S_EP}, v{V_PR}
        s_cmp_gt_u32 s{S_T1}, 0x40000
        s_cbranch_scc1 EP_OK
        s_cmp_eq_u32 s{S_EP}, 0
        s_cbranch_scc1 EP_P
        """)
        p.label("EP_OK")
        p.e(flag_store(0, Q_EP, Q_EP + 1, one='X'))
    PUB = OPT.get("pub", 1); P1I = OPT.get("p1i", 16); P1C = OPT.get("p1c", 22)
    for s in range(32):
        t, u = s >> 2, s & 3
        mf = []
        for a in range(4):
            for b in range(2):
                d = vr(QACC(a, b), 16)
                mf.append(mfma(d, ar(AB1(s & 1, a), 4), ar(BR1(s, b), 4), d if s else "0"))
        g0 = sc.add(mf)
        if u == 3:
            vm = [f"W{t+1}", f"X{t+1}"] if t + 1 < 8 else ["KK"]
            if t == PUB: vm.append("XST")
            sc.before(g0, [Wait(vm=vm, lg=[f"A{s}", f"CS{s}"] if s < 31 else ["CSW"]), "s_barrier"])
            if t == PUB: sc.before(g0, publish)
        sc.before(g0, Wait(lg=[f"A{s}", f"CS{s}"] if s <= 28 else [f"A{s}"]))
        if s == 0: sc.before(g0, lambda p: (stamp(p, 1), stamp(p, 9, 5)))
        if s == 8: sc.before(g0, lambda p: stamp(p, 10, 5))
        if s % 4 == 0: sc.before(g0, lambda p, s=s: stamp(p, 1 + s // 4, 1))
        if s + 1 < 32: sc.spread(areads_q(s + 1), g0, g0 + 5)
        else:
            sc.spread([Ins(f"ds_read_b64 {ar(AP+4*a,2)}, v{Q_EP} offset:{a*512}", "AP") for a in range(4)] + kreads_hi(KKSLOT, "KF", V_T), g0, g0 + 6)
        if s <= 26: sc.spread(csreads(s + 1), g0 + 5, g0 + 6)
        if s == 27: sc.spread(csreads(28) + csreads(29), g0 + 5, g0 + 7)
        if s == 28: sc.spread(csreads(30) + csreads(31), g0 + 5, g0 + 7)
        if s <= 28: sc.spread(csdots(s), g0, g0 + 4)
        if s == 29:
            sc.before(g0, Wait(lg=["CS31"]))
            C = Q_CS
            sc.spread(csdots(29) + csdots(30) + csdots(31) + lines(f"""
            s_nop 2
            v_add_f32 v{C}, v{C}, v{C+1}
            v_mov_b32 v{C+1}, v{C}
            s_nop 1
            v_permlane32_swap_b32 v{C}, v{C+1}
            v_add_f32 v{C}, v{C}, v{C+1}
            v_cvt_pk_bf16_f32 v{C+1}, v{C}, v{C}
            v_and_b32 v{C+1}, 0xffff0000, v{C+1}
            v_sub_f32 v{C+1}, v{C}, v{C+1}
            v_cvt_pk_bf16_f32 v{C+2}, v{C}, v{C+1}
            v_and_b32 v{C}, 0xffff0000, v{C+2}
            v_sub_f32 v{C+1}, v{C+1}, v{C}
            v_cvt_pk_bf16_f32 v{C+3}, v{C+1}, 0
            v_mbcnt_lo_u32_b32 v{Q_EP}, -1, 0
            v_mbcnt_hi_u32_b32 v{Q_EP}, -1, v{Q_EP}
            v_lshlrev_b32 v{Q_EP}, 3, v{Q_EP}
            v_add_u32 v{Q_EP}, {LDS_CS}, v{Q_EP}
            s_lshl_b32 s{S_T1}, s{S_W}, 9
            v_add_u32 v{Q_EP+1}, s{S_T1}, v{Q_EP}
            """) + [Ins(f"ds_write_b64 v{Q_EP+1}, v[{C+2}:{C+3}]", "CSW")], g0, g0 + 14)
        if s == 8: sc.spread([f"v_accvgpr_write_b32 a{AP+4*a+2+i}, 0" for a in range(4) for i in range(2)] +
                             [f"v_mov_b32 v{Q_BP+i}, 0" for i in range(8)], g0, g0 + 8)
        if s == P1I: sc.fixed(g0 + 1, [poll_issue(0, S_T0, "P1")])
        if s == P1C:
            sc.before(g0, lambda p: poll_check(p, "SY1", 0, S_T0, "P1", S_T1))
            for b in range(2):
                sc.fixed(g0 + 1 + 2*b, [Ins(f"buffer_load_dwordx2 v[{Q_ST+2*b}:{Q_ST+2*b+1}], v{Q_EP+3}, {S4(S_FLG)}, s{S_T2} offen offset:{b*256}{SC}", "ST")])
        if s == 28:
            sc.before(g0, [Wait(vm=["ST"]), "s_mov_b32 exec_hi, 0"] +
                      [x for b in range(2) for x in (f"v_mov_b32 v{Q_BP+4*b}, v{Q_ST+2*b}", f"v_and_b32 v{Q_BP+4*b+1}, 0xffff, v{Q_ST+2*b}")] +
                      ["s_mov_b32 exec_hi, -1"] +
                      [x for b in range(2) for x in (f"v_mov_b32 v{Q_SC+2*b}, v{Q_ST+2*b+1}", f"v_mov_b32 v{Q_SC+2*b+1}, v{Q_ST+2*b+1}")])
    sc.spread(deferred_setup(), 4, 92)
    g0 = sc.add([mfma(vr(QACC(a, b), 16), ar(AP + 4*a, 4), vr(Q_BP + 4*b, 4), vr(QACC(a, b), 16)) for b in range(2) for a in range(4)])
    sc.before(g0, Wait(lg=["AP"]))
    for t in range(2 if OPT.get('early1') else 1, 8):
        for x in dma_x(t): sc.queue("X", x, max(0, 8*(4*(t - 3) + 3)), 8*(4*t - 1) - 60)
        for x in dma_q(t): sc.queue("W", x, max(0, 8*(4*(t - 4) + 3)), 8*(4*t - 1) - 64)
    for x in dma_kk(): sc.queue("KV", x, 8*19, 8*31 - 64)
    for i in range(2):
        for x in dma_d(i): sc.queue("KV", x, 8*23, 260)
    if OPT.get("coop", 1):
        for k, gp in enumerate((OPT.get("cx2", 50), OPT.get("cx3", 114))):
            sc.fixed(gp, [Ins(f"buffer_load_dword v{V_PFD}, v{Q_PX+2+k}, {S4(S_X)}, 0 offen", "PF")])
    sc.fixed(OPT.get("pfg", 140), [Ins(f"buffer_load_dword v{V_PFD}, v227, {S4(S_WG)}, 0 offen", "PF")])
    sc.fixed(OPT.get("pfu", 220), [Ins(f"buffer_load_dword v{V_PFD}, v227, {S4(S_WU)}, 0 offen", "PF")])
    sc.emit(p)
    if sc.report: print("p1q late:", sc.report)
    if OPT.get("coop", 1):
        p.e(f"s_and_b32 s{S_DT}, s{S_J}, 3\ns_lshl_b32 s{S_DT}, s{S_DT}, 1\ns_add_u32 s{S_DT}, s{S_DT}, s{S_RB}\ns_and_b32 s{S_DT}, s{S_DT}, 7")
    p.e(f"s_lshl_b32 s{S_BT}, s{S_DT}, 12")

def qconv():
    out = []
    for k in range(64):
        b = (k >> 3) & 1
        out.append([f"v_pk_mul_f32 v[{2*k}:{2*k+1}], v[{2*k}:{2*k+1}], v[{Q_SC+2*b}:{Q_SC+2*b+1}]"])
        out.append([f"v_cvt_pk_bf16_f32 v{k}, v{2*k}, v{2*k+1}"])
    res = [out[0]]
    for k in range(64):
        if k + 1 < 64: res.append(out[2*(k+1)])
        res.append(out[2*k+1])
    return res

def qk_mf(par, first_c):
    mf = []
    for s in range(8):
        for b in range(2):
            d = vr(SB(par, b), 16)
            mf.append(mfma(d, ar(A_KF + 4*s, 4), vr(QF(b, s), 4), d if s else first_c(b)))
    return mf
def pv_mf(par):
    mf = []
    for u in range(2):
        for t in range(4):
            for b in range(2):
                d = ar(OACC(t, b), 16)
                mf.append(mfma(d, ar(A_VF + (u*4+t)*4, 4), vr(PB(par, b, u), 4), d))
    return mf
def softmax_items(par):
    out = []
    for u in range(2):
        for b in range(2):
            for i in range(0, 8, 2):
                r = SB(par, b) + 8*u + i
                out.append([f"v_exp_f32 v{r}, v{r}"])
                out.append([f"v_exp_f32 v{r+1}, v{r+1}"])
                if OPT.get("dot2"):
                    out.append(["s_nop 0"] if False else [f"v_cvt_pk_bf16_f32 v{PB(par,b,u)+i//2}, v{r}, v{r+1}"])
                    out.append([f"v_dot2c_f32_bf16 v{V_L+b}, s{S_ONES}, v{PB(par,b,u)+i//2}"])
                elif OPT.get("pkl"):
                    out.append([f"v_cvt_pk_bf16_f32 v{PB(par,b,u)+i//2}, v{r}, v{r+1}"])
                    out.append([f"v_pk_add_f32 v[{V_LP+2*b}:{V_LP+2*b+1}], v[{V_LP+2*b}:{V_LP+2*b+1}], v[{r}:{r+1}]"])
                else:
                    out.append([f"v_add_f32 v{V_L+b}, v{V_L+b}, v{r}"])
                    out.append([f"v_add_f32 v{V_L+b}, v{V_L+b}, v{r+1}"])
                    out.append([f"v_cvt_pk_bf16_f32 v{PB(par,b,u)+i//2}, v{r}, v{r+1}"])
    if OPT.get("dot2") or OPT.get("pkl"):
        e = [out[i:i+2] for i in range(0, 64, 4)]; c = [out[i+2:i+4] for i in range(0, 64, 4)]
        res = list(e[0])
        for k in range(16):
            if k + 1 < 16: res += e[k+1]
            else: res += [["s_nop 0"]]
            res += c[k]
        return res
    return out
HEAD, TAIL = 35, 10
def period(p, pp, qk=True, dma=True, kread=True, nexthead=True, last=False, extra=(), endvm=(), xds=()):
    par = pp & 1; sl = (pp % 4) * SLOT
    sm = softmax_items(par); smn = softmax_items(par ^ 1)
    negm = lambda b: vr(NEGM(b), 16)
    d = (dma_d(pp + 3) if dma else []) + list(extra)
    sc = Sched()
    if qk:
        sc.add(qk_mf(par ^ 1, negm))
        sc.spread(vreads(sl, "VF"), 0, 10); sc.spread(sm[HEAD:len(sm)-TAIL], 0, 16)
    else:
        for x in vreads(sl, "VF"): p.e(x)
        for x in sm[HEAD:len(sm)-TAIL]: p.e(x)
        p.e("s_nop 1")
    g0 = sc.add(pv_mf(par))
    sc.before(g0, Wait(lg=["VF"]))
    sc.spread(sm[len(sm)-TAIL:], g0, g0 + 3)
    if kread: sc.spread(kreads(sl + 8192, "KF"), g0 + 3, g0 + 12)
    if nexthead: sc.spread(smn[:HEAD], g0 + 3, g0 + 16)
    if xds: sc.spread(list(xds), g0 + 3, g0 + 12)
    n = len(sc.mf)
    for k, x in enumerate(d): sc.fixed(1 + (k * (n - 2)) // max(len(d), 1), x)
    sc.emit(p)
    if not last:
        p.e(Wait(vm=[f"D{(pp+1)%4}"] + list(endvm), lg=["KF"])); p.e("s_barrier")

def maxtree(p, par, dst, init=True):
    for b in range(2):
        s0 = SB(par, b)
        if init: p.e(f"v_max3_f32 v{dst+b}, v{s0}, v{s0+1}, v{s0+2}"); rest = list(range(3, 16))
        else: rest = list(range(16))
        while len(rest) >= 2:
            p.e(f"v_max3_f32 v{dst+b}, v{dst+b}, v{s0+rest[0]}, v{s0+rest[1]}"); rest = rest[2:]
        if rest: p.e(f"v_max_f32 v{dst+b}, v{dst+b}, v{s0+rest[0]}")
def negm_from(p, m):
    p.e(f"""
    v_mov_b32 v{m+2}, v{m}
    v_mov_b32 v{m+3}, v{m+1}
    s_nop 1
    v_permlane32_swap_b32 v{m}, v{m+2}
    v_permlane32_swap_b32 v{m+1}, v{m+3}
    v_max_f32 v{m}, v{m}, v{m+2}
    v_max_f32 v{m+1}, v{m+1}, v{m+3}
    """)
    for b in range(2):
        for i in range(16): p.e(f"v_sub_f32 v{NEGM(b)+i}, 0, v{m+b}")

def attention(p):
    T = V_T
    p.label("K2_ATT")
    p.e(Wait(lg=["KF"]))
    zero = [f"v_accvgpr_write_b32 a{i}, 0" for i in range(128)]
    sc = Sched(); sc.add(qk_mf(0, lambda b: "0")); sc.spread(zero, 0, 16)
    for k, x in enumerate(dma_d(2)): sc.fixed(1 + 4*k, x)
    sc.emit(p)
    for g in kreads_hi(KKSLOT + 8192, "KF", T + 8): p.e(g)
    for i in range(4): p.e(f"v_mov_b32 v{V_LP+i}, 0")
    p.e(f"v_mov_b32 v{V_L}, 0\nv_mov_b32 v{V_L+1}, 0\ns_add_u32 s{S_GM}, s{S_W2K}, {gslot(0)}")
    p.e(f"s_cmp_lg_u32 s{S_FLAG}, 0\ns_cbranch_scc1 K2_HAVEM")
    maxtree(p, 0, T)
    negm_from(p, T)
    p.label("K2_HAVEM")
    for b in range(2):
        for i in range(16): p.e(f"v_add_f32 v{SB(0,b)+i}, v{SB(0,b)+i}, v{NEGM(b)+i}")
    for x in softmax_items(0)[:HEAD]: p.e(x)
    p.e(Wait(vm=["D0"], lg=["KF"])); p.e("s_barrier")
    p.e(f"s_mov_b32 s{S_LOOP}, 0")
    stamp(p, 3)
    p.e(f"""
    s_lshr_b32 s{S_T0}, s2, 3
    s_lshl_b32 s{S_T0}, s{S_T0}, 2
    s_add_u32 s{S_T0}, s{S_T0}, s{S_W}
    s_lshl_b32 s{S_PFD}, s{S_T0}, 13
    s_lshl_b32 s{S_PF}, s2, 2
    s_add_u32 s{S_PF}, s{S_PF}, s{S_W}
    s_lshl_b32 s{S_PF}, s{S_PF}, 13
    s_cmp_lt_u32 s{S_PF}, {4096*1024}
    s_cselect_b32 s72, s{S_WO}, s{S_WD}
    s_cselect_b32 s73, s{S_WO+1}, s{S_WD+1}
    s_cselect_b32 s74, s{S_WO+2}, s{S_WD+2}
    s_mov_b32 s75, 0x00020000
    s_and_b32 s{S_PF}, s{S_PF}, {4096*1024-1}
    """)
    mpf = [[Ins(f"buffer_load_dword v{V_PFD}, v{V_PFA}, s[72:75], s{S_PF} offen", "PF")]]
    period(p, 0, extra=mpf)
    p.loop_begin()
    for i in range(1, 5): period(p, i, extra=dma_g("G") if i in (1, 3) else ())
    p.loop_end("K2_LOOP", 3, [f"s_add_u32 s{S_LOOP}, s{S_LOOP}, 1", f"s_cmp_lt_u32 s{S_LOOP}, 3", "s_cbranch_scc1 K2_LOOP"])
    period(p, 13, dma=False, extra=bload(0, BR2, "C") + bload(1, BR2, "C") + bload(2, BR2, "C") + bload(3, BR2, "C"))
    g6 = dma_g("G6"); g6[0] = [f"s_mov_b32 s{S_GM}, s{S_W2K}"] + g6[0]
    period(p, 14, dma=False, kread=False, extra=g6 + dma_g("G7"), endvm=["G"])
    period(p, 15, qk=False, dma=False, kread=False, nexthead=False, last=True,
           extra=bload(4, BR2, "C") + bload(5, BR2, "C") + bload(6, BR2, "C") + bload(7, BR2, "C"), xds=areads_g(0))

V_LI = 48
def oepi_head(p):
    T = V_T
    if OPT.get("pkl"): p.e(f"v_add_f32 v{V_L}, v{V_LP}, v{V_LP+1}\nv_add_f32 v{V_L+1}, v{V_LP+2}, v{V_LP+3}")
    p.e(f"""
    v_mov_b32 v{T}, v{V_L}
    v_mov_b32 v{T+1}, v{V_L+1}
    s_nop 1
    v_permlane32_swap_b32 v{V_L}, v{T}
    v_permlane32_swap_b32 v{V_L+1}, v{T+1}
    v_add_f32 v{V_L}, v{V_L}, v{T}
    v_add_f32 v{V_L+1}, v{V_L+1}, v{T+1}
    v_add_f32 v{T+1}, v{V_L}, v{V_L+1}
    s_mov_b32 s{S_T0}, 0x5d800000
    v_cmp_ngt_f32 vcc, s{S_T0}, v{T+1}
    s_nop 1
    s_cmp_lg_u64 vcc, 0
    s_cselect_b32 s{S_T1}, 1, 0
    v_mov_b32 v{T}, s{S_T1}
    v_mov_b32 v{T+1}, {LDS_FLAG}
    v_mov_b32 v{T+2}, s{S_W}
    v_lshl_add_u32 v{T+2}, v{T+2}, 2, v{T+1}
    ds_write_b32 v{T+2}, v{T}
    """)
    p.e(Wait(vm=["G7"])); p.e("s_waitcnt lgkmcnt(0)\ns_barrier")
    p.e(f"""
    ds_read_b128 v[{T+4}:{T+7}], v{T+1}
    s_add_u32 s{S_T2}, s{S_OOFF}, 4096
    s_waitcnt lgkmcnt(0)
    v_or_b32 v{T+4}, v{T+4}, v{T+5}
    v_or3_b32 v{T+4}, v{T+4}, v{T+6}, v{T+7}
    s_nop 0
    v_readfirstlane_b32 s{S_T1}, v{T+4}
    s_nop 0
    s_andn2_b32 s{S_T1}, s{S_T1}, s{S_FLAG}
    s_cmp_lg_u32 s{S_T1}, 0
    s_cbranch_scc1 K2_SLOW
    v_rcp_f32 v{V_LI}, v{V_L}
    v_rcp_f32 v{V_LI+2}, v{V_L+1}
    s_nop 0
    v_mov_b32 v{V_LI+1}, v{V_LI}
    v_mov_b32 v{V_LI+3}, v{V_LI+2}
    """)
def oepi_groups():
    out = []; k = 0
    for t in range(4):
        for b in range(2):
            for uu in range(2):
                o0 = OACC(t, b) + 8*uu
                tmp = (k % 4) * 8; pk = 32 + (k % 4) * 4; k += 1
                g = [f"v_accvgpr_read_b32 v{tmp+i}, a{o0+i}" for i in range(8)]
                g += [f"v_mul_f32 v{tmp+i}, v{tmp+i}, v{V_LI+2*b}" for i in range(8)]
                g += [f"v_cvt_pk_bf16_f32 v{pk+i//2}, v{tmp+i}, v{tmp+i+1}" for i in range(0, 8, 2)]
                off = (2*t + uu) * 1024
                so = S_OOFF if off < 4096 else S_T2
                g.append(Ins(f"buffer_store_dwordx4 v[{pk}:{pk+3}], v{V_ST0+b}, {S4(S_ACT)}, s{so} offen offset:{off % 4096}{SC}", "OST"))
                out.append(g)
    return out

def slowpath():
    p = Prog(); T = V_T
    p.label("K2_SLOW")
    p.e(f"""
    s_mov_b32 s{S_FLAG}, 1
    s_mov_b32 s{S_KT}, 0
    s_mov_b32 s{S_LOOP}, 0
    s_sub_u32 s{S_BT}, s{S_BT}, 8192
    s_and_b32 s{S_BT}, s{S_BT}, 0x7fff
    v_mov_b32 v{T}, 0xff800000
    v_mov_b32 v{T+1}, 0xff800000
    s_waitcnt vmcnt(0) lgkmcnt(0)
    """)
    p.loop_begin()
    p.e("s_barrier")
    for g in dma_k(8192, "X"): p.e(g)
    p.e("s_waitcnt vmcnt(0)\ns_barrier")
    for x in kreads(8192, "KF"): p.e(x)
    p.e("s_waitcnt lgkmcnt(0)")
    for x in qk_mf(0, lambda b: "0"): p.e(x)
    p.e("s_nop 11")
    maxtree(p, 0, T, init=False)
    p.loop_end("K2_SLOWL", 16, [f"s_add_u32 s{S_LOOP}, s{S_LOOP}, 1", f"s_cmp_lt_u32 s{S_LOOP}, 16", "s_cbranch_scc1 K2_SLOWL"])
    negm_from(p, T)
    p.e(f"s_barrier\ns_mov_b32 s{S_KT}, s{S_ROT2}\ns_mov_b32 s{S_VT}, s{S_ROT2}")
    for g in dma_kk(): p.e(g)
    for i in range(2):
        for g in dma_d(i): p.e(g)
    p.e("s_waitcnt vmcnt(0)\ns_barrier")
    for g in kreads_hi(KKSLOT, "KF", T + 8): p.e(g)
    p.e("s_branch K2_ATT")
    return p

def late_setup():
    T = V_T; VL = K_VL
    return lines(f"""
    v_mbcnt_lo_u32_b32 v{VL}, -1, 0
    v_mbcnt_hi_u32_b32 v{VL}, -1, v{VL}
    s_and_b32 s{K_KQ}, s2, 3
    s_bfe_u32 s{K_QD}, s2, 0x10005
    s_xor_b32 s{K_QD}, s{K_QD}, s{K_KQ}
    s_lshr_b32 s{S_T0}, s2, 3
    s_and_b32 s{K_CT}, s{S_T0}, 3
    s_lshr_b32 s{K_SR32}, s{S_T0}, 2
    s_lshl_b32 s{K_SR32}, s{K_SR32}, 2
    s_and_b32 s{S_T0}, s2, 4
    s_lshr_b32 s3, s2, 6
    s_add_u32 s3, s3, s{S_T0}
    s_lshl_b32 s3, s3, {5+FSH()}
    s_lshl_b32 s{S_T0}, s{S_T0}, 3
    s_add_u32 s{K_SR32}, s{K_SR32}, s{S_T0}
    v_lshlrev_b32 v{K_VL16}, 4, v{VL}
    v_and_b32 v{T}, 3, v{VL}
    v_bfe_u32 v{T+1}, v{VL}, 2, 1
    v_lshl_add_u32 v{T}, v{T}, 3, v{T+1}
    s_lshl_b32 s{S_T0}, s{K_KQ}, 1
    v_add_u32 v{T}, s{S_T0}, v{T}
    v_lshlrev_b32 v{V_FL2}, {FSH()}, v{T}
    v_lshrrev_b32 v{T}, 4, v{VL}
    v_and_b32 v{T+1}, 15, v{VL}
    v_lshlrev_b32 v{T+2}, 2, v{T}
    v_xor_b32 v{T+1}, v{T+1}, v{T+2}
    v_lshlrev_b32 v{T+1}, 4, v{T+1}
    v_lshl_add_u32 v{K_VSW}, v{T}, 10, v{T+1}
    s_lshl_b32 s{S_T0}, s{S_W}, 12
    s_lshl_b32 s{S_T1}, s{K_CT}, 8
    s_add_u32 s{S_T0}, s{S_T0}, s{S_T1}
    v_add_u32 v{K_VSW}, s{S_T0}, v{K_VSW}
    s_add_u32 s{S_T0}, s{K_SR32}, s{S_W}
    s_mul_i32 s{S_T0}, s{S_T0}, {ACT_KS*1024}
    v_add_u32 v{K_VSA}, s{S_T0}, v{K_VL16}
    s_lshl_b32 s{K_SSW}, s{K_KQ}, 20
    s_lshl_b32 s{K_SSA}, s{K_KQ}, 16
    v_lshrrev_b32 v{T}, 5, v{VL}
    v_bfe_u32 v{T+1}, v{VL}, 2, 2
    v_bfe_u32 v{T+2}, v{VL}, 4, 1
    v_and_b32 v{T+3}, 3, v{VL}
    v_and_b32 v{T+4}, 1, v{T+3}
    v_lshrrev_b32 v{T+5}, 1, v{T+3}
    v_lshl_add_u32 v{T+4}, v{T+4}, 1, v{T+5}
    v_lshlrev_b32 v{T+5}, 5, v{T+2}
    v_lshl_add_u32 v{T+4}, v{T+4}, 3, v{T+5}
    v_lshl_add_u32 v{T+5}, v{T}, 2, v{T+1}
    v_lshl_add_u32 v{T+6}, v{T+5}, 8, v{T+4}
    s_and_b32 s{S_T0}, s{S_W}, 1
    s_lshl_b32 s{S_T0}, s{S_T0}, 1
    v_xor_b32 v{T+7}, s{S_T0}, v{T+1}
    v_lshl_add_u32 v{K_VRA}, v{T+7}, 6, v{T+6}
    v_xor_b32 v{T+7}, 1, v{T+7}
    v_lshl_add_u32 v{K_VRA+1}, v{T+7}, 6, v{T+6}
    v_add_u32 v{K_VRA+2}, 0x10000, v{K_VRA}
    v_add_u32 v{K_VRA+3}, 0x10000, v{K_VRA+1}
    v_add_u32 v{K_VRA+4}, 0x20000, v{K_VRA}
    v_add_u32 v{K_VRA+5}, 0x20000, v{K_VRA+1}
    s_and_b32 s{S_T0}, s{S_W}, 2
    s_lshl_b32 s{S_T0}, s{S_T0}, 12
    v_add_u32 v{K_VRB}, s{S_T0}, v{K_VL16}
    v_add_u32 v{K_VRB+1}, 0x10000, v{K_VRB}
    v_add_u32 v{K_VRB+2}, 0x20000, v{K_VRB}
    s_lshl_b32 s{K_SLB}, s{S_W}, 14
    s_add_u32 s{K_SLB}, s{K_SLB}, 65536
    v_lshl_add_u32 v{T+6}, v{T+5}, 7, v{T+4}
    v_add_u32 v{T+6}, s{K_SLB}, v{T+6}
    v_lshrrev_b32 v{T+7}, 1, v{T+1}
    v_lshl_add_u32 v{K_VA0}, v{T+7}, 6, v{T+6}
    v_xor_b32 v{T+7}, 1, v{T+7}
    v_lshl_add_u32 v{K_VA0+1}, v{T+7}, 6, v{T+6}
    v_subrev_u32 v{K_VA2}, 0x10000, v{K_VA0}
    v_subrev_u32 v{K_VA2+1}, 0x10000, v{K_VA0+1}
    s_mul_i32 s{K_SWO}, s{S_W}, {28*16384}
    s_mul_i32 s{K_SA}, s{S_W}, {28*1024}
    s_add_u32 s{K_SA}, s{K_SA}, {256*1024}
    s_and_b32 s{S_T1}, s{K_QD}, 2
    s_add_u32 s{S_T1}, s{S_T1}, s{K_SR32}
    s_mul_i32 s{S_T0}, s{S_T1}, {ACT_KS*1024}
    v_add_u32 v{K_VB0}, s{S_T0}, v{K_VL16}
    v_add_u32 v{K_VB1}, {ACT_KS*1024}, v{K_VB0}
    s_lshr_b32 s{S_T0}, s{S_W}, 1
    s_add_u32 s{S_T0}, s{S_T0}, s{S_T1}
    s_lshl_b32 s{S_T0}, s{S_T0}, 15
    s_and_b32 s{S_T1}, s{S_W}, 1
    s_lshl_b32 s{S_T1}, s{S_T1}, 6
    s_add_u32 s{S_T0}, s{S_T0}, s{S_T1}
    s_lshl_b32 s{S_T1}, s{K_CT}, 8
    s_and_b32 s{K_SPO}, s{K_QD}, 1
    s_lshl_b32 s{K_SPO}, s{K_SPO}, 7
    s_add_u32 s{S_T1}, s{S_T1}, s{K_SPO}
    s_add_u32 s{S_T0}, s{S_T0}, s{S_T1}
    v_and_b32 v{T+6}, 31, v{VL}
    v_lshlrev_b32 v{T+6}, 10, v{T+6}
    v_lshl_add_u32 v{T+6}, v{T}, 4, v{T+6}
    v_add_u32 v{K_VX}, s{S_T0}, v{T+6}
    v_lshrrev_b32 v{T+6}, 3, v{VL}
    v_and_b32 v{T+7}, 7, v{VL}
    v_lshlrev_b32 v{T+5}, 2, v{T+2}
    v_xor_b32 v{T+7}, v{T+7}, v{T+5}
    v_lshlrev_b32 v{T+7}, 4, v{T+7}
    v_lshl_add_u32 v{K_VW0}, v{T+6}, 10, v{T+7}
    v_add_u32 v{K_VW0}, s{S_T1}, v{K_VW0}
    v_add_u32 v{K_VW1}, {8192-1024}, v{K_VW0}
    s_lshr_b32 s{S_T0}, s2, 2
    s_lshl_b32 s{K_SPO}, s{S_T0}, {7 if FSH() == 2 else 4+FSH()}
    s_add_u32 s{K_SPO}, s{K_SPO}, {PFL0}
    s_lshl_b32 s{S_T0}, s{S_T0}, 17
    s_lshl_b32 s{S_T1}, s{S_W}, 15
    s_add_u32 s{K_SST}, s{S_T0}, s{S_T1}
    s_lshl_b32 s{S_T1}, s{K_KQ}, 13
    s_add_u32 s{K_SST}, s{K_SST}, s{S_T1}
    s_lshl_b32 s{S_T1}, s{K_QD}, 15
    s_add_u32 s{S_T0}, s{S_T0}, s{S_T1}
    s_lshl_b32 s{S_T1}, s{S_W}, 11
    s_add_u32 s{K_SLD}, s{S_T0}, s{S_T1}
    """)
def ks_sw(g):
    return [[f"s_add_u32 m0, s{S_W1K}, {kslot(g)+st*4096}", "s_nop 0",
             Ins(f"buffer_load_dwordx4 v{K_VSW}, {S4(S_WO)}, s{K_SSW} offen lds", f"sw{g}"), f"s_add_u32 s{K_SSW}, s{K_SSW}, {0 if OPT.get('wfix') else 16384}"] for st in range(4)]
def ks_sa(g):
    out = [[f"s_add_u32 m0, s{S_W4K}, {kslot(g)+16384}", "s_nop 0",
            Ins(f"buffer_load_dwordx4 v{K_VSA}, {S4(S_ACT)}, s{K_SSA} offen offset:{st*1024}{LSC()} lds", f"sa{g}")] for st in range(4)]
    out[-1].append(f"s_add_u32 s{K_SSA}, s{K_SSA}, {0 if OPT.get('afix') else 4096}")
    return out
def FA(i, nt): return (i % 3)*16 + nt*4
def FB(i, b): return (i % 3)*16 + 8 + b*4
def ks_rd(i):
    g, st = i // 4, i % 4
    sl = kslot(g); hi = sl // 65536; sl -= hi * 65536
    out = [Ins(f"ds_read_b64_tr_b16 {ar(FA(i,nt)+2*e,2)}, v{K_VRA+2*hi+nt} offset:{sl+st*4096+e*2048}", f"f{i}") for nt in range(2) for e in range(2)]
    out += [Ins(f"ds_read_b128 {ar(FB(i,b),4)}, v{K_VRB+hi} offset:{sl+16384+b*4096+st*1024}", f"f{i}") for b in range(2)]
    return out
def BR3(i, b): return 128 + (i % 14)*8 + b*4
def AB3(par, nt): return 240 + par*8 + nt*4
def kbo(i): return (i % 8) * 2048 - (65536 if (i % 16) >= 8 else 0)
def kb_wl(i):
    return [[f"s_add_u32 m0, s{K_SLB}, {kbo(i) & 0xffffffff}", "s_nop 0", Ins(f"buffer_load_dwordx4 v{K_VW0}, {S4(S_WD)}, s{K_SWO} offen lds", f"w{i}")],
            [f"s_add_u32 m0, s{K_SLB}, {kbo(i) & 0xffffffff}", "s_nop 0", Ins(f"buffer_load_dwordx4 v{K_VW1}, {S4(S_WD)}, s{K_SWO} offen offset:1024 lds", f"w{i}"),
             f"s_add_u32 s{K_SWO}, s{K_SWO}, {0 if OPT.get('wfix') else 16384}"]]
def kb_bl(i):
    return [[Ins(f"buffer_load_dwordx4 {ar(BR3(i,0),4)}, v{K_VB0}, {S4(S_ACT)}, s{K_SA} offen{LSC()}", f"b{i}")],
            [Ins(f"buffer_load_dwordx4 {ar(BR3(i,1),4)}, v{K_VB1}, {S4(S_ACT)}, s{K_SA} offen{LSC()}", f"b{i}"), f"s_add_u32 s{K_SA}, s{K_SA}, {0 if OPT.get('afix') else 1024}"]]
def kb_rd(i):
    return [Ins(f"ds_read_b64_tr_b16 {ar(AB3(i&1,nt)+2*e,2)}, v{(K_VA0 if (i % 16) < 8 else K_VA2)+nt} offset:{(i%8)*2048+e*1024}", f"a{i}") for nt in range(2) for e in range(2)]

def hepi_groups():
    T = V_T; out = []; k = 0
    for t in range(2):
        for b in range(2):
            for uu in range(2):
                g0 = GACC(t, b) + 8*uu; u0 = GACC(t + 2, b) + 8*uu
                pk = u0; k += 1
                g = [f"v_pk_mul_f32 v[{g0+i}:{g0+i+1}], v[{g0+i}:{g0+i+1}], s[{S_NL2E}:{S_NL2E+1}]" for i in range(0, 8, 2)]
                g += [f"v_exp_f32 v{g0+i}, v{g0+i}" for i in range(8)]
                g += [f"v_add_f32 v{g0+i}, 1.0, v{g0+i}" for i in range(8)]
                g += [f"v_rcp_f32 v{g0+i}, v{g0+i}" for i in range(8)]
                g += ["s_nop 0"] + [f"v_pk_mul_f32 v[{g0+i}:{g0+i+1}], v[{g0+i}:{g0+i+1}], v[{u0+i}:{u0+i+1}]" for i in range(0, 8, 2)]
                g += [f"v_cvt_pk_bf16_f32 v{pk+i//2}, v{g0+i}, v{g0+i+1}" for i in range(0, 8, 2)]
                g.append(Ins(f"buffer_store_dwordx4 v[{pk}:{pk+3}], v{V_ST0+b}, {S4(S_ACT)}, s{S_HOFF} offen offset:{(2*t+uu)*1024}{SC}", "HST"))
                out.append(g)
    return out

class Sched2(Sched):
    def __init__(self, dense_from): Sched.__init__(self); self.dense = dense_from
    def _free(self, g):
        if g >= self.dense: return g not in self.vm
        return Sched._free(self, g)

def late(p):
    OSP = OPT.get("osp", 8); OBAR = OPT.get("obar", 18); HFIRST = OPT.get("hfirst", 4)
    HSP = OPT.get("hsp", 0); HBAR = OPT.get("hbar", 14); SYH = OPT.get("syh", 47)
    PSP = OPT.get("psp", 2); PFL = OPT.get("pfl", 14); PPI = OPT.get("ppi", 25)
    KS0, KB0 = 256, 512
    NSA0 = 5
    ESY = OPT.get('esy', 29)
    NSE = min(4, (32 - ESY)) if ESY else 0
    sc = Sched2(OPT.get("dense", KB0 - 8))
    FT = V_T + 18
    p.e("s_load_dwordx2 s[60:61], s[0:1], 88\ns_load_dwordx2 s[72:73], s[0:1], 72")
    for s in range(32):
        mf = []
        for a in range(4):
            for b in range(2):
                d = vr(GACC(a, b), 16)
                mf.append(mfma(d, ar(AB2(s & 1, a), 4), ar(BR2(s, b), 4), d if s else "0"))
        g0 = sc.add(mf)
        if s - 1 in (6, 14, 22, 30) or s - 1 == OBAR:
            vm = (["OST"] if s - 1 == OBAR else [])
            sc.before(g0, [Wait(vm=vm, lg=[f"AG{s}"]), "s_barrier"])
        sc.before(g0, Wait(vm=[f"C{s}"], lg=[f"AG{s}"]))
        if s % 4 == 0: sc.before(g0, lambda p, s=s: stamp(p, 1 + s // 4, 2))
        if s == 1: sc.before(g0, ["s_waitcnt lgkmcnt(0)"] + srd_l(S_PT, 60, 61, PART_BYTES, add=WS_PART) + srd_l(S_OUT, 72, 73, 2097152))
        if s == OBAR + 1: sc.fixed(g0, flag_store(1, FT, FT + 1, one='O'))
        if ESY and s == ESY - OPT.get("esl", 4): sc.fixed(g0 + 2, [poll_issue(1, K_SGO, "PO", V_FL2)])
        if ESY and s == ESY: sc.before(g0, lambda p: poll_check(p, "SYO", 1, K_SGO, "PO", K_CNT, V_FL2))
        if s + 1 < 32: sc.spread(areads_g(s + 1), g0, g0 + 4)
        if s >= 8:
            for x in bload(s, BR2, "C"): sc.queue("C", x, max(0, 8*(s - 12) + 7), 8*s - 40)
    for k, grp in enumerate(oepi_groups()):
        e = 5 + OSP*k
        sc.spread(grp[:-1], max(0, e - OSP), e); sc.fixed(e, [grp[-1]])
    assert 5 + OSP*15 < 8*OBAR
    sc.spread(late_setup(), 8, 56)
    RPO, RPD = OPT.get("rpo", 150), OPT.get("rpd", 330)
    sc.spread([f"v_and_b32 v{V_PFA}, 0x380, v{V_PFA}", f"v_lshlrev_b32 v{V_PFA}, 3, v{V_PFA}", f"v_add_u32 v{V_PFA}, 384, v{V_PFA}"], 60, 63)
    if RPO:
        sc.fixed(RPO, [f"s_lshl_b32 s{S_T1}, s{K_KQ}, 20", f"s_add_u32 s{S_T0}, s{S_PFD}, s{S_T1}",
                       Ins(f"buffer_load_dword v{V_PFD}, v{V_PFA}, {S4(S_WO)}, s{S_T0} offen", "PF")])
    if RPD:
        for k in range(2):
            sc.fixed(RPD + 40*k, [Ins(f"buffer_load_dword v{V_PFD}, v{V_PFA}, {S4(S_WD)}, s{S_PFD} offen", "PF"), f"s_xor_b32 s{S_PFD}, s{S_PFD}, 0x100000"])
    for i in range(64):
        g, st = i // 4, i % 4
        mf = []
        for b in range(2):
            for nt in range(2):
                d = vr((nt + 2*b) * 16, 16)
                mf.append(mfma(d, ar(FA(i, nt), 4), ar(FB(i, b), 4), "0" if i == 0 else d))
        g0 = sc.add(mf)
        if i == 0:
            def mid(p):
                stamp(p, 5); stamp(p, 9, 2)
                hg = [x[:-1] if HSP else x for x in hepi_groups()]
                p.e("s_nop 7")
                hf = 0 if ESY else HFIRST
                for k in range(hf):
                    if k == hf - OPT.get("hpoll", 2): p.e(poll_issue(1, K_SGO, "PO", V_FL2))
                    p.e(hg[k])
                stamp(p, 1, 3)
                if not ESY: poll_check(p, "SYO", 1, K_SGO, "PO", K_CNT, V_FL2)
                stamp(p, 6)
                vq = sum((ks_sa(g) for g in range(NSE, NSA0)), [])
                hs = sum(hg[hf:], [])
                first = OPT.get("safirst", 4)
                for x in vq[:first]: p.e(x)
                vq = vq[first:]
                for k, x in enumerate(hs):
                    p.e(x)
                    if k % 10 == 5 and vq: p.e(vq.pop(0))
                for x in vq: p.e(x)
                p.e(Wait(vm=["sw0", "sa0"])); p.e("s_barrier")
                for x in ks_rd(0) + ks_rd(1): p.e(x)
            sc.before(g0, mid)
        if st == 2 and g + 1 < 16:
            sc.before(g0, [Wait(vm=[f"sw{g+1}", f"sa{g+1}"] + (["HST"] if i == HBAR else []), lg=[f"f{i+1}"]), "s_barrier"])
        if i == HBAR: sc.fixed(g0, flag_store(2, FT, FT + 1, one='H'))
        if i == SYH - 5: sc.fixed(g0, [poll_issue(2, 3, "PH")])
        if i == SYH: sc.before(g0, lambda p: (stamp(p, 7), poll_check(p, "SYH", 2, 3, "PH", K_CNT)))
        sc.before(g0, Wait(lg=[f"f{i}"]))
        if i % 8 == 0: sc.before(g0, lambda p, i=i: stamp(p, 2 + i // 8, 3))
        if i + 2 < 64: sc.spread(ks_rd(i + 2), g0, g0 + 4)
        if i == 63: sc.spread([Wait(vm=["w0"])] + kb_rd(0), g0, g0 + 2)
    for g in range(16):
        free = {0: 56, 1: 56, 2: 120, 3: 184, 4: 248}.get(g, KS0 + 4*(4*(g - 5) + 2))
        need = 248 if g == 0 else KS0 + 4*(4*(g - 1) + 2)
        for x in ks_sw(g): sc.queue("sw", x, free, need - 40)
        if g >= NSA0:
            for x in ks_sa(g): sc.queue("sa", x, max(free, KS0), need - 44)
        elif g < NSE:
            for x in ks_sa(g): sc.queue("sa", x, max(free, 8*ESY), 100)
    if HSP:
        for k, grp in enumerate(hepi_groups()): sc.fixed(KS0 + 2 + HSP*k, [grp[-1]])
    assert 2 + HSP*7 < 4*HBAR
    for i in range(28):
        mf = []
        for b in range(2):
            for nt in range(2):
                d = vr(64 + (nt + 2*b) * 16, 16)
                mf.append(mfma(d, ar(AB3(i & 1, nt), 4), ar(BR3(i, b), 4), "0" if i == 0 else d))
        g0 = sc.add(mf)
        if i == 0: sc.before(g0, lambda p: (stamp(p, 8), stamp(p, 10, 3)))
        if i % 4 == 0: sc.before(g0, lambda p, i=i: stamp(p, 1 + i // 4, 4))
        if i + 1 < 28: sc.before(g0, [Wait(vm=[f"w{i+1}", f"b{i}"])] + kb_rd(i + 1))
        else: sc.before(g0, Wait(vm=[f"b{i}"]))
        if i == PFL:
            sc.before(g0, lines(f"""
            s_lshl_b32 s{S_FO}, s{S_W}, {2+FSH()}
            s_add_u32 s{S_FO}, s{S_FO}, s{K_SPO}
            s_lshl_b32 s{S_T0}, s{K_KQ}, {FSH()}
            s_add_u32 s{S_FO}, s{S_FO}, s{S_T0}
            s_lshl_b32 s{S_T0}, s{K_QD}, {2+FSH()}
            s_add_u32 s{K_SPO}, s{K_SPO}, s{S_T0}
            v_and_b32 v{V_FL}, {3 << FSH()}, v{V_FL}
            """) + [Wait(vm=["PSS"])])
            sc.fixed(g0, flag_store(0, FT, FT + 1))
        if i == PPI: sc.fixed(g0, [poll_issue(0, K_SPO, "PP")])
        sc.before(g0, Wait(lg=[f"a{i}"]))
        if i == 0: sc.before(g0, "s_barrier")
        for x in kb_wl(i): sc.queue("w", x, KS0 + 4*50 if i < 8 else (KB0 if i < 16 else KB0 + 4*(i - 16)), KB0 + 4*(i - 1) - 40)
        for x in kb_bl(i): sc.queue("b", x, KS0 + 4*SYH if i < 14 else KB0 + 4*(i - 14) + 3, KB0 + 4*i - 40)
    for k in range(8):
        r = 8*k; pk = 128 + 4*k; e = KB0 + OPT.get('ps0', 6) + PSP*k
        grp = [f"v_cvt_pk_bf16_f32 v{pk+i}, v{r+2*i}, v{r+2*i+1}" for i in range(4)]
        if k == 4: grp.append(f"s_add_u32 s{K_SST}, s{K_SST}, 4096")
        sc.spread(grp, e - 2, e)
        sc.fixed(e, [Ins(f"buffer_store_dwordx4 v[{pk}:{pk+3}], v{K_VL16}, {S4(S_PT)}, s{K_SST} offen offset:{(k%4)*1024}{SC}", "PSS")])
    sc.queue("x", [Ins(f"buffer_load_dwordx4 v[176:179], v{K_VX}, {S4(S_X)}, 0 offen", "X")], KB0 + 64, 700)
    sc.queue("x", [Ins(f"buffer_load_dwordx4 v[180:183], v{K_VX}, {S4(S_X)}, 0 offen offset:32", "X")], KB0 + 64, 700)
    sc.emit(p)
    for gp, grp in sc.vm.items():
        for x in grp:
            if isinstance(x, Ins) and x.tag in [f"sa{g}" for g in range(NSE)]: assert gp < KS0, (gp, x.t)
    if sc.report: print("late:", len(sc.report), sc.report[:60])
    stamp(p, 9); stamp(p, 8, 4)
    T = V_T
    poll_check(p, "SYP", 0, K_SPO, "PP", K_CNT)
    stamp(p, 10)
    for src in range(4):
        p.e(f"buffer_load_dwordx4 v[{144+8*src}:{147+8*src}], v{K_VL16}, {S4(S_PT)}, s{K_SLD} offen{SC}", tag=f"PL{src}")
        p.e(f"buffer_load_dwordx4 v[{148+8*src}:{151+8*src}], v{K_VL16}, {S4(S_PT)}, s{K_SLD} offen offset:1024{SC}", tag=f"PL{src}")
        p.e(f"s_add_u32 s{K_SLD}, s{K_SLD}, 8192")
    p.e(f"""
    v_add_u32 v{T}, s{K_SLB}, v{K_VL16}
    s_add_u32 s{S_T0}, s{S_W4K}, 65536
    v_add_u32 v{T+1}, s{S_T0}, v{K_VL16}
    """)
    for order in range(16):
        r = 64 + 4*order
        p.e(f"ds_write_b128 v{T}, v[{r}:{r+3}] offset:{order*1024}")
    p.e("s_waitcnt lgkmcnt(0)\ns_barrier")
    for sw_ in range(4):
        for rg in range(4):
            d = 64 + sw_*16 + rg*4
            p.e(f"ds_read_b128 v[{d}:{d+3}], v{T+1} offset:{sw_*16384+rg*1024}", tag=f"R{sw_}")
    def pk(op, d, a, b): return f"v_pk_{op}_f32 v[{d}:{d+1}], v[{a}:{a+1}], {b}"
    for i in range(8): p.e(f"v_lshlrev_b32 v{48+2*i}, 16, v{176+i}\nv_and_b32 v{49+2*i}, 0xffff0000, v{176+i}")
    p.e(Wait(lg=["R1"]))
    for i in range(0, 16, 2): p.e(pk("add", 64+i, 64+i, f"v[{80+i}:{81+i}]"))
    p.e("s_waitcnt lgkmcnt(0)")
    for i in range(0, 16, 2): p.e(pk("add", 96+i, 96+i, f"v[{112+i}:{113+i}]"))
    for i in range(0, 16, 2): p.e(pk("add", 64+i, 64+i, f"v[{96+i}:{97+i}]"))
    for i in range(0, 16, 2): p.e(pk("mul", 16+i, 64+i, f"s[{S_NL2E}:{S_NL2E+1}]"))
    for i in range(16): p.e(f"v_exp_f32 v{16+i}, v{16+i}")
    for i in range(16): p.e(f"v_add_f32 v{16+i}, 1.0, v{16+i}")
    for i in range(16): p.e(f"v_rcp_f32 v{16+i}, v{16+i}")
    for i in range(0, 16, 2): p.e(pk("mul", 64+i, 64+i, f"v[{16+i}:{17+i}]"))
    for src in range(4):
        p.e(Wait(vm=[f"PL{src}"]))
        d = 0 if src == 0 else 16
        for i in range(8): p.e(f"v_lshlrev_b32 v{d+2*i}, 16, v{144+8*src+i}\nv_and_b32 v{d+2*i+1}, 0xffff0000, v{144+8*src+i}")
        if src:
            for i in range(0, 16, 2): p.e(pk("add", i, i, f"v[{16+i}:{17+i}]"))
    for i in range(0, 16, 2): p.e(f"v_pk_fma_f32 v[{i}:{i+1}], v[{i}:{i+1}], v[{64+i}:{65+i}], v[{48+i}:{49+i}]")
    for i in range(8): p.e(f"v_cvt_pk_bf16_f32 v{32+i}, v{2*i}, v{2*i+1}")
    p.e(f"""
    buffer_store_dwordx4 v[32:35], v{K_VX}, {S4(S_OUT)}, 0 offen{" sc1" if OPT.get("osc") else ""}
    buffer_store_dwordx4 v[36:39], v{K_VX}, {S4(S_OUT)}, 0 offen offset:32{" sc1" if OPT.get("osc") else ""}
    """)
    stamp(p, 11)

def gen():
    p = Prog()
    setup(p)
    layernorm(p)
    p1q(p)
    stamp(p, 2); stamp(p, 9, 1); stamp(p, 11, 5)
    srd(p, S_WO, 60, 61, 4096*1024)
    p.e("s_nop 7")
    for g in qconv(): p.e(g)
    attention(p)
    stamp(p, 4)
    oepi_head(p)
    late(p)
    stamp_flush(p, 12)
    p.label("K_END")
    p.e("s_endpgm")
    return p, slowpath()

KD = """.section .rodata,"a"
.p2align 6
.amdhsa_kernel {name}
  .amdhsa_next_free_vgpr 512
  .amdhsa_next_free_sgpr 102
  .amdhsa_accum_offset 256
  .amdhsa_group_segment_fixed_size 0
  .amdhsa_kernarg_size 96
  .amdhsa_user_sgpr_count 2
  .amdhsa_user_sgpr_kernarg_segment_ptr 1
  .amdhsa_system_sgpr_workgroup_id_x 1
.end_amdhsa_kernel
"""
HEADER = open("cdna_kernels/" + NAME + ".s.ref").read().split("; Override launch")[0]

def build(out):
    k, slow = gen()
    errs = []
    for nm, pr in (("k", k), ("slow", slow)):
        resolve(pr)
        errs += check(pr.trace(), nm)
        if nm == 'k': errs += check_tags(pr.trace())
    for e in errs[:40]: print("HAZARD", e)
    if errs: print(len(errs), "problems")
    nm = NAME + "_kernel"
    s = HEADER + f"; @launch grid=(256,1,1) block=(256,1,1) lds={LDS_TOTAL}\n"
    s += '.amdgcn_target "amdgcn-amd-amdhsa--gfx950"\n.text\n'
    s += f".globl {nm}\n.p2align 8\n.type {nm},@function\n{nm}:\n{k.text()}{slow.text()}CODE_END:\n"
    s += KD.format(name=nm)
    open(out, "w").write(s)
    return len(errs)

if __name__ == "__main__":
    out = sys.argv[1] if len(sys.argv) > 1 else "cdna_kernels/" + NAME + ".s"
    STAMPS = "stamps" in sys.argv[2:]
    for a in sys.argv[2:]:
        if "=" in a: OPT[a.split("=")[0]] = int(a.split("=")[1])
    if OPT.get("dot2") or OPT.get("pkl"): HEAD, TAIL = 28, 9
    sys.exit(1 if build(out) else 0)
```

```python
import re

class Ins:
    __slots__ = ("t", "tag", "need", "cost")
    def __init__(self, t, tag=None, need=None, cost=None):
        self.t = t; self.tag = tag; self.need = need; self.cost = cost
    def __repr__(self): return self.t

class Loop:
    def __init__(self, label, count, body, pre, post):
        self.label = label; self.count = count; self.body = body; self.pre = pre; self.post = post

TRANS = ("v_exp_f32", "v_log_f32", "v_rcp_f32", "v_rsq_f32", "v_sqrt_f32", "v_sin_f32", "v_cos_f32")

def cost_of(t):
    m = t.split()[0]
    if m.startswith(TRANS): return 8
    if m.startswith("v_mfma"): return 8
    if m.startswith("s_nop"): return 4 * (int(t.split()[1]) + 1)
    if m.startswith("buffer_") or m.startswith("global_"): return 8
    if m.startswith("s_"): return 2
    return 4

class Prog:
    def __init__(self):
        self.stack = [[]]
    @property
    def cur(self): return self.stack[-1]
    def e(self, t, tag=None, need=None):
        if isinstance(t, Ins): self.cur.append(t); return
        if isinstance(t, (list, tuple)):
            for x in t: self.e(x)
            return
        for line in t.strip("\n").split("\n"):
            line = line.split(";")[0].strip()
            if line: self.cur.append(Ins(line, tag, need))
    def label(self, name): self.cur.append(Ins(name + ":"))
    def skip_begin(self): self._skip = len(self.cur)
    def skip_end(self):
        for x in self.cur[self._skip:]: x.cost = "skip"
    def loop_begin(self): self.stack.append([])
    def loop_end(self, label, count, post):
        body = self.stack.pop()
        self.cur.append(Loop(label, count, body, [], [Ins(x) for x in post]))
    def text(self):
        out = []
        def rec(items):
            for it in items:
                if isinstance(it, Loop):
                    out.append(it.label + ":")
                    rec(it.body)
                    for x in it.post: out.append("    " + x.t)
                else:
                    out.append(it.t if it.t.endswith(":") else "    " + it.t)
        rec(self.stack[0])
        return "\n".join(out) + "\n"
    def trace(self):
        out = []
        def rec(items):
            for it in items:
                if isinstance(it, Loop):
                    for _ in range(it.count):
                        rec(it.body)
                        out.extend(it.post)
                elif not it.t.endswith(":") and it.cost != "skip":
                    out.append(it)
        rec(self.stack[0])
        return out

def weave(p, mf, queues):
    n = len(mf)
    slots = [[] for _ in range(n)]
    for items, start, end in queues:
        if not items: continue
        groups = [g if isinstance(g, (list, tuple)) else [g] for g in items]
        costs = [sum(cost_of(x.t if isinstance(x, Ins) else x) for x in g) for g in groups]
        tot = float(sum(costs)); span = end - start
        assert span > 0 and end <= n, (start, end, n)
        acc = 0.0
        for g, c in zip(groups, costs):
            pos = start + int((acc + c * 0.5) / tot * span)
            pos = min(max(pos, start), end - 1)
            slots[pos].extend(g)
            acc += c
    for i in range(n):
        p.e(mf[i])
        for x in slots[i]: p.e(x)

REG = re.compile(r"^(-|abs\()?([vas])(\d+)\)?$")
RNG = re.compile(r"^(-|abs\()?([vas])\[(\d+):(\d+)\]\)?$")
def regs(tok):
    tok = tok.strip()
    m = REG.match(tok)
    if m: return [(m.group(2), int(m.group(3)))]
    m = RNG.match(tok)
    if m: return [(m.group(2), i) for i in range(int(m.group(3)), int(m.group(4)) + 1)]
    if tok in ("vcc", "m0", "exec", "scc"): return [(tok, 0)]
    if tok in ("exec_hi", "exec_lo"): return [("exec", 0)]
    return []
def split_ops(s):
    ops, depth, cur = [], 0, ""
    for ch in s:
        if ch in "[(": depth += 1
        if ch in "])": depth -= 1
        if ch == "," and depth == 0: ops.append(cur.strip()); cur = ""
        else: cur += ch
    if cur.strip(): ops.append(cur.strip())
    return ops

class Dec:
    pass
def decode(t):
    d = Dec()
    parts = t.split(None, 1)
    m = parts[0]; d.m = m
    rest = parts[1] if len(parts) > 1 else ""
    ops = split_ops(rest)
    mods = ""
    if ops:
        sp = ops[-1].split(None, 1)
        if len(sp) > 1 and not ops[-1].startswith("hwreg"):
            ops[-1] = sp[0]; mods = sp[1]
    d.mods = mods; d.ops = ops
    W, R = [], []
    d.cls = "other"
    d.srcC = []; d.srcAB = []
    if m.startswith("v_mfma"):
        d.cls = "mfma"; W = regs(ops[0]); d.srcAB = regs(ops[1]) + regs(ops[2]); d.srcC = regs(ops[3]); R = d.srcAB + d.srcC
        d.passes = 8 if "32x32" in m else 4
    elif m.startswith("v_"):
        d.cls = "valu"
        if m.startswith("v_cmp"):
            W = regs(ops[0]); R = sum((regs(o) for o in ops[1:]), [])
        elif m.startswith("v_permlane") and "swap" in m:
            W = regs(ops[0]) + regs(ops[1]); R = list(W)
        else:
            W = regs(ops[0]); R = sum((regs(o) for o in ops[1:]), [])
            if m.startswith(("v_fmac", "v_dot2c", "v_pk_fmac")): R += W
            if "dpp" in m: R += W
            if m.startswith("v_cndmask") and len(ops) == 3: R += [("vcc", 0)]
    elif m.startswith("buffer_") or m.startswith("global_"):
        d.cls = "vmem"
        if m in ("buffer_wbl2", "buffer_inv"): pass
        elif "lds" in mods.split() or "load_lds" in m:
            R = sum((regs(o) for o in ops), []) + [("m0", 0)]; d.dma = True
        elif "load" in m:
            W = regs(ops[0]); R = sum((regs(o) for o in ops[1:]), [])
        elif "atomic" in m:
            R = sum((regs(o) for o in ops), [])
            if "sc0" in mods.split(): W = regs(ops[0])
        else:
            R = sum((regs(o) for o in ops), []); d.store = regs(ops[0]) if m.startswith("buffer") else regs(ops[1])
    elif m.startswith("ds_"):
        d.cls = "ds"
        if m.startswith(("ds_read", "ds_swizzle", "ds_bpermute")):
            W = regs(ops[0]); R = sum((regs(o) for o in ops[1:]), [])
        else:
            R = sum((regs(o) for o in ops), [])
    elif m.startswith(("s_load", "s_memtime", "s_memrealtime")):
        d.cls = "smem"; W = regs(ops[0]); R = sum((regs(o) for o in ops[1:]), [])
    elif m == "s_waitcnt": d.cls = "wait"
    elif m == "s_nop": d.cls = "nop"
    elif m in ("s_barrier", "s_endpgm", "s_sleep", "s_setprio") or m.startswith(("s_cbranch", "s_branch")): d.cls = "ctl"
    elif m.startswith("s_"):
        d.cls = "salu"
        if m.startswith("s_cmp"): R = sum((regs(o) for o in ops), [])
        else:
            W = regs(ops[0]); R = sum((regs(o) for o in ops[1:]), [])
            if m.startswith(("s_addk", "s_mulk")): R += W
    d.W = set(W); d.R = set(R)
    d.trans = m.startswith(TRANS)
    return d

def check(trace, name=""):
    errs = []
    dec = [decode(i.t) for i in trace]
    pos = []; c = 0
    for i, d in enumerate(dec):
        pos.append(c)
        c += (int(d.ops[0]) + 1) if d.cls == "nop" else 1
    def err(i, j, msg): errs.append(f"{name}: [{j}] {trace[j].t}  ->  [{i}] {trace[i].t} : {msg}")
    vm = []; lg = []
    for i, d in enumerate(dec):
        j = i - 1
        while j >= 0 and pos[i] - pos[j] - (1 if dec[j].cls != "nop" else int(dec[j].ops[0]) + 1) < 20:
            q = dec[j]
            ws = pos[i] - pos[j] - (1 if q.cls != "nop" else int(q.ops[0]) + 1)
            def needs(n, msg):
                if ws < n: err(i, j, f"{msg}: have {ws} need {n}")
            vW = {r for r in q.W if r[0] in "va"}
            if q.cls == "valu":
                if d.cls == "mfma" and vW & d.R: needs(2, "VALU->MFMA")
                if q.trans and d.cls == "valu" and not d.trans and vW & d.R: needs(1, "trans->valu")
                if q.trans and d.cls in ("mfma",) and vW & d.R: needs(2, "trans->mfma")
                if d.m.startswith("v_permlane") and vW & d.R: needs(2, "VALU->permlane")
                if "dpp" in d.m and vW & d.R: needs(2, "VALU->DPP")
                if d.m.startswith(("v_readfirstlane", "v_readlane")) and vW & d.R: needs(1, "VALU->readlane")
                sW = {r for r in q.W if r[0] in ("s", "vcc")}
                if sW & d.R:
                    if d.cls == "vmem": needs(5, "VALU sgpr->VMEM")
                    if d.cls == "valu": needs(2, "VALU sgpr->VALU")
                    if d.cls in ("salu", "ctl"): needs(1, "VALU sgpr->SALU (pad)")
                if ("vcc", 0) in q.W and d.m.startswith("s_cbranch_vcc"): needs(1, "vcc->branch (pad)")
            if q.cls == "mfma":
                n8 = q.passes == 8
                if d.cls == "mfma":
                    if q.W & set(d.srcAB): needs(12 if n8 else 8, "MFMA D->MFMA A/B")
                    if q.W & set(d.srcC) and set(d.srcC) != q.W: needs(10 if n8 else 6, "MFMA D->overlap C")
                    if q.W & d.W and set(d.srcC) != q.W and not (q.W & set(d.srcC)): needs(10 if n8 else 6, "MFMA D WAW (pad)")
                elif d.cls in ("valu", "vmem", "ds"):
                    if q.W & (d.R | d.W): needs(12 if n8 else 8, "MFMA D->VALU/mem")
                    if d.cls == "valu" and set(q.srcC) & d.W: needs(7 if n8 else 3, "MFMA C WAR")
            if q.cls == "salu" and ("m0", 0) in q.W and d.cls == "vmem" and ("m0", 0) in d.R: needs(1, "M0->DMA")
            if q.cls == "vmem" and hasattr(q, "store") and len(q.store) >= 3 and set(q.store) & d.W: needs(2, "store data WAR")
            j -= 1
        touched = d.R | d.W
        for lst, nm in ((vm, "vmcnt"), (lg, "lgkmcnt")):
            for k in lst:
                if trace[k].tag in ("PF", "OPT_PF", "AFS"): continue
                if dec[k].W & touched and not (d.cls == dec[k].cls and nm == "lgkmcnt" and dec[k].W & d.W and not dec[k].W & d.R and False):
                    err(i, k, f"register touched while {nm} load outstanding")
        if d.cls == "wait":
            for mm in re.finditer(r"(vmcnt|lgkmcnt)\((\d+)\)", trace[i].t):
                n = int(mm.group(2))
                if mm.group(1) == "vmcnt":
                    while len(vm) > n: vm.pop(0)
                else:
                    if n == 0: lg.clear()
                    else:
                        ds = [k for k in lg if dec[k].cls == "ds"]
                        drop = set(ds[:max(0, len(ds) - n)])
                        lg[:] = [k for k in lg if k not in drop]
        if trace[i].need:
            for k in vm + lg:
                if trace[k].tag in trace[i].need: err(i, k, f"needed tag {trace[k].tag} still outstanding")
        if d.cls == "vmem":
            vm.append(i)
            if len(vm) > 63: err(i, i, "more than 63 vmem outstanding")
        if d.cls in ("ds", "smem"): lg.append(i)
    return errs

class VmTrack:
    def __init__(self): self.q = []
    def issue(self, tag): self.q.append(tag)
    def count_after(self, tags):
        idx = -1
        for i, t in enumerate(self.q):
            if t in tags: idx = i
        if idx < 0: return None
        n = len(self.q) - 1 - idx
        self.q = self.q[idx + 1:]
        return n

class Wait(Ins):
    __slots__ = ("vm", "lg", "nvm", "nlg")
    def __init__(self, vm=(), lg=()):
        Ins.__init__(self, "s_waitcnt vmcnt(63) lgkmcnt(15)")
        self.vm = set(vm); self.lg = set(lg); self.nvm = 63; self.nlg = 15
        self.need = set(vm) | set(lg)

def resolve(prog):
    tr = prog.trace()
    vmq = []; lgq = []
    for ins in tr:
        if isinstance(ins, Wait):
            for tags, q, attr in ((ins.vm, vmq, "nvm"), (ins.lg, lgq, "nlg")):
                if not tags: continue
                idx = -1
                for k in range(len(q) - 1, -1, -1):
                    if q[k] in tags or "*" in tags: idx = k; break
                if idx >= 0:
                    setattr(ins, attr, min(getattr(ins, attr), len(q) - 1 - idx, 62 if attr == 'nvm' else 14))
            continue
        m = ins.t.split()[0]
        if ins.tag and ins.tag.startswith("OPT"): continue
        if m.startswith(("buffer_", "global_")): vmq.append(ins.tag)
        elif m.startswith("ds_"): lgq.append(ins.tag)
    for ins in tr:
        if isinstance(ins, Wait):
            parts = []
            if ins.nvm < 63: parts.append(f"vmcnt({ins.nvm})")
            if ins.nlg < 15: parts.append(f"lgkmcnt({ins.nlg})")
            ins.t = "s_waitcnt " + " ".join(parts) if parts else "s_nop 0"

from collections import defaultdict
def _is_vmem(x):
    t = x.t if isinstance(x, Ins) else x
    return t.startswith(("buffer_", "global_"))

class Sched:
    def __init__(self, sp=2):
        self.mf = []; self.pre = defaultdict(list); self.fill = defaultdict(list); self.vm = {}
        self.streams = {}; self.sp = sp; self.report = []
    def add(self, mfs):
        b = len(self.mf); self.mf += list(mfs); return b
    def before(self, g, items):
        self.pre[g] += [items] if not isinstance(items, (list, tuple)) else list(items)
    def spread(self, items, start, end):
        groups = [g if isinstance(g, (list, tuple)) else [g] for g in items]
        if not groups: return
        costs = [sum(cost_of(x.t if isinstance(x, Ins) else x) for x in g) for g in groups]
        tot = float(sum(costs)); span = end - start; acc = 0.0
        assert span > 0
        for g, c in zip(groups, costs):
            pos = min(max(start + int((acc + c * 0.5) / tot * span), start), end - 1)
            self.fill[pos].extend(g); acc += c
    def fixed(self, gap, group):
        assert gap not in self.vm, gap
        self.vm[gap] = list(group)
    def queue(self, stream, group, earliest, deadline):
        assert sum(_is_vmem(x) for x in group) == 1, group
        self.streams.setdefault(stream, []).append((list(group), earliest, deadline))
    def _free(self, g):
        return all((g + d) not in self.vm for d in range(-(self.sp - 1), self.sp))
    def emit(self, p):
        n = len(self.mf)
        heads = {k: 0 for k in self.streams}
        for g in range(n):
            if not self._free(g): continue
            best = None
            for k, q in self.streams.items():
                if heads[k] < len(q) and q[heads[k]][1] <= g:
                    if best is None or q[heads[k]][2] < self.streams[best][heads[best]][2]: best = k
            if best is not None:
                it = self.streams[best][heads[best]]
                self.vm[g] = it[0]; heads[best] += 1
                if g > it[2]: self.report.append((best, heads[best] - 1, g, it[2]))
        left = [(k, len(q) - heads[k]) for k, q in self.streams.items() if heads[k] < len(q)]
        assert not left, left
        for g in range(n):
            for x in self.pre.get(g, []):
                if callable(x): x(p)
                else: p.e(x)
            p.e(self.mf[g])
            for x in self.vm.get(g, []): p.e(x)
            for x in self.fill.get(g, []): p.e(x)
        for x in self.pre.get(n, []):
            if callable(x): x(p)
            else: p.e(x)

REUSE = ("D0", "D1", "D2", "D3", "KF", "VF", "G", "PF", "FS", "X", "KK", "none")
def check_tags(trace):
    errs = []; seen = set(); waited = {}
    for i, ins in enumerate(trace):
        if isinstance(ins, Wait):
            for t in ins.need:
                if t in REUSE: continue
                if t not in seen: errs.append(f"wait [{i}] for tag {t} before any such op was issued")
                waited[t] = i
        elif ins.tag:
            seen.add(ins.tag)
            if ins.tag in waited and ins.tag not in REUSE: errs.append(f"op [{i}] {ins.t} with tag {ins.tag} issued after the wait [{waited[ins.tag]}] on it")
    return errs
```

```python
import sys, struct, math
from asmlib import *

NAME = "recurrent_scan__sliding_block_cached__glu_gated_glu__prompt"
WS_XN = 0
XN_BYTES = 2 << 20
WS_FLG = 3 << 20
WS_ACT = 4 << 20
ACT_KS = 368
ACT_BYTES = 64 * ACT_KS * 1024
WS_PART = 32 << 20
PART_BYTES = 8 << 20
WS_DBG = 64 << 20
LOG2E = 1.4426950408889634
def f2u(x): return struct.unpack("<I", struct.pack("<f", x))[0]
QSCALE = f2u(LOG2E / math.sqrt(128.0))
STAMPS = False
OPT = {}
SC = " sc1"
def LSC(): return "" if OPT.get("plainld") else (" sc1 nt" if OPT.get("ntld") else " sc1")

def vr(b, n=1): return f"v{b}" if n == 1 else f"v[{b}:{b+n-1}]"
def ar(b, n=1): return f"a{b}" if n == 1 else f"a[{b}:{b+n-1}]"
def S4(b): return f"s[{b}:{b+3}]"
def lines(s): return [x.strip() for x in s.strip().split("\n") if x.strip()]
def singles(l): return [[x] for x in l]

def srd_l(d, lo, hi, nbytes, add=None):
    out = [f"s_mov_b32 s{d}, s{lo}", f"s_mov_b32 s{d+1}, s{hi}"] if add is None else [f"s_add_u32 s{d}, s{lo}, {add}", f"s_addc_u32 s{d+1}, s{hi}, 0"]
    return out + [f"s_mov_b32 s{d+2}, {nbytes}", f"s_mov_b32 s{d+3}, 0x00020000"]
def srd(p, *a, **k): p.e(srd_l(*a, **k))

def stamp(p, k, ph=0):
    if OPT.get("ph", 0) != ph and k != 0: return
    if STAMPS: p.e(f"{'s_memtime' if OPT.get('cyc') else 's_memrealtime'} s[{76+2*k}:{77+2*k}]")
def stamp_flush(p, n):
    if not STAMPS: return
    if OPT.get("dbgst"):
        p.e(f"s_load_dwordx2 s[60:61], s[0:1], 80\ns_waitcnt lgkmcnt(0) vmcnt(0)\ns_cmp_lg_u32 s{S_W}, 0\ns_cbranch_scc1 K_END")
        srd(p, 4, 60, 61, 256)
        p.e("v_mov_b32 v0, 0\ns_mov_b64 exec, 1")
        for k in range(n):
            p.e(f"s_sub_u32 s3, s{76+2*k}, s{S_EP}\ns_add_u32 s3, s3, 100\nv_mov_b32 v2, s3\nbuffer_atomic_add v2, v0, s[4:7], 0 offen offset:{8+4*k} sc1\ns_nop 1")
            if k in (0, n - 1): p.e(f"buffer_atomic_umax v2, v0, s[4:7], 0 offen offset:{4 if k == 0 else 56} sc1\ns_nop 1")
        p.e("s_waitcnt vmcnt(0)")
        return
    p.e("s_load_dwordx2 s[60:61], s[0:1], 88\ns_waitcnt lgkmcnt(0) vmcnt(0)")
    srd(p, 4, 60, 61, 1 << 20, add=WS_DBG)
    p.e(f"s_lshl_b32 s3, s2, 8\ns_lshl_b32 s70, s{S_W}, 6\ns_add_u32 s3, s3, s70\nv_mov_b32 v0, 0")
    for k in range(n):
        p.e(f"v_mov_b32 v2, s{76+2*k}\nbuffer_store_dword v2, v0, s[4:7], s3 offen offset:{4*k}\ns_nop 1")
    p.e("s_waitcnt vmcnt(0)")

def mfma(d, a, b, c): return f"v_mfma_f32_32x32x16_bf16 {d}, {a}, {b}, {c}"

S_X = 4
S_WQ, S_WG, S_WU, S_XN, S_K, S_V, S_ACT = 8, 12, 16, 20, 24, 28, 32
S_WO, S_OUT, S_PT, S_WD = 8, 28, 24, 64
S_W, S_J, S_RB, S_W2K, S_W1K = 36, 37, 38, 39, 40
S_DT, S_DQ, S_GM, S_BT, S_KT, S_VT = 41, 42, 43, 44, 45, 46
S_LOOP, S_FLAG, S_ROT2 = 47, 48, 49
S_C0, S_NL2E = 50, 52
S_T0, S_T1, S_T2 = 54, 55, 56
S_HOFF, S_OOFF, S_PF = 57, 58, 59
S_EP, S_FO = 62, 63
S_FLG, S_DBG = 68, 72
S_W4K = 100
S_ONES = 51
S_PFD = 101
V_PFW = 251
K_SSW, K_SSA, K_SR32, K_CT, K_KQ, K_SPO, K_CNT, K_SST = 45, 46, 47, 48, 49, 50, 51, 59
K_SLD, K_SWO, K_SA, K_SLB = 72, 73, 74, 75
K_WEND, K_AEND = 41, 43
K_QD = 38
V_AQ, V_AG, V_OQ, V_OG, V_OB0, V_OB1 = 192, 200, 206, 207, 208, 209
V_K, V_V, V_OK0, V_OK1, V_OV, V_ST0, V_ST1 = 210, 218, 222, 223, 224, 225, 226
V_L = 228
V_T = 230
V_PFA, V_PFD, V_FL, V_PR = 252, 253, 254, 255
V_FL2 = 227
V_LP = 246
Q_XR, Q_OX, Q_CA, Q_CT, Q_CS, Q_ST, Q_BP, Q_EP, Q_SC = 128, 136, 138, 140, 156, 160, 164, 172, 176
S_XT, S_W8K = 44, 3
Q_PX, Q_PL, Q_CO = 180, 184, 185
K_SGO = 3
K_VSW, K_VSA, K_VL16, K_VL, K_VRB, K_VX = 192, 193, 194, 195, 196, 199
K_VRA, K_VB0, K_VB1, K_VW0, K_VW1, K_VA0, K_VA2 = 210, 216, 217, 218, 219, 220, 222
def QACC(t, b): return (t*2 + b) * 16
def GACC(a, b): return 64 + (a*2 + b) * 16
A_KF, A_VF = 192, 224
def QF(b, s): return ((s >> 1)*2 + b)*8 + (s & 1)*4
def SB(par, b): return 64 + par*32 + b*16
def PB(par, b, u): return 128 + par*16 + b*8 + u*4
def NEGM(b): return 160 + b*16
def OACC(t, b): return (t*2 + b) * 16
SLOT = 16384
KKSLOT = 6 * SLOT
def wslot(t): return (6 + t % 4) * SLOT
def xslot(t): return ((t + 1) % 3) * 32768
LDS_CS = 7 * SLOT
def gslot(t): return (4 + t) * SLOT if t < 6 else (t - 6) * SLOT
def kslot(g): return ((g + 1) % 5) * 32768
LDS_LN = 0
LDS_FLAG = 3 * SLOT + 8192
LDS_TOTAL = 163840

def FSH(): return OPT.get('fsh', 7)
def SYO_(sy): return sy * (1024 if FSH() == 2 else 4)
STAT0, PFL0, CS0 = 32768, 65536, 196608
def flag_store(sy, vd, vz, tag="FS", one=None):
    body = [f"v_mov_b32 v{vd}, s{S_EP}", f"v_mov_b32 v{vz}, 0", "s_mov_b64 exec, 1",
            Ins(f"buffer_store_dword v{vd}, v{vz}, {S4(S_FLG)}, s{S_FO} offen offset:{SYO_(sy)} sc1", "OPT_FS" if one else tag),
            "s_mov_b64 exec, -1"]
    if one and OPT.get("one", 1): body = [f"s_cmp_lg_u32 s{S_W}, 0", f"s_cbranch_scc1 FS_{one}"] + body + [Ins(f"FS_{one}:")]
    return body
def poll_issue(sy, goff, tag, vfl=None):
    return Ins(f"buffer_load_dword v{V_PR}, v{vfl or V_FL}, {S4(S_FLG)}, s{goff} offen offset:{SYO_(sy)} sc1", tag)
def poll_check(p, lbl, sy, goff, tag, cnt, vfl=None):
    p.e(Wait(vm=[tag]))
    p.e(f"v_cmp_ne_u32 vcc, s{S_EP}, v{V_PR}\ns_mov_b32 s{cnt}, 0\ns_cbranch_vccz {lbl}_OK")
    p.skip_begin()
    p.label(f"{lbl}_P")
    p.e("s_sleep 2")
    p.e(poll_issue(sy, goff, "OPT_POLL", vfl))
    p.e(f"""
    s_add_u32 s{cnt}, s{cnt}, 1
    s_waitcnt vmcnt(0)
    v_cmp_ne_u32 vcc, s{S_EP}, v{V_PR}
    s_cmp_gt_u32 s{cnt}, 0x40000
    s_cbranch_scc1 {lbl}_OK
    s_cbranch_vccnz {lbl}_P
    """)
    p.skip_end()
    p.label(f"{lbl}_OK")

def setup(p):
    T = V_T; L = T + 1
    p.e("s_cmp_ge_u32 s2, 256\ns_cbranch_scc1 K_END")
    p.e("s_load_dwordx8 s[60:67], s[0:1], 0")
    p.e("s_getpc_b64 s[42:43]")
    p.label("CODE0")
    p.e("s_load_dwordx4 s[68:71], s[0:1], 48\ns_load_dwordx4 s[72:75], s[0:1], 80")
    stamp(p, 0)
    if OPT.get("cp0", 1):
        p.e(f"v_and_b32 v1, {OPT.get('cp0n', 31)}, v0\nv_lshlrev_b32 v1, 7, v1")
        p.e(f"global_load_dword v{V_PFD}, v1, s[42:43]", tag="PF")
    if OPT.get("cpf", 2) == 1:
        p.e(f"v_lshlrev_b32 v1, 7, v0\nv_add_u32 v2, 32768, v1\nv_min_u32 v2, CODE_END-CODE0-4, v2")
        p.e(f"global_load_dword v{V_PFD}, v1, s[42:43]", tag="PF")
        p.e(f"global_load_dword v{V_PFD}, v2, s[42:43]", tag="PF")
    p.e(f"""
    v_lshrrev_b32 v{T}, 6, v0
    v_and_b32 v{L}, 63, v0
    v_and_b32 v3, 7, v{L}
    v_readfirstlane_b32 s{S_W}, v{T}
    v_lshrrev_b32 v4, 3, v{L}
    v_lshlrev_b32 v5, 10, v3
    v_lshl_add_u32 v5, v4, 4, v5
    v_lshl_add_u32 v5, v{T}, 8, v5
    s_lshl_b32 s3, s2, 13
    s_and_b32 s{S_T0}, s2, 7
    s_lshr_b32 s{S_T1}, s2, 3
    s_and_b32 s{S_T1}, s{S_T1}, 3
    s_lshr_b32 s{S_RB}, s2, 5
    s_lshl_b32 s{S_J}, s{S_T0}, 2
    s_add_u32 s{S_J}, s{S_J}, s{S_T1}
    s_lshl_b32 s{S_W2K}, s{S_W}, 11
    s_lshl_b32 s{S_W1K}, s{S_W}, 10
    s_lshl_b32 s{S_W4K}, s{S_W}, 12
    s_mul_i32 s{S_DT}, s{S_T1}, {OPT.get('roth', 0)}
    s_add_u32 s{S_DT}, s{S_DT}, s{S_RB}
    s_and_b32 s{S_DT}, s{S_DT}, {OPT.get('rotm', 7)}
    s_lshl_b32 s{S_ROT2}, s{S_RB}, 2
    s_add_u32 s{S_ROT2}, s{S_ROT2}, s{S_T1}
    s_lshr_b32 s{S_ROT2}, s{S_ROT2}, 1
    s_lshl_b32 s{S_ROT2}, s{S_ROT2}, 13
    s_waitcnt lgkmcnt(0)
    """)
    stamp(p, 1, 5)
    srd(p, S_X, 60, 61, 2097152)
    p.e(f"buffer_load_dwordx4 v[8:11], v5, {S4(S_X)}, s3 offen", tag="X")
    p.e(f"buffer_load_dwordx4 v[12:15], v5, {S4(S_X)}, s3 offen offset:128", tag="X")
    if OPT.get("cpf", 2) == 2:
        p.e(f"""
        v_and_b32 v1, 3, v{L}
        v_lshl_add_u32 v1, v{T}, 2, v1
        s_lshr_b32 s{S_T2}, s2, 3
        s_lshl_b32 s{S_T2}, s{S_T2}, 11
        v_lshlrev_b32 v1, 7, v1
        v_add_u32 v1, s{S_T2}, v1
        v_min_u32 v1, CODE_END-CODE0-4, v1
        """)
        p.e(f"global_load_dword v{V_PFD}, v1, s[42:43]", tag="PF")
    srd(p, S_XN, 74, 75, XN_BYTES, add=WS_XN)
    srd(p, S_ACT, 74, 75, ACT_BYTES, add=WS_ACT)
    p.e(f"s_add_u32 s{S_KT}, s74, {WS_FLG}\ns_addc_u32 s{S_VT}, s75, 0")
    p.e(f"s_mov_b32 s{S_DBG+2}, 256\ns_mov_b32 s{S_DBG+3}, 0x00020000")
    p.e(f"s_lshl_b32 s{S_T1}, s{S_T0}, 19\ns_add_u32 s{S_T1}, s{S_T1}, {1536*256}")
    srd(p, S_K, 62, 63, 131072, add=f"s{S_T1}")
    srd(p, S_V, 64, 65, 131072, add=f"s{S_T1}")
    p.e(f"""
    s_lshl_b32 s{S_FO}, s2, {FSH()}
    v_and_b32 v{V_FL}, 31, v{L}
    v_lshlrev_b32 v{Q_EP+3}, 3, v{V_FL}
    v_lshlrev_b32 v{V_FL}, {FSH()}, v{V_FL}
    v_mov_b32 v{Q_EP+2}, 0
    s_or_b32 s{S_T1}, s2, s{S_W}
    s_cmp_lg_u32 s{S_T1}, 0
    s_cbranch_scc1 EPD
    s_memrealtime s[60:61]
    s_waitcnt lgkmcnt(0)
    s_or_b32 s{S_EP}, s60, 1
    v_mov_b32 v{Q_EP}, s{S_EP}
    s_mov_b64 exec, 1
    """)
    p.e(f"buffer_store_dword v{Q_EP}, v{Q_EP+2}, {S4(S_DBG)}, 0 offen sc1", tag="OPT_EP")
    p.e("s_mov_b64 exec, -1")
    p.label("EPD")
    p.e(f"""
    v_lshrrev_b32 v{T+2}, 4, v{L}
    v_and_b32 v{T+3}, 15, v{L}
    v_lshlrev_b32 v{T+4}, 2, v{T+2}
    v_xor_b32 v{T+4}, v{T+3}, v{T+4}
    v_lshlrev_b32 v{T+4}, 4, v{T+4}
    v_lshl_add_u32 v{T+5}, v{T}, 4, v{T+2}
    v_lshl_add_u32 v{V_OQ}, v{T+5}, 13, v{T+4}
    s_lshl_b32 s{S_T1}, s{S_J}, 8
    s_sub_u32 s{S_T2}, {4194304}, s{S_T1}
    """)
    srd(p, S_WQ, 66, 67, f"s{S_T2}", add=f"s{S_T1}")
    p.e(f"""
    v_lshrrev_b32 v{T+6}, 1, v4
    v_xor_b32 v{T+7}, v3, v{T+6}
    v_lshlrev_b32 v{T+7}, 4, v{T+7}
    v_lshl_add_u32 v{Q_OX}, v4, 10, v{T+7}
    s_lshl_b32 s{S_T1}, s{S_RB}, 18
    s_lshl_b32 s{S_T2}, s{S_W}, 16
    s_add_u32 s{S_T1}, s{S_T1}, s{S_T2}
    v_add_u32 v{Q_OX}, s{S_T1}, v{Q_OX}
    v_xor_b32 v{Q_OX+1}, 64, v{Q_OX}
    s_lshl_b32 s{S_XT}, s{S_DT}, 7
    s_lshl_b32 s{S_PF}, s{S_W}, 13
    """)
    if OPT.get("coop", 1):
        p.e(f"""
        s_and_b32 s{S_T1}, s{S_J}, 3
        s_lshl_b32 s{S_T1}, s{S_T1}, 16
        s_lshl_b32 s{S_T2}, s{S_RB}, 18
        s_add_u32 s{S_T1}, s{S_T1}, s{S_T2}
        s_lshl_b32 s{S_T2}, s{S_W}, 14
        s_add_u32 s{S_T1}, s{S_T1}, s{S_T2}
        v_bfe_u32 v{T+6}, v{L}, 4, 1
        v_add_u32 v{T+6}, s{S_DT}, v{T+6}
        v_lshlrev_b32 v{T+7}, 10, v{T+3}
        v_add_u32 v{T+7}, s{S_T1}, v{T+7}
        """)
        for k in range(4):
            p.e(f"v_add_u32 v{T+8}, {2*k}, v{T+6}\nv_and_b32 v{T+8}, 7, v{T+8}\nv_lshl_add_u32 v{Q_PX+k}, v{T+8}, 7, v{T+7}")
            if k == 0: p.e(f"buffer_load_dword v{V_PFD}, v{Q_PX}, {S4(S_X)}, 0 offen", tag="PF")
    p.mark0 = len(p.cur)
    p.e(f"""
    s_lshr_b32 s{S_HOFF}, s{S_T0}, 1
    s_mul_i32 s{S_HOFF}, s{S_HOFF}, 7
    s_and_b32 s{S_T1}, s{S_J}, 7
    s_add_u32 s{S_HOFF}, s{S_HOFF}, s{S_T1}
    s_cmp_eq_u32 s{S_T1}, 7
    s_cselect_b32 s{S_OOFF}, 1, 0
    s_lshl_b32 s{S_T1}, s{S_HOFF}, 7
    s_sub_u32 s{S_T2}, {512*3584}, s{S_T1}
    s_cmp_lg_u32 s{S_OOFF}, 0
    s_cselect_b32 s{S_T2}, 0, s{S_T2}
    """)
    srd(p, S_WG, 68, 69, f"s{S_T2}", add=f"s{S_T1}")
    srd(p, S_WU, 70, 71, f"s{S_T2}", add=f"s{S_T1}")
    srd(p, S_FLG, S_KT, S_VT, 524288)
    p.e(f"""
    s_mov_b32 s{S_C0}, 0x{QSCALE:08x}
    s_mov_b32 s{S_NL2E}, 0x{f2u(-LOG2E):08x}
    s_mov_b32 s{S_NL2E+1}, 0x{f2u(-LOG2E):08x}
    s_mov_b32 s{S_FLAG}, 0
    s_mov_b32 s{S_KT}, s{S_ROT2}
    s_mov_b32 s{S_VT}, s{S_ROT2}
    s_lshl_b32 s{S_HOFF}, s{S_HOFF}, 12
    s_add_u32 s{S_HOFF}, s{S_HOFF}, {256*1024}
    s_cmp_lg_u32 s{S_OOFF}, 0
    s_cselect_b32 s{S_HOFF}, 0x40000000, s{S_HOFF}
    s_lshl_b32 s{S_OOFF}, s{S_J}, 13
    {"s_mov_b32 s%d, 0x40000000" % S_OOFF if OPT.get("nost") else ""}
    {"s_mov_b32 s%d, 0x40000000" % S_HOFF if OPT.get("nost") else ""}
    v_lshrrev_b32 v6, 1, v4
    v_lshlrev_b32 v6, 10, v6
    v_and_b32 v7, 1, v4
    v_lshl_add_u32 v6, v7, 9, v6
    v_lshl_add_u32 v6, v3, 4, v6
    v_lshl_add_u32 v6, v{T}, 13, v6
    v_add_u32 v17, 4096, v6
    v_lshlrev_b32 v16, 4, v3
    v_add_u32 v16, {LDS_LN}, v16
    v_lshl_add_u32 v7, v{T}, 2, v16
    v_lshrrev_b32 v{T+2}, 5, v{L}
    v_bfe_u32 v{T+3}, v{L}, 4, 1
    v_bfe_u32 v{T+4}, v{L}, 2, 2
    v_and_b32 v{T+5}, 3, v{L}
    v_and_b32 v{T+6}, 1, v{T+5}
    v_lshrrev_b32 v{T+7}, 1, v{T+5}
    v_lshl_add_u32 v{T+6}, v{T+6}, 1, v{T+7}
    v_lshlrev_b32 v{T+7}, 5, v{T+3}
    v_lshl_add_u32 v{T+8}, v{T+6}, 3, v{T+7}
    v_lshl_add_u32 v{T+9}, v{T+5}, 3, v{T+7}
    v_lshl_add_u32 v{T+10}, v{T+2}, 3, v{T+4}
    v_lshl_add_u32 v{T+11}, v{T+10}, 8, v{T+8}
    v_add_u32 v{T+11}, 0x10000, v{T+11}
    """)
    for t in range(4):
        p.e(f"""
        v_xor_b32 v{T+12}, {t}, v{T+4}
        v_lshl_add_u32 v{V_AQ+t}, v{T+12}, 6, v{T+11}
        v_add_u32 v{V_AQ+4+t}, 0x10000, v{V_AQ+t}
        """)
    p.e(f"""
    v_xor_b32 v{T+12}, s{S_W}, v{T+4}
    v_lshl_add_u32 v{Q_CA}, v{T+12}, 6, v{T+11}
    v_add_u32 v{Q_CA+1}, 0x10000, v{Q_CA}
    v_and_b32 v{T+12}, 31, v{L}
    v_bfe_u32 v{T+13}, v{L}, 1, 3
    v_lshlrev_b32 v{T+12}, 7, v{T+12}
    v_add_u32 v{T+12}, s{S_PF}, v{T+12}
    """)
    for u in range(4):
        p.e(f"""
        v_add_u32 v{T+14}, {2*u}, v{T+2}
        v_xor_b32 v{T+14}, v{T+14}, v{T+13}
        v_lshl_add_u32 v{Q_XR+u}, v{T+14}, 4, v{T+12}
        v_add_u32 v{Q_XR+4+u}, 0x10000, v{Q_XR+u}
        """)

def deferred_setup():
    T = V_T; L = T + 1; A, B = S_LOOP, S_PFD
    out = lines(f"""
    s_lshl_b32 s{A}, s{S_RB}, 6
    v_add_u32 v227, s{A}, v{L}
    v_mul_u32_u24 v227, 3584, v227
    v_lshrrev_b32 v{T+3}, 4, v{L}
    v_and_b32 v{T+5}, 15, v{L}
    v_lshlrev_b32 v{T+6}, 2, v{T+3}
    v_xor_b32 v{T+6}, v{T+5}, v{T+6}
    v_lshlrev_b32 v{T+6}, 4, v{T+6}
    v_lshl_add_u32 v{T+7}, v{T}, 3, v{T+3}
    v_lshl_add_u32 v{V_OV}, v{T+7}, 8, v{T+6}
    v_xor_b32 v{T+6}, v{T+5}, v{T+7}
    v_and_b32 v{T+6}, 15, v{T+6}
    v_lshlrev_b32 v{T+6}, 4, v{T+6}
    v_lshl_add_u32 v{V_OK0}, v{T+7}, 8, v{T+6}
    v_add_u32 v{T+8}, 4, v{T+7}
    v_xor_b32 v{T+6}, v{T+5}, v{T+8}
    v_and_b32 v{T+6}, 15, v{T+6}
    v_lshlrev_b32 v{T+6}, 4, v{T+6}
    v_lshl_add_u32 v{V_OK1}, v{T+7}, 8, v{T+6}
    v_and_b32 v{T+7}, 7, v{L}
    v_and_b32 v{T+8}, 1, v{T+3}
    v_lshlrev_b32 v{T+8}, 2, v{T+8}
    v_xor_b32 v{T+7}, v{T+7}, v{T+8}
    v_lshlrev_b32 v{T+7}, 4, v{T+7}
    v_lshrrev_b32 v{T+6}, 3, v{L}
    v_lshl_add_u32 v{T+6}, v{T}, 4, v{T+6}
    v_mul_u32_u24 v{T+6}, 3584, v{T+6}
    v_add_u32 v{V_OG}, v{T+6}, v{T+7}
    s_lshl_b32 s{B}, s{S_RB}, 3
    s_lshl_b32 s{A}, s{S_W}, 1
    s_add_u32 s{B}, s{B}, s{A}
    s_lshl_b32 s{A}, s{B}, 15
    v_lshlrev_b32 v{T+6}, 4, v{L}
    v_add_u32 v{V_OB0}, s{A}, v{T+6}
    v_add_u32 v{V_OB1}, 32768, v{V_OB0}
    s_mul_i32 s{A}, s{B}, {ACT_KS*1024}
    v_add_u32 v{V_ST0}, s{A}, v{T+6}
    v_add_u32 v{V_ST1}, {ACT_KS*1024}, v{V_ST0}
    v_lshlrev_b32 v{V_PFA}, 7, v{L}
    v_lshl_add_u32 v{T+11}, v{T+2}, 2, v{T+4}
    v_lshl_add_u32 v{T+11}, v{T+11}, 8, v{T+9}
    """)
    for t in range(4):
        out += [f"v_xor_b32 v{T+12}, {t}, v{T+4}", f"v_lshl_add_u32 v{V_V+t}, v{T+12}, 6, v{T+11}"]
    out += [f"v_lshrrev_b32 v{T+14}, 1, v{T+4}", f"v_lshl_add_u32 v{T+11}, v{T+10}, 7, v{T+9}"]
    for t in range(2):
        out += [f"v_xor_b32 v{T+12}, {t}, v{T+14}", f"v_lshl_add_u32 v{V_AG+t}, v{T+12}, 6, v{T+11}",
                f"v_add_u32 v{V_AG+2+t}, 0x10000, v{V_AG+t}", f"v_add_u32 v{V_AG+4+t}, 0x20000, v{V_AG+t}"]
    out += [f"v_and_b32 v{T+12}, 31, v{L}", f"v_lshlrev_b32 v{T+12}, 8, v{T+12}"]
    for s in range(8):
        out += [f"v_add_u32 v{T+14}, {2*s}, v{T+2}", f"v_xor_b32 v{T+14}, v{T+14}, v{T+5}", f"v_lshl_add_u32 v{V_K+s}, v{T+14}, 4, v{T+12}"]
    return out

NW0 = 2
def layernorm(p):
    p.e(f"""
    s_lshr_b32 s{S_T1}, s2, 2
    s_lshl_b32 s{S_T1}, s{S_T1}, 15
    s_and_b32 s{S_T2}, s2, 3
    s_lshl_b32 s{S_T2}, s{S_T2}, 7
    s_add_u32 s3, s{S_T1}, s{S_T2}
    s_mov_b32 s{S_T0}, 0x3b000000
    """)
    stamp(p, 3, 5)
    p.e(Wait(vm=["X"]))
    stamp(p, 4, 5)
    for i in range(8):
        p.e(f"v_lshlrev_b32 v{20+2*i}, 16, v{8+i}\nv_and_b32 v{21+2*i}, 0xffff0000, v{8+i}")
    def reduce(src, off):
        p.e(f"""
        s_nop 1
        v_add_f32_dpp v{src}, v{src}, v{src} row_ror:8 row_mask:0xf bank_mask:0xf
        v_mov_b32 v41, v{src}
        s_nop 1
        v_permlane16_swap_b32 v{src}, v41
        v_add_f32 v{src}, v{src}, v41
        v_mov_b32 v41, v{src}
        s_nop 1
        v_permlane32_swap_b32 v{src}, v41
        v_add_f32 v{src}, v{src}, v41
        ds_write_b32 v7, v{src} offset:{off}
        s_waitcnt lgkmcnt(0)
        s_barrier
        ds_read_b128 v[44:47], v16 offset:{off}
        s_waitcnt lgkmcnt(0)
        v_add_f32 v44, v44, v45
        v_add_f32 v46, v46, v47
        v_add_f32 v40, v44, v46
        """)
    p.e("v_add_f32 v36, v20, v21\nv_add_f32 v37, v22, v23")
    for i in range(2, 8, 2):
        p.e(f"v_add_f32 v36, v36, v{20+2*i}\nv_add_f32 v37, v37, v{21+2*i}\nv_add_f32 v36, v36, v{22+2*i}\nv_add_f32 v37, v37, v{23+2*i}")
    p.e("v_add_f32 v36, v36, v37")
    reduce(36, 0)
    stamp(p, 6, 5)
    p.e(f"v_mul_f32 v48, s{S_T0}, v40")
    p.e("v_mov_b32 v36, 0\nv_mov_b32 v37, 0")
    for i in range(8):
        p.e(f"v_sub_f32 v38, v{20+2*i}, v48\nv_sub_f32 v39, v{21+2*i}, v48\nv_fmac_f32 v36, v38, v38\nv_fmac_f32 v37, v39, v39")
    p.e("v_add_f32 v36, v36, v37")
    reduce(36, 128)
    p.e(f"""
    v_mul_f32 v49, s{S_T0}, v40
    v_cvt_pk_bf16_f32 v49, v49, v49
    v_and_b32 v49, 0xffff0000, v49
    v_add_f32 v49, 0x{f2u(1e-5):08x}, v49
    v_cvt_pk_bf16_f32 v49, v49, v49
    v_and_b32 v49, 0xffff0000, v49
    v_sqrt_f32 v49, v49
    v_cvt_pk_bf16_f32 v48, v48, v48
    v_cvt_pk_bf16_f32 v49, v49, v49
    v_and_b32 v48, 0xffff0000, v48
    v_and_b32 v49, 0xffff0000, v49
    v_rcp_f32 v49, v49
    """)
    for i in range(8):
        a, b = 20 + 2*i, 21 + 2*i
        p.e(f"""
        v_sub_f32 v{a}, v{a}, v48
        v_sub_f32 v{b}, v{b}, v48
        v_cvt_pk_bf16_f32 v38, v{a}, v{b}
        v_lshlrev_b32 v{a}, 16, v38
        v_and_b32 v{b}, 0xffff0000, v38
        v_mul_f32 v{a}, v{a}, v49
        v_mul_f32 v{b}, v{b}, v49
        v_cvt_pk_bf16_f32 v{8+i}, v{a}, v{b}
        """)
        if i == 3: p.e(f"buffer_store_dwordx4 v[8:11], v6, {S4(S_XN)}, s3 offen{SC}")
    p.e(f"buffer_store_dwordx4 v[12:15], v17, {S4(S_XN)}, s3 offen{SC}")
    p.e(f"""
    v_xor_b32 v56, 0x80000000, v48
    v_lshrrev_b32 v57, 16, v56
    v_or_b32 v56, v56, v57
    v_mul_f32 v57, s{S_C0}, v49
    v_lshlrev_b32 v58, 3, v3
    s_lshl_b32 s{S_T1}, s2, 6
    s_add_u32 s{S_T1}, s{S_T1}, {STAT0}
    s_cmp_lg_u32 s{S_W}, 0
    s_cselect_b32 s{S_T1}, 0x40000000, s{S_T1}
    s_mov_b64 exec, 0xff
    """)
    p.e(f"buffer_store_dwordx2 v[56:57], v58, {S4(S_FLG)}, s{S_T1} offen{SC}", tag="XST")
    p.e("s_mov_b64 exec, -1")
    p.e("s_load_dwordx2 s[60:61], s[0:1], 32\ns_load_dwordx2 s[64:65], s[0:1], 64")
    stamp(p, 5, 5)
    w0, x0, w1, x1 = dma_q(0), dma_x(0), dma_q(1), dma_x(1)
    groups = w0 + x0 if OPT.get('coop', 1) else [w0[0], x0[0], x0[4], w0[1], x0[1], x0[5], w0[2], x0[2], x0[6], w0[3], x0[3], x0[7]]
    if OPT.get("early1", 0) == 0: pass
    else: groups += x1 + w1
    if OPT.get("dropw"): groups = x0
    if OPT.get("dropx"): groups = w0 + [x0[7]]
    if OPT.get("dropx") == 2: groups = w0[:1] + [x0[7]]
    body = p.cur[p.mark0:]; del p.cur[p.mark0:]
    every = OPT.get("every", 20); cnt = every; f0 = OPT.get("f0", 4)
    for _ in range(min(f0, len(groups))): p.e(groups.pop(0))
    stamp(p, 2, 5)
    for k, ins in enumerate(body):
        p.cur.append(ins); cnt -= 1
        nxt = body[k + 1].t if k + 1 < len(body) else ""
        if cnt <= 0 and groups and ins.t.startswith("v_") and nxt.startswith("v_") and "exec" not in body[k - 1].t and "exec" not in body[k-2].t:
            p.e(groups.pop(0)); cnt = every
    for x in groups: p.e(x)

def dma_q(t):
    tag = f"W{t}"; g = []
    for ii in range(4):
        pre = [f"s_lshl_b32 s{S_DQ}, s{S_DT}, 19", f"s_add_u32 m0, s{S_W4K}, {wslot(t)}", f"s_add_u32 s{S_DT}, s{S_DT}, 1"] if ii == 0 else \
              [f"s_add_u32 m0, s{S_W4K}, {wslot(t)}", f"s_add_u32 s{S_DQ}, s{S_DQ}, {32768-1024}"]
        g.append(pre + [Ins(f"buffer_load_dwordx4 v{V_OQ}, {S4(S_WQ)}, s{S_DQ} offen offset:{ii*1024} lds", tag)])
    g[-1].append(f"s_and_b32 s{S_DT}, s{S_DT}, 7")
    return g
def dma_x(t):
    g = []
    for ii in range(8):
        g.append([f"s_add_u32 m0, s{S_PF}, {xslot(t)+ii*1024}", f"s_add_u32 s{S_GM}, s{S_XT}, {ii*8192}",
                  Ins(f"buffer_load_dwordx4 v{Q_OX+(ii&1)}, {S4(S_X)}, s{S_GM} offen lds", f"X{t}")])
    g[-1] += [f"s_add_u32 s{S_XT}, s{S_XT}, 128", f"s_and_b32 s{S_XT}, s{S_XT}, 0x3ff"]
    return g
def dma_g(tag):
    return [[f"s_mul_i32 s{S_DQ}, s{S_DT}, {64*3584}", f"s_mov_b32 m0, s{S_GM}", f"s_add_u32 s{S_DT}, s{S_DT}, 1",
             Ins(f"buffer_load_dwordx4 v{V_OG}, {S4(S_WG)}, s{S_DQ} offen lds", tag)],
            [f"s_add_u32 m0, s{S_GM}, 8192", f"s_and_b32 s{S_DT}, s{S_DT}, 7",
             Ins(f"buffer_load_dwordx4 v{V_OG}, {S4(S_WU)}, s{S_DQ} offen lds", tag)],
            [f"s_add_u32 m0, s{S_GM}, 8192", f"s_add_u32 s{S_DQ}, s{S_DQ}, {8*3584-1024}",
             Ins(f"buffer_load_dwordx4 v{V_OG}, {S4(S_WU)}, s{S_DQ} offen offset:1024 lds", tag)],
            [f"s_mov_b32 m0, s{S_GM}", f"s_add_u32 s{S_GM}, s{S_GM}, {SLOT}",
             Ins(f"buffer_load_dwordx4 v{V_OG}, {S4(S_WG)}, s{S_DQ} offen offset:1024 lds", tag)]]
def dma_k(ldsoff, tag):
    return [[f"s_add_u32 m0, s{S_W2K}, {ldsoff}", f"s_nop 0",
             Ins(f"buffer_load_dwordx4 v{V_OK0}, {S4(S_K)}, s{S_KT} offen lds", tag)],
            [f"s_add_u32 m0, s{S_W2K}, {ldsoff}", f"s_nop 0",
             Ins(f"buffer_load_dwordx4 v{V_OK1}, {S4(S_K)}, s{S_KT} offen offset:1024 lds", tag),
             f"s_add_u32 s{S_KT}, s{S_KT}, 8192", f"s_and_b32 s{S_KT}, s{S_KT}, 0x1ffff"]]
def dma_v(ldsoff, tag):
    return [[f"s_add_u32 m0, s{S_W2K}, {ldsoff}", f"s_nop 0",
             Ins(f"buffer_load_dwordx4 v{V_OV}, {S4(S_V)}, s{S_VT} offen lds", tag)],
            [f"s_add_u32 m0, s{S_W2K}, {ldsoff}", f"s_nop 0",
             Ins(f"buffer_load_dwordx4 v{V_OV}, {S4(S_V)}, s{S_VT} offen offset:1024 lds", tag),
             f"s_add_u32 s{S_VT}, s{S_VT}, 8192", f"s_and_b32 s{S_VT}, s{S_VT}, 0x1ffff"]]
def dma_d(pp):
    sl = (pp % 4) * SLOT; tag = f"D{pp%4}"
    return dma_v(sl, tag) + dma_k(sl + 8192, tag)
def dma_kk(): return dma_k(KKSLOT, "KK") + dma_k(KKSLOT + 8192, "KK")

def BR1(s, b): return 32 + (s & 1)*8 + b*4
def BR2(s, b): return 160 + (s % 12)*8 + b*4
def AB1(par, a): return par*16 + a*4
def AB2(par, a): return 128 + par*16 + a*4
def bload(s, ring, pre):
    u = s & 3; tag = f"{pre}{s}"
    SC = LSC()
    g = [[Ins(f"buffer_load_dwordx4 {ar(ring(s,0),4)}, v{V_OB0}, {S4(S_XN)}, s{S_BT} offen offset:{u*1024}{SC}", tag)],
         [Ins(f"buffer_load_dwordx4 {ar(ring(s,1),4)}, v{V_OB1}, {S4(S_XN)}, s{S_BT} offen offset:{u*1024}{SC}", tag)]]
    if u == 3 and not OPT.get("bfix"): g[1] += [f"s_add_u32 s{S_BT}, s{S_BT}, 4096", f"s_and_b32 s{S_BT}, s{S_BT}, 0x7fff"]
    return g
def areads_q(s):
    t, u = s >> 2, s & 3
    sl = wslot(t); hi = sl // 65536; sl -= hi * 65536
    out = [Ins(f"ds_read_b64_tr_b16 {ar(AB1(s&1,a)+2*e,2)}, v{V_AQ+4*(hi-1)+a} offset:{sl+(16*u+4*e)*256}", f"A{s}") for a in range(4) for e in range(2)]
    xs = xslot(t); xh = xs // 65536; xs -= xh * 65536
    xb = [Ins(f"ds_read_b128 {ar(BR1(s,b),4)}, v{Q_XR+4*xh+u} offset:{xs+b*4096}", f"A{s}") for b in range(2)]
    return out[:2] + xb + out[2:]
def csreads(s):
    t, u = s >> 2, s & 3
    sl = wslot(t); hi = sl // 65536; sl -= hi * 65536
    return [Ins(f"ds_read_b64_tr_b16 v[{Q_CT+(s%4)*4+2*e}:{Q_CT+(s%4)*4+2*e+1}], v{Q_CA+hi-1} offset:{sl+(16*u+4*e)*256}", f"CS{s}") for e in range(2)]
def csdots(s):
    if OPT.get("nocs"): return []
    return [f"v_dot2c_f32_bf16 v{Q_CS+(i&1)}, s{S_ONES}, v{Q_CT+(s%4)*4+i}" for i in range(4)]
def areads_g(s):
    t, u = s >> 2, s & 3
    sl = gslot(t); hi = sl // 65536; sl -= hi * 65536
    return [Ins(f"ds_read_b64_tr_b16 {ar(AB2(s&1,a)+2*e,2)}, v{V_AG+2*hi+(a&1)} offset:{sl+(a>>1)*8192+(16*u+4*e)*128}", f"AG{s}") for a in range(4) for e in range(2)]
def kreads(off, tag):
    return [Ins(f"ds_read_b128 {ar(A_KF+4*s,4)}, v{V_K+s} offset:{off}", tag) for s in range(8)]
def kreads_hi(off, tag, tmp):
    return [[f"v_add_u32 v{tmp+(s&3)}, 0x10000, v{V_K+s}",
             Ins(f"ds_read_b128 {ar(A_KF+4*s,4)}, v{tmp+(s&3)} offset:{off-65536}", tag)] for s in range(8)]
def vreads(sl, tag):
    return [Ins(f"ds_read_b64_tr_b16 {ar(A_VF+(u*4+t)*4+2*e,2)}, v{V_V+t} offset:{sl+(16*u+8*e)*256}", tag) for u in range(2) for t in range(4) for e in range(2)]

def p1q(p):
    AP = 64
    p.e(f"""
    s_mov_b32 s{S_ONES}, 0x3f803f80
    v_mov_b32 v{Q_CS}, 0
    v_mov_b32 v{Q_CS+1}, 0
    s_lshl_b32 s{S_T0}, s{S_RB}, {5+FSH()}
    s_lshl_b32 s{S_T2}, s{S_RB}, 11
    s_lshl_b32 s{S_T1}, s{S_W}, 9
    s_add_u32 s{S_T2}, s{S_T2}, s{S_T1}
    s_add_u32 s{S_T2}, s{S_T2}, {STAT0}
    """)
    if OPT.get("coop", 1): p.e(f"buffer_load_dword v{V_PFD}, v{Q_PX+1}, {S4(S_X)}, 0 offen", tag="PF")
    p.e(f"s_lshl_b32 s{S_T1}, s{S_W}, 12")
    p.e(f"buffer_load_dword v{V_PR}, v{Q_EP+2}, {S4(S_DBG)}, s{S_T1} offen sc1", tag="EPL")
    p.e(Wait(vm=["W0", "X0"])); stamp(p, 7, 5); p.e("s_barrier"); stamp(p, 8, 5)
    for x in areads_q(0) + csreads(0) + csreads(1): p.e(x)
    p.e(f"s_waitcnt lgkmcnt(0)\ns_mov_b32 s{S_WD+2}, {1792*1024}\ns_mov_b32 s{S_WD+3}, 0x00020000")
    sc = Sched()
    def publish(p):
        p.e(f"s_cmp_lg_u32 s{S_W}, 0\ns_cbranch_scc1 FS_X")
        p.e(Wait(vm=["EPL"]))
        p.e(f"v_readfirstlane_b32 s{S_EP}, v{V_PR}\ns_mov_b32 s{S_T1}, 0\ns_cmp_lg_u32 s{S_EP}, 0\ns_cbranch_scc1 EP_OK")
        p.skip_begin()
        p.label("EP_P")
        p.e("s_sleep 2")
        p.e(f"buffer_load_dword v{V_PR}, v{Q_EP+2}, {S4(S_DBG)}, 0 offen sc1", tag="OPT_POLL")
        p.e(f"""
        s_add_u32 s{S_T1}, s{S_T1}, 1
        s_waitcnt vmcnt(0)
        v_readfirstlane_b32 s{S_EP}, v{V_PR}
        s_cmp_gt_u32 s{S_T1}, 0x40000
        s_cbranch_scc1 EP_OK
        s_cmp_eq_u32 s{S_EP}, 0
        s_cbranch_scc1 EP_P
        """)
        p.skip_end()
        p.label("EP_OK")
        p.e(flag_store(0, Q_EP, Q_EP + 1, one='X'))
        p.e(f"buffer_load_dword v{V_PFD}, v{Q_PX+2}, {S4(S_X)}, 0 offen", tag="AFS")
    PUB = OPT.get("pub", 1); P1I = OPT.get("p1i", 18); P1C = OPT.get("p1c", 23)
    for s in range(32):
        t, u = s >> 2, s & 3
        mf = []
        for a in range(4):
            for b in range(2):
                d = vr(QACC(a, b), 16)
                mf.append(mfma(d, ar(AB1(s & 1, a), 4), ar(BR1(s, b), 4), d if s else "0"))
        g0 = sc.add(mf)
        if u == 3:
            vm = [f"W{t+1}", f"X{t+1}"] if t + 1 < 8 else ["KK"]
            if t == PUB: vm.append("XST")
            if t == PUB + 2: vm.append("AFS")
            sc.before(g0, [Wait(vm=vm, lg=[f"A{s}"] if s < 31 else ["CSW"]), "s_barrier"])
            if t == PUB: sc.before(g0, publish)
        sc.before(g0, Wait(lg=[f"A{s}"]))
        if s == 0: sc.before(g0, lambda p: (stamp(p, 1), stamp(p, 9, 5)))
        if s == 8: sc.before(g0, lambda p: stamp(p, 10, 5))
        if s % 4 == 0: sc.before(g0, lambda p, s=s: stamp(p, 1 + s // 4, 1))
        C = Q_CS
        if s == 0:
            sc.spread(csreads(2) + csreads(3), g0, g0 + 2); sc.spread(csdots(0) + csdots(1), g0, g0 + 8)
        if s == 1:
            sc.spread(csdots(2) + csdots(3), g0, g0 + 8)
        if s == 2:
            sc.spread(lines(f"""
            v_add_f32 v{C}, v{C}, v{C+1}
            v_lshrrev_b32 v{Q_CO}, {FSH()-2}, v{V_FL}
            v_mov_b32 v{C+1}, v{C}
            s_nop 1
            v_permlane32_swap_b32 v{C}, v{C+1}
            v_add_f32 v{C}, v{C}, v{C+1}
            """), g0 + 1, g0 + 5)
            sc.fixed(g0 + 10, [f"s_lshl_b32 s{S_T1}, s{S_J}, 3", f"s_add_u32 s{S_T1}, s{S_T1}, s{S_RB}", f"s_lshl_b32 s{S_T1}, s{S_T1}, 2",
                              f"s_add_u32 s{S_T1}, s{S_T1}, s{S_W}", f"s_lshl_b32 s{S_T1}, s{S_T1}, 7", f"s_add_u32 s{S_T1}, s{S_T1}, {CS0}",
                              "s_mov_b32 exec_hi, 0",
                              Ins(f"buffer_store_dword v{C}, v{Q_CO}, {S4(S_FLG)}, s{S_T1} offen{SC}", "XST"), "s_mov_b32 exec_hi, -1"])
        if s + 1 < 32: sc.spread(areads_q(s + 1), g0, g0 + 5)
        else:
            sc.spread([Ins(f"ds_read_b64 {ar(AP+4*a,2)}, v{Q_EP} offset:{a*512}", "AP") for a in range(4)] + kreads_hi(KKSLOT, "KF", V_T), g0, g0 + 6)
        if s == 12:
            sc.spread(lines(f"""
            v_mbcnt_lo_u32_b32 v{Q_EP}, -1, 0
            v_mbcnt_hi_u32_b32 v{Q_EP}, -1, v{Q_EP}
            v_add_u32 v{Q_PL}, s{S_T0}, v{V_FL}
            v_and_b32 v{Q_EP+1}, 7, v{Q_EP}
            v_lshlrev_b32 v{Q_EP+1}, {5+FSH()}, v{Q_EP+1}
            s_and_b32 s{S_T1}, s2, 31
            s_lshl_b32 s{S_T1}, s{S_T1}, {FSH()}
            v_add_u32 v{Q_EP+1}, s{S_T1}, v{Q_EP+1}
            """) + [["s_mov_b32 exec_lo, 0", f"v_mov_b32 v{Q_PL}, v{Q_EP+1}", f"v_add_u32 v{Q_CO}, 2048, v{Q_CO}", "s_mov_b32 exec_lo, -1"]] + lines(f"""
            v_lshlrev_b32 v{Q_EP}, 3, v{Q_EP}
            v_add_u32 v{Q_EP}, {LDS_CS}, v{Q_EP}
            """), g0, g0 + 8)
        if s == 29:
            sc.before(g0, Wait(vm=["CSL"]))
            sc.spread(lines(f"""
            v_add_f32 v{C}, v{Q_CT}, v{Q_CT+1}
            v_add_f32 v{C+1}, v{Q_CT+2}, v{Q_CT+3}
            v_add_f32 v{C}, v{C}, v{C+1}
            v_mov_b32 v{C+1}, v{C}
            s_nop 1
            v_permlane32_swap_b32 v{C}, v{C+1}
            v_add_f32 v{C}, v{C}, v{C+1}
            v_cvt_pk_bf16_f32 v{C+1}, v{C}, v{C}
            v_and_b32 v{C+1}, 0xffff0000, v{C+1}
            v_sub_f32 v{C+1}, v{C}, v{C+1}
            v_cvt_pk_bf16_f32 v{C+2}, v{C}, v{C+1}
            v_and_b32 v{C}, 0xffff0000, v{C+2}
            v_sub_f32 v{C+1}, v{C+1}, v{C}
            v_cvt_pk_bf16_f32 v{C+3}, v{C+1}, 0
            s_lshl_b32 s{S_T1}, s{S_W}, 9
            v_add_u32 v{Q_EP+1}, s{S_T1}, v{Q_EP}
            """) + [Ins(f"ds_write_b64 v{Q_EP+1}, v[{C+2}:{C+3}]", "CSW")], g0, g0 + 12)
        if s == 8: sc.spread([f"v_accvgpr_write_b32 a{AP+4*a+2+i}, 0" for a in range(4) for i in range(2)] +
                             [f"v_mov_b32 v{Q_BP+i}, 0" for i in range(8)], g0, g0 + 8)
        if s == P1I: sc.fixed(g0 + 1, [f"s_mov_b32 s{S_T0}, 0", poll_issue(0, S_T0, "P1", Q_PL)])
        if s == P1C:
            sc.before(g0, [Wait(vm=["P1"]), f"s_and_b32 s{S_T1}, s2, 31", f"v_readlane_b32 s{S_EP}, v{V_PR}, s{S_T1}", "s_nop 0"])
            sc.before(g0, lambda p: poll_check(p, "SY1", 0, S_T0, "P1", S_T1, Q_PL))
            for i in range(4):
                pre = [f"s_lshl_b32 s{S_T0}, s{S_J}, 12", f"s_lshl_b32 s{S_T1}, s{S_W}, 7", f"s_add_u32 s{S_T0}, s{S_T0}, s{S_T1}", f"s_add_u32 s{S_T0}, s{S_T0}, {CS0}"] if i == 0 else []
                sc.fixed(g0 + 5 + 2*i, pre + [Ins(f"buffer_load_dword v{Q_CT+i}, v{Q_CO}, {S4(S_FLG)}, s{S_T0} offen offset:{i*512}{SC}", "CSL")])
            for b in range(2):
                sc.fixed(g0 + 1 + 2*b, [Ins(f"buffer_load_dwordx2 v[{Q_ST+2*b}:{Q_ST+2*b+1}], v{Q_EP+3}, {S4(S_FLG)}, s{S_T2} offen offset:{b*256}{SC}", "ST")])
        if s == 28:
            sc.before(g0, [Wait(vm=["ST"]), "s_mov_b32 exec_hi, 0"] +
                      [x for b in range(2) for x in (f"v_mov_b32 v{Q_BP+4*b}, v{Q_ST+2*b}", f"v_and_b32 v{Q_BP+4*b+1}, 0xffff, v{Q_ST+2*b}")] +
                      ["s_mov_b32 exec_hi, -1"] +
                      [x for b in range(2) for x in (f"v_mov_b32 v{Q_SC+2*b}, v{Q_ST+2*b+1}", f"v_mov_b32 v{Q_SC+2*b+1}, v{Q_ST+2*b+1}")])
    sc.spread(deferred_setup(), 4, 92)
    g0 = sc.add([mfma(vr(QACC(a, b), 16), ar(AP + 4*a, 4), vr(Q_BP + 4*b, 4), vr(QACC(a, b), 16)) for b in range(2) for a in range(4)])
    sc.before(g0, Wait(lg=["AP"]))
    for t in range(2 if OPT.get('early1') else 1, 8):
        for x in dma_x(t): sc.queue("X", x, max(0, 8*(4*(t - 3) + 3)), 8*(4*t - 1) - 60)
        for x in dma_q(t): sc.queue("W", x, max(0, 8*(4*(t - 4) + 3)), 8*(4*t - 1) - 64)
    for x in dma_kk(): sc.queue("KV", x, 8*19, 8*31 - 64)
    for i in range(2):
        for x in dma_d(i): sc.queue("KV", x, 8*23, 260)
    if OPT.get("coop", 1):
        sc.fixed(OPT.get("cx3", 114), [Ins(f"buffer_load_dword v{V_PFD}, v{Q_PX+3}, {S4(S_X)}, 0 offen", "PF")])
    sc.fixed(OPT.get("pfg", 250), [Ins(f"buffer_load_dword v{V_PFD}, v227, {S4(S_WG)}, 0 offen", "PF")])
    sc.fixed(OPT.get("pfu", 258), [Ins(f"buffer_load_dword v{V_PFD}, v227, {S4(S_WU)}, 0 offen", "PF")])
    sc.emit(p)
    if sc.report: print("p1q late:", sc.report)
    if OPT.get("coop", 1):
        p.e(f"s_and_b32 s{S_DT}, s{S_J}, 3\ns_lshl_b32 s{S_DT}, s{S_DT}, 1\ns_add_u32 s{S_DT}, s{S_DT}, s{S_RB}\ns_and_b32 s{S_DT}, s{S_DT}, 7")
    p.e(f"s_lshl_b32 s{S_BT}, s{S_DT}, 12")

def qconv():
    out = []
    for k in range(64):
        b = (k >> 3) & 1
        out.append([f"v_pk_mul_f32 v[{2*k}:{2*k+1}], v[{2*k}:{2*k+1}], v[{Q_SC+2*b}:{Q_SC+2*b+1}]"])
        out.append([f"v_cvt_pk_bf16_f32 v{k}, v{2*k}, v{2*k+1}"])
    res = [out[0]]
    for k in range(64):
        if k + 1 < 64: res.append(out[2*(k+1)])
        res.append(out[2*k+1])
    return res

def qk_mf(par, first_c):
    mf = []
    for s in range(8):
        for b in range(2):
            d = vr(SB(par, b), 16)
            mf.append(mfma(d, ar(A_KF + 4*s, 4), vr(QF(b, s), 4), d if s else first_c(b)))
    return mf
def pv_mf(par):
    mf = []
    for u in range(2):
        for t in range(4):
            for b in range(2):
                d = ar(OACC(t, b), 16)
                mf.append(mfma(d, ar(A_VF + (u*4+t)*4, 4), vr(PB(par, b, u), 4), d))
    return mf
def softmax_items(par):
    out = []
    for u in range(2):
        for b in range(2):
            for i in range(0, 8, 2):
                r = SB(par, b) + 8*u + i
                out.append([f"v_exp_f32 v{r}, v{r}"])
                out.append([f"v_exp_f32 v{r+1}, v{r+1}"])
                if OPT.get("dot2"):
                    out.append(["s_nop 0"] if False else [f"v_cvt_pk_bf16_f32 v{PB(par,b,u)+i//2}, v{r}, v{r+1}"])
                    out.append([f"v_dot2c_f32_bf16 v{V_L+b}, s{S_ONES}, v{PB(par,b,u)+i//2}"])
                elif OPT.get("pkl"):
                    out.append([f"v_cvt_pk_bf16_f32 v{PB(par,b,u)+i//2}, v{r}, v{r+1}"])
                    out.append([f"v_pk_add_f32 v[{V_LP+2*b}:{V_LP+2*b+1}], v[{V_LP+2*b}:{V_LP+2*b+1}], v[{r}:{r+1}]"])
                else:
                    out.append([f"v_add_f32 v{V_L+b}, v{V_L+b}, v{r}"])
                    out.append([f"v_add_f32 v{V_L+b}, v{V_L+b}, v{r+1}"])
                    out.append([f"v_cvt_pk_bf16_f32 v{PB(par,b,u)+i//2}, v{r}, v{r+1}"])
    if OPT.get("dot2") or OPT.get("pkl"):
        e = [out[i:i+2] for i in range(0, 64, 4)]; c = [out[i+2:i+4] for i in range(0, 64, 4)]
        res = list(e[0])
        for k in range(16):
            if k + 1 < 16: res += e[k+1]
            else: res += [["s_nop 0"]]
            res += c[k]
        return res
    return out
HEAD, TAIL = 35, 10
def period(p, pp, qk=True, dma=True, kread=True, nexthead=True, last=False, extra=(), endvm=(), xds=()):
    par = pp & 1; sl = (pp % 4) * SLOT
    sm = softmax_items(par); smn = softmax_items(par ^ 1)
    negm = lambda b: vr(NEGM(b), 16)
    d = (dma_d(pp + 3) if dma else []) + list(extra)
    sc = Sched()
    if qk:
        sc.add(qk_mf(par ^ 1, negm))
        sc.spread(vreads(sl, "VF"), 0, 10); sc.spread(sm[HEAD:len(sm)-TAIL], 0, 16)
    else:
        for x in vreads(sl, "VF"): p.e(x)
        for x in sm[HEAD:len(sm)-TAIL]: p.e(x)
        p.e("s_nop 1")
    g0 = sc.add(pv_mf(par))
    sc.before(g0, Wait(lg=["VF"]))
    sc.spread(sm[len(sm)-TAIL:], g0, g0 + 3)
    if kread: sc.spread(kreads(sl + 8192, "KF"), g0 + 3, g0 + 12)
    if nexthead: sc.spread(smn[:HEAD], g0 + 3, g0 + 16)
    if xds: sc.spread(list(xds), g0 + 3, g0 + 12)
    n = len(sc.mf)
    for k, x in enumerate(d): sc.fixed(1 + (k * (n - 2)) // max(len(d), 1), x)
    sc.emit(p)
    if not last:
        p.e(Wait(vm=[f"D{(pp+1)%4}"] + list(endvm), lg=["KF"])); p.e("s_barrier")

def maxtree(p, par, dst, init=True):
    for b in range(2):
        s0 = SB(par, b)
        if init: p.e(f"v_max3_f32 v{dst+b}, v{s0}, v{s0+1}, v{s0+2}"); rest = list(range(3, 16))
        else: rest = list(range(16))
        while len(rest) >= 2:
            p.e(f"v_max3_f32 v{dst+b}, v{dst+b}, v{s0+rest[0]}, v{s0+rest[1]}"); rest = rest[2:]
        if rest: p.e(f"v_max_f32 v{dst+b}, v{dst+b}, v{s0+rest[0]}")
def negm_from(p, m):
    p.e(f"""
    v_mov_b32 v{m+2}, v{m}
    v_mov_b32 v{m+3}, v{m+1}
    s_nop 1
    v_permlane32_swap_b32 v{m}, v{m+2}
    v_permlane32_swap_b32 v{m+1}, v{m+3}
    v_max_f32 v{m}, v{m}, v{m+2}
    v_max_f32 v{m+1}, v{m+1}, v{m+3}
    """)
    for b in range(2):
        for i in range(16): p.e(f"v_sub_f32 v{NEGM(b)+i}, 0, v{m+b}")

def attention(p):
    T = V_T
    p.label("K2_ATT")
    p.e(Wait(lg=["KF"]))
    zero = [f"v_accvgpr_write_b32 a{i}, 0" for i in range(128)]
    sc = Sched(); sc.add(qk_mf(0, lambda b: "0")); sc.spread(zero, 0, 16)
    for k, x in enumerate(dma_d(2)): sc.fixed(1 + 4*k, x)
    sc.emit(p)
    for g in kreads_hi(KKSLOT + 8192, "KF", T + 8): p.e(g)
    for i in range(4): p.e(f"v_mov_b32 v{V_LP+i}, 0")
    p.e(f"v_mov_b32 v{V_L}, 0\nv_mov_b32 v{V_L+1}, 0\ns_add_u32 s{S_GM}, s{S_W2K}, {gslot(0)}")
    p.e(f"s_cmp_lg_u32 s{S_FLAG}, 0\ns_cbranch_scc1 K2_HAVEM")
    maxtree(p, 0, T)
    negm_from(p, T)
    p.label("K2_HAVEM")
    for b in range(2):
        for i in range(16): p.e(f"v_add_f32 v{SB(0,b)+i}, v{SB(0,b)+i}, v{NEGM(b)+i}")
    for x in softmax_items(0)[:HEAD]: p.e(x)
    p.e(Wait(vm=["D0"], lg=["KF"])); p.e("s_barrier")
    p.e(f"s_mov_b32 s{S_LOOP}, 0")
    stamp(p, 3)
    p.e(f"""
    s_lshr_b32 s{S_T0}, s2, 3
    s_lshl_b32 s{S_T0}, s{S_T0}, 2
    s_add_u32 s{S_T0}, s{S_T0}, s{S_W}
    s_lshl_b32 s{S_PFD}, s{S_T0}, 13
    s_lshl_b32 s{S_PF}, s2, 2
    s_add_u32 s{S_PF}, s{S_PF}, s{S_W}
    s_lshl_b32 s{S_PF}, s{S_PF}, 13
    s_cmp_lt_u32 s{S_PF}, {4096*1024}
    s_cselect_b32 s72, s{S_WO}, s{S_WD}
    s_cselect_b32 s73, s{S_WO+1}, s{S_WD+1}
    s_cselect_b32 s74, s{S_WO+2}, s{S_WD+2}
    s_mov_b32 s75, 0x00020000
    s_and_b32 s{S_PF}, s{S_PF}, {4096*1024-1}
    """)
    mpf = [[Ins(f"buffer_load_dword v{V_PFD}, v{V_PFA}, s[72:75], s{S_PF} offen", "PF")]]
    gs = (1, 3) if not OPT.get("glate", 1) else (3, 4)
    if OPT.get("mpf2", 1):
        p.e(f"v_and_b32 v{T+2}, 0xf80, v{V_PFA}")
        mpf = [[Ins(f"buffer_load_dword v{V_PFD}, v{T+2}, s[72:75], s{S_PF} offen", "PF"), f"s_add_u32 s{S_PF}, s{S_PF}, 4096"]]
        period(p, 0)
    else: period(p, 0, extra=mpf)
    p.loop_begin()
    for i in range(1, 5): period(p, i, extra=dma_g("G") if i in gs else (mpf if OPT.get("mpf2", 1) and i == 2 else ()))
    p.loop_end("K2_LOOP", 3, [f"s_add_u32 s{S_LOOP}, s{S_LOOP}, 1", f"s_cmp_lt_u32 s{S_LOOP}, 3", "s_cbranch_scc1 K2_LOOP"])
    period(p, 13, dma=False, extra=bload(0, BR2, "C") + bload(1, BR2, "C") + bload(2, BR2, "C") + bload(3, BR2, "C"))
    g6 = dma_g("G6"); g6[0] = [f"s_mov_b32 s{S_GM}, s{S_W2K}"] + g6[0]
    period(p, 14, dma=False, kread=False, extra=g6 + dma_g("G7"), endvm=["G"])
    period(p, 15, qk=False, dma=False, kread=False, nexthead=False, last=True,
           extra=bload(4, BR2, "C") + bload(5, BR2, "C") + bload(6, BR2, "C") + bload(7, BR2, "C"), xds=areads_g(0))

V_LI = 48
def oepi_head(p):
    T = V_T
    if OPT.get("pkl"): p.e(f"v_add_f32 v{V_L}, v{V_LP}, v{V_LP+1}\nv_add_f32 v{V_L+1}, v{V_LP+2}, v{V_LP+3}")
    p.e(f"""
    v_mov_b32 v{T}, v{V_L}
    v_mov_b32 v{T+1}, v{V_L+1}
    s_nop 1
    v_permlane32_swap_b32 v{V_L}, v{T}
    v_permlane32_swap_b32 v{V_L+1}, v{T+1}
    v_add_f32 v{V_L}, v{V_L}, v{T}
    v_add_f32 v{V_L+1}, v{V_L+1}, v{T+1}
    v_add_f32 v{T+1}, v{V_L}, v{V_L+1}
    s_mov_b32 s{S_T0}, 0x5d800000
    v_cmp_ngt_f32 vcc, s{S_T0}, v{T+1}
    s_nop 1
    s_cmp_lg_u64 vcc, 0
    s_cselect_b32 s{S_T1}, 1, 0
    v_mov_b32 v{T}, s{S_T1}
    v_mov_b32 v{T+1}, {LDS_FLAG}
    v_mov_b32 v{T+2}, s{S_W}
    v_lshl_add_u32 v{T+2}, v{T+2}, 2, v{T+1}
    ds_write_b32 v{T+2}, v{T}
    """)
    p.e(Wait(vm=["G7"])); p.e("s_waitcnt lgkmcnt(0)\ns_barrier")
    p.e(f"""
    ds_read_b128 v[{T+4}:{T+7}], v{T+1}
    s_add_u32 s{S_T2}, s{S_OOFF}, 4096
    s_waitcnt lgkmcnt(0)
    v_or_b32 v{T+4}, v{T+4}, v{T+5}
    v_or3_b32 v{T+4}, v{T+4}, v{T+6}, v{T+7}
    s_nop 0
    v_readfirstlane_b32 s{S_T1}, v{T+4}
    s_nop 0
    s_andn2_b32 s{S_T1}, s{S_T1}, s{S_FLAG}
    s_cmp_lg_u32 s{S_T1}, 0
    s_cbranch_scc1 K2_SLOW
    v_rcp_f32 v{V_LI}, v{V_L}
    v_rcp_f32 v{V_LI+2}, v{V_L+1}
    s_nop 0
    v_mov_b32 v{V_LI+1}, v{V_LI}
    v_mov_b32 v{V_LI+3}, v{V_LI+2}
    """)
def oepi_groups():
    out = []; k = 0
    for t in range(4):
        for b in range(2):
            for uu in range(2):
                o0 = OACC(t, b) + 8*uu
                tmp = (k % 4) * 8; pk = 32 + (k % 4) * 4; k += 1
                g = [f"v_accvgpr_read_b32 v{tmp+i}, a{o0+i}" for i in range(8)]
                if OPT.get("opk"): g += [f"v_pk_mul_f32 v[{tmp+i}:{tmp+i+1}], v[{tmp+i}:{tmp+i+1}], v[{V_LI+2*b}:{V_LI+2*b+1}]" for i in range(0, 8, 2)]
                else: g += [f"v_mul_f32 v{tmp+i}, v{tmp+i}, v{V_LI+2*b}" for i in range(8)]
                g += [f"v_cvt_pk_bf16_f32 v{pk+i//2}, v{tmp+i}, v{tmp+i+1}" for i in range(0, 8, 2)]
                off = (2*t + uu) * 1024
                so = S_OOFF if off < 4096 else S_T2
                g.append(Ins(f"buffer_store_dwordx4 v[{pk}:{pk+3}], v{V_ST0+b}, {S4(S_ACT)}, s{so} offen offset:{off % 4096}{SC}", "OST"))
                out.append(g)
    return out

def slowpath():
    p = Prog(); T = V_T
    p.label("K2_SLOW")
    p.e(f"""
    s_mov_b32 s{S_FLAG}, 1
    s_mov_b32 s{S_KT}, 0
    s_mov_b32 s{S_LOOP}, 0
    s_sub_u32 s{S_BT}, s{S_BT}, 8192
    s_and_b32 s{S_BT}, s{S_BT}, 0x7fff
    v_mov_b32 v{T}, 0xff800000
    v_mov_b32 v{T+1}, 0xff800000
    s_waitcnt vmcnt(0) lgkmcnt(0)
    """)
    p.loop_begin()
    p.e("s_barrier")
    for g in dma_k(8192, "X"): p.e(g)
    p.e("s_waitcnt vmcnt(0)\ns_barrier")
    for x in kreads(8192, "KF"): p.e(x)
    p.e("s_waitcnt lgkmcnt(0)")
    for x in qk_mf(0, lambda b: "0"): p.e(x)
    p.e("s_nop 11")
    maxtree(p, 0, T, init=False)
    p.loop_end("K2_SLOWL", 16, [f"s_add_u32 s{S_LOOP}, s{S_LOOP}, 1", f"s_cmp_lt_u32 s{S_LOOP}, 16", "s_cbranch_scc1 K2_SLOWL"])
    negm_from(p, T)
    p.e(f"s_barrier\ns_mov_b32 s{S_KT}, s{S_ROT2}\ns_mov_b32 s{S_VT}, s{S_ROT2}")
    for g in dma_kk(): p.e(g)
    for i in range(2):
        for g in dma_d(i): p.e(g)
    p.e("s_waitcnt vmcnt(0)\ns_barrier")
    for g in kreads_hi(KKSLOT, "KF", T + 8): p.e(g)
    p.e("s_branch K2_ATT")
    return p

def late_setup():
    T = V_T; VL = K_VL
    return lines(f"""
    v_mbcnt_lo_u32_b32 v{VL}, -1, 0
    v_mbcnt_hi_u32_b32 v{VL}, -1, v{VL}
    s_and_b32 s{K_KQ}, s2, 3
    s_bfe_u32 s{K_QD}, s2, {0x10005 if OPT.get('qd', 0) else 0x10009}
    s_xor_b32 s{K_QD}, s{K_QD}, s{K_KQ}
    s_lshr_b32 s{S_T0}, s2, 3
    s_and_b32 s{K_CT}, s{S_T0}, 3
    s_lshr_b32 s{K_SR32}, s{S_T0}, 2
    s_lshl_b32 s{K_SR32}, s{K_SR32}, 2
    s_and_b32 s{S_T0}, s2, 4
    s_lshr_b32 s3, s2, 6
    s_add_u32 s3, s3, s{S_T0}
    s_lshl_b32 s3, s3, {5+FSH()}
    s_lshl_b32 s{S_T0}, s{S_T0}, 3
    s_add_u32 s{K_SR32}, s{K_SR32}, s{S_T0}
    v_lshlrev_b32 v{K_VL16}, 4, v{VL}
    v_and_b32 v{T}, 3, v{VL}
    v_bfe_u32 v{T+1}, v{VL}, 2, 1
    v_lshl_add_u32 v{T}, v{T}, 3, v{T+1}
    s_lshl_b32 s{S_T0}, s{K_KQ}, 1
    v_add_u32 v{T}, s{S_T0}, v{T}
    v_lshlrev_b32 v{V_FL2}, {FSH()}, v{T}
    v_lshrrev_b32 v{T}, 4, v{VL}
    v_and_b32 v{T+1}, 15, v{VL}
    v_lshlrev_b32 v{T+2}, 2, v{T}
    v_xor_b32 v{T+1}, v{T+1}, v{T+2}
    v_lshlrev_b32 v{T+1}, 4, v{T+1}
    v_lshl_add_u32 v{K_VSW}, v{T}, 10, v{T+1}
    s_lshl_b32 s{S_T0}, s{S_W}, 12
    s_lshl_b32 s{S_T1}, s{K_CT}, 8
    s_add_u32 s{S_T0}, s{S_T0}, s{S_T1}
    v_add_u32 v{K_VSW}, s{S_T0}, v{K_VSW}
    s_add_u32 s{S_T0}, s{K_SR32}, s{S_W}
    s_mul_i32 s{S_T0}, s{S_T0}, {ACT_KS*1024}
    v_add_u32 v{K_VSA}, s{S_T0}, v{K_VL16}
    s_lshl_b32 s{K_SSW}, s{K_KQ}, 20
    s_lshl_b32 s{K_SSA}, s{K_KQ}, 16
    s_mul_i32 s{S_T0}, s{K_CT}, {OPT.get("rks", 0) // 16}
    s_lshr_b32 s{S_T1}, s2, 5
    s_mul_i32 s{S_T1}, s{S_T1}, {OPT.get("rks", 0) % 16}
    s_add_u32 s{S_T0}, s{S_T0}, s{S_T1}
    s_and_b32 s{S_T0}, s{S_T0}, 15
    s_lshl_b32 s{S_T1}, s{S_T0}, 16
    s_or_b32 s{K_SSW}, s{K_SSW}, s{S_T1}
    s_lshl_b32 s{S_T1}, s{S_T0}, 12
    s_or_b32 s{K_SSA}, s{K_SSA}, s{S_T1}
    v_lshrrev_b32 v{T}, 5, v{VL}
    v_bfe_u32 v{T+1}, v{VL}, 2, 2
    v_bfe_u32 v{T+2}, v{VL}, 4, 1
    v_and_b32 v{T+3}, 3, v{VL}
    v_and_b32 v{T+4}, 1, v{T+3}
    v_lshrrev_b32 v{T+5}, 1, v{T+3}
    v_lshl_add_u32 v{T+4}, v{T+4}, 1, v{T+5}
    v_lshlrev_b32 v{T+5}, 5, v{T+2}
    v_lshl_add_u32 v{T+4}, v{T+4}, 3, v{T+5}
    v_lshl_add_u32 v{T+5}, v{T}, 2, v{T+1}
    v_lshl_add_u32 v{T+6}, v{T+5}, 8, v{T+4}
    s_and_b32 s{S_T0}, s{S_W}, 1
    s_lshl_b32 s{S_T0}, s{S_T0}, 1
    v_xor_b32 v{T+7}, s{S_T0}, v{T+1}
    v_lshl_add_u32 v{K_VRA}, v{T+7}, 6, v{T+6}
    v_xor_b32 v{T+7}, 1, v{T+7}
    v_lshl_add_u32 v{K_VRA+1}, v{T+7}, 6, v{T+6}
    v_add_u32 v{K_VRA+2}, 0x10000, v{K_VRA}
    v_add_u32 v{K_VRA+3}, 0x10000, v{K_VRA+1}
    v_add_u32 v{K_VRA+4}, 0x20000, v{K_VRA}
    v_add_u32 v{K_VRA+5}, 0x20000, v{K_VRA+1}
    s_and_b32 s{S_T0}, s{S_W}, 2
    s_lshl_b32 s{S_T0}, s{S_T0}, 12
    v_add_u32 v{K_VRB}, s{S_T0}, v{K_VL16}
    v_add_u32 v{K_VRB+1}, 0x10000, v{K_VRB}
    v_add_u32 v{K_VRB+2}, 0x20000, v{K_VRB}
    s_lshl_b32 s{K_SLB}, s{S_W}, 14
    s_add_u32 s{K_SLB}, s{K_SLB}, 65536
    v_lshl_add_u32 v{T+6}, v{T+5}, 7, v{T+4}
    v_add_u32 v{T+6}, s{K_SLB}, v{T+6}
    v_lshrrev_b32 v{T+7}, 1, v{T+1}
    v_lshl_add_u32 v{K_VA0}, v{T+7}, 6, v{T+6}
    v_xor_b32 v{T+7}, 1, v{T+7}
    v_lshl_add_u32 v{K_VA0+1}, v{T+7}, 6, v{T+6}
    v_subrev_u32 v{K_VA2}, 0x10000, v{K_VA0}
    v_subrev_u32 v{K_VA2+1}, 0x10000, v{K_VA0+1}
    s_sub_u32 s{S_T0}, s{K_SLB}, s{S_W4K}
    v_subrev_u32 v{V_STG}, s{S_T0}, v{K_VA0}
    v_subrev_u32 v{V_STG+1}, s{S_T0}, v{K_VA0+1}
    v_add_u32 v{V_STG+2}, 0x10000, v{V_STG}
    v_add_u32 v{V_STG+3}, 0x10000, v{V_STG+1}
    v_add_u32 v{V_STG+4}, 0x20000, v{V_STG}
    v_add_u32 v{V_STG+5}, 0x20000, v{V_STG+1}
    s_mul_i32 s{K_SWO}, s{S_W}, {28*16384}
    s_mul_i32 s{K_SA}, s{S_W}, {28*1024}
    s_add_u32 s{K_SA}, s{K_SA}, {256*1024}
    s_add_u32 s{K_WEND}, s{K_SWO}, {28*16384}
    s_add_u32 s{K_AEND}, s{K_SA}, {28*1024}
    s_mul_i32 s{S_T0}, s{K_CT}, {OPT.get("rkb", 0) // 16}
    s_bfe_u32 s{S_T1}, s2, 0x20006
    s_mul_i32 s{S_T1}, s{S_T1}, {OPT.get("rkb", 0) % 16}
    s_add_u32 s{S_T0}, s{S_T0}, s{S_T1}
    s_lshl_b32 s{S_T1}, s{S_T0}, 14
    s_add_u32 s{K_SWO}, s{K_SWO}, s{S_T1}
    s_lshl_b32 s{S_T1}, s{S_T0}, 10
    s_add_u32 s{K_SA}, s{K_SA}, s{S_T1}
    s_and_b32 s{S_T1}, s{K_QD}, 2
    s_add_u32 s{S_T1}, s{S_T1}, s{K_SR32}
    s_mul_i32 s{S_T0}, s{S_T1}, {ACT_KS*1024}
    v_add_u32 v{K_VB0}, s{S_T0}, v{K_VL16}
    v_add_u32 v{K_VB1}, {ACT_KS*1024}, v{K_VB0}
    s_lshr_b32 s{S_T0}, s{S_W}, 1
    s_add_u32 s{S_T0}, s{S_T0}, s{S_T1}
    s_lshl_b32 s{S_T0}, s{S_T0}, 15
    s_and_b32 s{S_T1}, s{S_W}, 1
    s_lshl_b32 s{S_T1}, s{S_T1}, 6
    s_add_u32 s{S_T0}, s{S_T0}, s{S_T1}
    s_lshl_b32 s{S_T1}, s{K_CT}, 8
    s_and_b32 s{K_SPO}, s{K_QD}, 1
    s_lshl_b32 s{K_SPO}, s{K_SPO}, 7
    s_add_u32 s{S_T1}, s{S_T1}, s{K_SPO}
    s_add_u32 s{S_T0}, s{S_T0}, s{S_T1}
    v_and_b32 v{T+6}, 31, v{VL}
    v_lshlrev_b32 v{T+6}, 10, v{T+6}
    v_lshl_add_u32 v{T+6}, v{T}, 4, v{T+6}
    v_add_u32 v{K_VX}, s{S_T0}, v{T+6}
    v_lshrrev_b32 v{T+6}, 3, v{VL}
    v_and_b32 v{T+7}, 7, v{VL}
    v_lshlrev_b32 v{T+5}, 2, v{T+2}
    v_xor_b32 v{T+7}, v{T+7}, v{T+5}
    v_lshlrev_b32 v{T+7}, 4, v{T+7}
    v_lshl_add_u32 v{K_VW0}, v{T+6}, 10, v{T+7}
    v_add_u32 v{K_VW0}, s{S_T1}, v{K_VW0}
    v_add_u32 v{K_VW1}, {8192-1024}, v{K_VW0}
    s_lshr_b32 s{S_T0}, s2, 2
    s_lshl_b32 s{K_SPO}, s{S_T0}, {7 if FSH() == 2 else 4+FSH()}
    s_add_u32 s{K_SPO}, s{K_SPO}, {PFL0}
    s_lshl_b32 s{S_T0}, s{S_T0}, 17
    s_lshl_b32 s{S_T1}, s{S_W}, 15
    s_add_u32 s{K_SST}, s{S_T0}, s{S_T1}
    s_lshl_b32 s{S_T1}, s{K_KQ}, 13
    s_add_u32 s{K_SST}, s{K_SST}, s{S_T1}
    s_lshl_b32 s{S_T1}, s{K_QD}, 15
    s_add_u32 s{S_T0}, s{S_T0}, s{S_T1}
    s_lshl_b32 s{S_T1}, s{S_W}, 11
    s_add_u32 s{K_SLD}, s{S_T0}, s{S_T1}
    """) + ([[f"s_cmp_eq_u32 s{S_W}, s{K_QD}", f"s_cselect_b32 s{K_SST}, 0x40000000, s{K_SST}"]] if OPT.get("own", 1) else [])
def ks_sw(g):
    return [[f"s_add_u32 m0, s{S_W1K}, {kslot(g)+st*4096}", "s_nop 0",
             Ins(f"buffer_load_dwordx4 v{K_VSW}, {S4(S_WO)}, s{K_SSW} offen lds", f"sw{g}"), f"s_add_u32 s{K_SSW}, s{K_SSW}, {0 if OPT.get('wfix') else 16384}"] +
             ([f"s_and_b32 s{K_SSW}, s{K_SSW}, 0xfffff", f"s_lshl_b32 s{S_DQ}, s{K_KQ}, 20", f"s_or_b32 s{K_SSW}, s{K_SSW}, s{S_DQ}"] if st == 3 and OPT.get("rks") else []) for st in range(4)]
def ks_sa(g):
    out = [[f"s_add_u32 m0, s{S_W4K}, {kslot(g)+16384}", "s_nop 0",
            Ins(f"buffer_load_dwordx4 v{K_VSA}, {S4(S_ACT)}, s{K_SSA} offen offset:{st*1024}{LSC()} lds", f"sa{g}")] for st in range(4)]
    out[-1].append(f"s_add_u32 s{K_SSA}, s{K_SSA}, {0 if OPT.get('afix') else 4096}")
    if OPT.get("rks"): out[-1] += [f"s_and_b32 s{K_SSA}, s{K_SSA}, 0xffff", f"s_lshl_b32 s{S_DQ}, s{K_KQ}, 16", f"s_or_b32 s{K_SSA}, s{K_SSA}, s{S_DQ}"]
    return out
def FA(i, nt): return (i % 3)*16 + nt*4
def FB(i, b): return (i % 3)*16 + 8 + b*4
def ks_rd(i):
    g, st = i // 4, i % 4
    sl = kslot(g); hi = sl // 65536; sl -= hi * 65536
    out = [Ins(f"ds_read_b64_tr_b16 {ar(FA(i,nt)+2*e,2)}, v{K_VRA+2*hi+nt} offset:{sl+st*4096+e*2048}", f"f{i}") for nt in range(2) for e in range(2)]
    out += [Ins(f"ds_read_b128 {ar(FB(i,b),4)}, v{K_VRB+hi} offset:{sl+16384+b*4096+st*1024}", f"f{i}") for b in range(2)]
    return out
def BR3(i, b): return 128 + (i % 14)*8 + b*4
def AB3(i, nt): return (48 + i*8 if i < NPRE else 240 + (i & 1)*8) + nt*4
NPRE = 8
V_STG = V_T + 8
def stg(c): return kslot(c // 2) + 16384 + (c & 1) * 2048
def kbo(i):
    j = i - NPRE
    return (j % 8) * 2048 - (65536 if (j % 16) >= 8 else 0)
def kb_wl(i):
    m0 = f"s_add_u32 m0, s{S_W4K}, {stg(i)}" if i < NPRE else f"s_add_u32 m0, s{K_SLB}, {kbo(i) & 0xffffffff}"
    return [[m0, "s_nop 0", Ins(f"buffer_load_dwordx4 v{K_VW0}, {S4(S_WD)}, s{K_SWO} offen lds", f"w{i}")],
            [m0, "s_nop 0", Ins(f"buffer_load_dwordx4 v{K_VW1}, {S4(S_WD)}, s{K_SWO} offen offset:1024 lds", f"w{i}"),
             f"s_add_u32 s{K_SWO}, s{K_SWO}, {0 if OPT.get('wfix') else 16384}"] +
             ([f"s_sub_u32 s{S_DQ}, s{K_SWO}, {28*16384}", f"s_cmp_eq_u32 s{K_SWO}, s{K_WEND}", f"s_cselect_b32 s{K_SWO}, s{S_DQ}, s{K_SWO}"] if OPT.get("rkb") else [])]
def kb_bl(i):
    return [[Ins(f"buffer_load_dwordx4 {ar(BR3(i,0),4)}, v{K_VB0}, {S4(S_ACT)}, s{K_SA} offen{LSC()}", f"b{i}")],
            [Ins(f"buffer_load_dwordx4 {ar(BR3(i,1),4)}, v{K_VB1}, {S4(S_ACT)}, s{K_SA} offen{LSC()}", f"b{i}"), f"s_add_u32 s{K_SA}, s{K_SA}, {0 if OPT.get('afix') else 1024}"] +
             ([f"s_sub_u32 s{S_DQ}, s{K_SA}, {28*1024}", f"s_cmp_eq_u32 s{K_SA}, s{K_AEND}", f"s_cselect_b32 s{K_SA}, s{S_DQ}, s{K_SA}"] if OPT.get("rkb") else [])]
def kb_rd(i):
    if i < NPRE:
        hi = stg(i) // 65536
        return [Ins(f"ds_read_b64_tr_b16 {ar(AB3(i,nt)+2*e,2)}, v{V_STG+2*hi+nt} offset:{stg(i)-hi*65536+e*1024}", f"a{i}") for nt in range(2) for e in range(2)]
    j = i - NPRE
    return [Ins(f"ds_read_b64_tr_b16 {ar(AB3(i,nt)+2*e,2)}, v{(K_VA0 if (j % 16) < 8 else K_VA2)+nt} offset:{(j%8)*2048+e*1024}", f"a{i}") for nt in range(2) for e in range(2)]

def hepi_groups():
    T = V_T; out = []; k = 0
    for t in range(2):
        for b in range(2):
            for uu in range(2):
                g0 = GACC(t, b) + 8*uu; u0 = GACC(t + 2, b) + 8*uu
                pk = u0; k += 1
                g = [f"v_pk_mul_f32 v[{g0+i}:{g0+i+1}], v[{g0+i}:{g0+i+1}], s[{S_NL2E}:{S_NL2E+1}]" for i in range(0, 8, 2)]
                g += [f"v_exp_f32 v{g0+i}, v{g0+i}" for i in range(8)]
                g += [f"v_add_f32 v{g0+i}, 1.0, v{g0+i}" for i in range(8)]
                g += [f"v_rcp_f32 v{g0+i}, v{g0+i}" for i in range(8)]
                g += ["s_nop 0"] + [f"v_pk_mul_f32 v[{g0+i}:{g0+i+1}], v[{g0+i}:{g0+i+1}], v[{u0+i}:{u0+i+1}]" for i in range(0, 8, 2)]
                g += [f"v_cvt_pk_bf16_f32 v{pk+i//2}, v{g0+i}, v{g0+i+1}" for i in range(0, 8, 2)]
                g.append(Ins(f"buffer_store_dwordx4 v[{pk}:{pk+3}], v{V_ST0+b}, {S4(S_ACT)}, s{S_HOFF} offen offset:{(2*t+uu)*1024}{SC}", "HST"))
                out.append(g)
    return out

class Sched2(Sched):
    def __init__(self, dense_from): Sched.__init__(self); self.dense = dense_from
    def _free(self, g):
        if g >= self.dense: return g not in self.vm
        return Sched._free(self, g)

def late(p):
    OSP = OPT.get("osp", 8); OBAR = OPT.get("obar", 18); HFIRST = OPT.get("hfirst", 4)
    HSP = OPT.get("hsp", 0); HBAR = OPT.get("hbar", 14); SYH = OPT.get("syh", 47)
    PSP = OPT.get("psp", 2); PFL = OPT.get("pfl", 10); PPI = OPT.get("ppi", 26)
    KS0, KB0 = 256, 512
    NSA0 = 5
    OWN = OPT.get('own', 1)
    SPC = OPT.get('spc', 23)
    if SPC: PPI = SPC - OPT.get('spl', 4)
    HW0 = OPT.get('hw0', 8); HWS = OPT.get('hws', 12)
    ESY = OPT.get('esy', 29)
    NSE = min(4, (32 - ESY)) if ESY else 0
    sc = Sched2(OPT.get("dense", KB0 - 8))
    FT = V_T + 18
    p.e("s_load_dwordx2 s[60:61], s[0:1], 88\ns_load_dwordx2 s[72:73], s[0:1], 72")
    for s in range(32):
        mf = []
        for a in range(4):
            for b in range(2):
                d = vr(GACC(a, b), 16)
                mf.append(mfma(d, ar(AB2(s & 1, a), 4), ar(BR2(s, b), 4), d if s else "0"))
        g0 = sc.add(mf)
        if s - 1 in (6, 14, 22, 30) or s - 1 == OBAR:
            vm = (["OST"] if s - 1 == OBAR else [])
            sc.before(g0, [Wait(vm=vm, lg=[f"AG{s}"]), "s_barrier"])
        sc.before(g0, Wait(vm=[f"C{s}"], lg=[f"AG{s}"]))
        if s % 4 == 0: sc.before(g0, lambda p, s=s: stamp(p, 1 + s // 4, 2))
        if s == 1: sc.before(g0, ["s_waitcnt lgkmcnt(0)"] + srd_l(S_PT, 60, 61, PART_BYTES, add=WS_PART) + srd_l(S_OUT, 72, 73, 2097152))
        if s == OBAR + 1: sc.fixed(g0, flag_store(1, FT, FT + 1, one='O'))
        if ESY and s == ESY - OPT.get("esl", 4): sc.fixed(g0 + 2, [poll_issue(1, K_SGO, "PO", V_FL2)])
        if ESY and s == ESY: sc.before(g0, [Wait(lg=["a5"]), lambda p: poll_check(p, "SYO", 1, K_SGO, "PO", K_CNT, V_FL2)])
        if s + 1 < 32: sc.spread(areads_g(s + 1), g0, g0 + 4)
        if s >= 8:
            for x in bload(s, BR2, "C"): sc.queue("C", x, max(0, 8*(s - 12) + 7), 8*s - 40)
    for k, grp in enumerate(oepi_groups()):
        e = 5 + OSP*k
        sc.spread(grp[:-1], max(0, e - OSP), e); sc.fixed(e, [grp[-1]])
    assert 5 + OSP*15 < 8*OBAR
    sc.spread(late_setup(), 8, 56)
    PR0 = OPT.get("pr0", 25)
    sc.before(8*PR0, Wait(vm=["w5"])); sc.spread(sum((kb_rd(c) for c in range(6)), []), 8*PR0 + 4, 8*PR0 + 24)
    sc.before(8*31, Wait(vm=["w7"])); sc.spread(kb_rd(6) + kb_rd(7), 8*31, 8*31 + 6)
    RPO, RPD = OPT.get("rpo", 150), OPT.get("rpd", 330)
    sc.spread([f"v_and_b32 v{V_PFA}, 0x380, v{V_PFA}", f"v_lshlrev_b32 v{V_PFA}, 3, v{V_PFA}", f"v_add_u32 v{V_PFA}, 384, v{V_PFA}"], 60, 63)
    if RPO:
        sc.fixed(RPO, [f"s_lshl_b32 s{S_T1}, s{K_KQ}, 20", f"s_add_u32 s{S_T0}, s{S_PFD}, s{S_T1}",
                       Ins(f"buffer_load_dword v{V_PFD}, v{V_PFA}, {S4(S_WO)}, s{S_T0} offen", "PF")])
    if RPD:
        for k in range(2):
            sc.fixed(RPD + 40*k, [Ins(f"buffer_load_dword v{V_PFD}, v{V_PFA}, {S4(S_WD)}, s{S_PFD} offen", "PF"), f"s_xor_b32 s{S_PFD}, s{S_PFD}, 0x100000"])
    for i in range(64):
        g, st = i // 4, i % 4
        mf = []
        for b in range(2):
            for nt in range(2):
                d = vr((nt + 2*b) * 16, 16)
                mf.append(mfma(d, ar(FA(i, nt), 4), ar(FB(i, b), 4), "0" if i == 0 else d))
        g0 = sc.add(mf)
        if i == 0:
            def mid(p):
                stamp(p, 5); stamp(p, 9, 2)
                hg = [x[:-1] if HSP else x for x in hepi_groups()]
                p.e(Wait(lg=["a7"])); p.e("s_nop 7")
                hf = 0 if ESY else HFIRST
                for k in range(hf):
                    if k == hf - OPT.get("hpoll", 2): p.e(poll_issue(1, K_SGO, "PO", V_FL2))
                    p.e(hg[k])
                stamp(p, 1, 3)
                if not ESY: poll_check(p, "SYO", 1, K_SGO, "PO", K_CNT, V_FL2)
                stamp(p, 6)
                vq = sum((ks_sa(g) for g in range(NSE, NSA0)), [])
                hs = sum(hg[hf:HW0], [])
                first = OPT.get("safirst", 4)
                for x in vq[:first]: p.e(x)
                vq = vq[first:]
                for k, x in enumerate(hs):
                    p.e(x)
                    if k % 10 == 5 and vq: p.e(vq.pop(0))
                for x in vq: p.e(x)
                p.e(Wait(vm=["sw0", "sa0"])); p.e("s_barrier")
                for x in ks_rd(0) + ks_rd(1): p.e(x)
            sc.before(g0, mid)
        if st == 2 and g + 1 < 16:
            sc.before(g0, [Wait(vm=[f"sw{g+1}", f"sa{g+1}"] + (["HST"] if i == HBAR else []), lg=[f"f{i+1}"]), "s_barrier"])
        if i == HBAR: sc.fixed(g0, flag_store(2, FT, FT + 1, one='H'))
        if i == SYH - 5: sc.fixed(g0, [poll_issue(2, 3, "PH")])
        if i == SYH: sc.before(g0, lambda p: (stamp(p, 7), poll_check(p, "SYH", 2, 3, "PH", K_CNT)))
        sc.before(g0, Wait(lg=[f"f{i}"]))
        if i % 8 == 0: sc.before(g0, lambda p, i=i: stamp(p, 2 + i // 8, 3))
        if i + 2 < 64: sc.spread(ks_rd(i + 2), g0, g0 + 4)
    for g in range(16):
        free = {0: 56, 1: 56, 2: 120, 3: 184, 4: 248}.get(g, KS0 + 4*(4*(g - 5) + 2))
        need = 248 if g == 0 else KS0 + 4*(4*(g - 1) + 2)
        for x in ks_sw(g): sc.queue("sw", x, free, need - 40)
        if g >= NSA0:
            for x in ks_sa(g): sc.queue("sa", x, max(free, KS0), need - 44)
        elif g < NSE:
            for x in ks_sa(g): sc.queue("sa", x, max(free, 8*ESY), 100)
    for k, grp in enumerate(hepi_groups()[HW0:]):
        e = KS0 + 4 + HWS*(k + 1)
        sc.spread(grp[:-1], e - HWS, e); sc.fixed(e, [grp[-1]])
        assert e < KS0 + 4*HBAR
    if HSP:
        for k, grp in enumerate(hepi_groups()): sc.fixed(KS0 + 2 + HSP*k, [grp[-1]])
    assert 2 + HSP*7 < 4*HBAR
    for i in range(28):
        mf = []
        for b in range(2):
            for nt in range(2):
                d = vr(64 + (nt + 2*b) * 16, 16)
                mf.append(mfma(d, ar(AB3(i, nt), 4), ar(BR3(i, b), 4), "0" if i == 0 else d))
        g0 = sc.add(mf)
        if i == 0: sc.before(g0, lambda p: (stamp(p, 8), stamp(p, 10, 3)))
        if i % 4 == 0: sc.before(g0, lambda p, i=i: stamp(p, 1 + i // 4, 4))
        if NPRE <= i + 1 < 28: sc.before(g0, [Wait(vm=[f"w{i+1}", f"b{i}"])] + kb_rd(i + 1))
        else: sc.before(g0, Wait(vm=[f"b{i}"]))
        if i == PFL:
            sc.before(g0, lines(f"""
            s_lshl_b32 s{S_FO}, s{S_W}, {2+FSH()}
            s_add_u32 s{S_FO}, s{S_FO}, s{K_SPO}
            s_lshl_b32 s{S_T0}, s{K_KQ}, {FSH()}
            s_add_u32 s{S_FO}, s{S_FO}, s{S_T0}
            s_lshl_b32 s{S_T0}, s{K_QD}, {2+FSH()}
            s_add_u32 s{K_SPO}, s{K_SPO}, s{S_T0}
            v_and_b32 v{V_FL}, {3 << FSH()}, v{V_FL}
            """) + [Wait(vm=["PSS"])])
            sc.fixed(g0, flag_store(0, FT, FT + 1))
        if i == PPI: sc.fixed(g0, [poll_issue(0, K_SPO, "PP")])
        if SPC and i == SPC: sc.before(g0, lambda p: poll_check(p, "SYP", 0, K_SPO, "PP", K_CNT))
        if i >= NPRE: sc.before(g0, Wait(lg=[f"a{i}"]))
        if i == 0: sc.before(g0, "s_barrier")
        j = i - NPRE
        if i < NPRE:
            for x in kb_wl(i): sc.queue("w", x, (60, 60, 120, 184)[i // 2], 230)
        else:
            for x in kb_wl(i): sc.queue("w", x, KS0 + 4*50 if j < 8 else (KB0 if j < 16 else KB0 + 4*(i - 16)), KB0 + 4*(i - 1) - 40)
        for x in kb_bl(i): sc.queue("b", x, KS0 + 4*SYH if i < 14 else KB0 + 4*(i - 14) + 3, KB0 + 4*i - 40)
    for k in range(8):
        r = 8*k; pk = 128 + 4*k; e = KB0 + OPT.get('ps0', 6) + PSP*k
        grp = [f"v_cvt_pk_bf16_f32 v{pk+i}, v{r+2*i}, v{r+2*i+1}" for i in range(4)]
        if k == 4: grp.append(f"s_add_u32 s{K_SST}, s{K_SST}, 4096")
        sc.spread(grp, e - 2, e)
        sc.fixed(e, [Ins(f"buffer_store_dwordx4 v[{pk}:{pk+3}], v{K_VL16}, {S4(S_PT)}, s{K_SST} offen offset:{(k%4)*1024}{SC}", "PSS")] +
                    ([Ins(f"ds_write_b128 v{V_T}, v[{pk}:{pk+3}] offset:{k*1024}", "OWW")] if OWN else []))
    if OWN:
        sc.spread(lines(f"""
        s_lshl_b32 s{S_T0}, s{S_W}, 13
        s_add_u32 s{S_T0}, s{S_T0}, 131072
        v_add_u32 v{V_T}, s{S_T0}, v{K_VL16}
        s_lshl_b32 s{S_T0}, s{K_QD}, 13
        s_add_u32 s{S_T0}, s{S_T0}, s{S_W2K}
        s_add_u32 s{S_T0}, s{S_T0}, 131072
        v_add_u32 v{V_T+1}, s{S_T0}, v{K_VL16}
        """), KB0 - 8, KB0 - 1)
        sc.before(KB0 + 4*(PFL + 2), [Wait(lg=["OWW"]), "s_barrier",
                                      Ins(f"ds_read_b128 v[184:187], v{V_T+1}", "OWR"), Ins(f"ds_read_b128 v[188:191], v{V_T+1} offset:1024", "OWR")])
        sc.spread([x for i in range(8) for x in (f"v_lshlrev_b32 v{2*i}, 16, v{184+i}", f"v_and_b32 v{2*i+1}, 0xffff0000, v{184+i}")],
                  KB0 + 4*(PFL + 4), KB0 + 4*(PFL + 6))
    plds = []
    for src in range(4):
        sel = [f"s_add_u32 s{S_DQ}, s{K_SLD}, {src*8192}"] + ([f"s_cmp_eq_u32 s{K_KQ}, {src}", f"s_cselect_b32 s{S_DQ}, 0x40000000, s{S_DQ}"] if OWN else [])
        plds.append(sel + [Ins(f"buffer_load_dwordx4 v[{144+8*src}:{147+8*src}], v{K_VL16}, {S4(S_PT)}, s{S_DQ} offen{SC}", f"PL{src}")])
        plds.append([Ins(f"buffer_load_dwordx4 v[{148+8*src}:{151+8*src}], v{K_VL16}, {S4(S_PT)}, s{S_DQ} offen offset:1024{SC}", f"PL{src}")])
    if SPC:
        for x in plds: sc.queue("pl", x, KB0 + 4*SPC, 640)
    sc.queue("x", [Ins(f"buffer_load_dwordx4 v[176:179], v{K_VX}, {S4(S_X)}, 0 offen", "XF")], KB0 + 40, 600)
    sc.queue("x", [Ins(f"buffer_load_dwordx4 v[180:183], v{K_VX}, {S4(S_X)}, 0 offen offset:32", "XF")], KB0 + 40, 600)
    sc.emit(p)
    for gp, grp in sc.vm.items():
        for x in grp:
            if isinstance(x, Ins) and x.tag in [f"sa{g}" for g in range(NSE)]: assert gp < KS0, (gp, x.t)
    if sc.report: print("late:", len(sc.report), sc.report[:60])
    stamp(p, 9); stamp(p, 8, 4)
    T = V_T
    if not SPC:
        poll_check(p, "SYP", 0, K_SPO, "PP", K_CNT)
        for x in plds: p.e(x)
    stamp(p, 10)
    def pk(op, d, a, b): return f"v_pk_{op}_f32 v[{d}:{d+1}], v[{a}:{a+1}], {b}"
    def psum():
        for src in range(4):
            p.e(Wait(vm=[f"PL{src}"]))
            d = 0 if src == 0 and not OWN else 16
            for i in range(8): p.e(f"v_lshlrev_b32 v{d+2*i}, 16, v{144+8*src+i}\nv_and_b32 v{d+2*i+1}, 0xffff0000, v{144+8*src+i}")
            if d:
                for i in range(0, 16, 2): p.e(pk("add", i, i, f"v[{16+i}:{17+i}]"))
    p.e(Wait(vm=["XF"]))
    for i in range(8): p.e(f"v_lshlrev_b32 v{48+2*i}, 16, v{176+i}\nv_and_b32 v{49+2*i}, 0xffff0000, v{176+i}")
    p.e(f"""
    v_add_u32 v{T}, s{K_SLB}, v{K_VL16}
    s_add_u32 s{S_T0}, s{S_W4K}, 65536
    v_add_u32 v{T+1}, s{S_T0}, v{K_VL16}
    """)
    for order in range(16):
        r = 64 + 4*order
        p.e(f"ds_write_b128 v{T}, v[{r}:{r+3}] offset:{order*1024}")
    if SPC: psum()
    p.e("s_waitcnt lgkmcnt(0)\ns_barrier")
    for sw_ in range(4):
        for rg in range(4):
            d = 64 + sw_*16 + rg*4
            p.e(f"ds_read_b128 v[{d}:{d+3}], v{T+1} offset:{sw_*16384+rg*1024}", tag=f"R{sw_}")
    p.e(Wait(lg=["R1"]))
    for i in range(0, 16, 2): p.e(pk("add", 64+i, 64+i, f"v[{80+i}:{81+i}]"))
    p.e("s_waitcnt lgkmcnt(0)")
    for i in range(0, 16, 2): p.e(pk("add", 96+i, 96+i, f"v[{112+i}:{113+i}]"))
    for i in range(0, 16, 2): p.e(pk("add", 64+i, 64+i, f"v[{96+i}:{97+i}]"))
    for i in range(0, 16, 2): p.e(pk("mul", 128+i, 64+i, f"s[{S_NL2E}:{S_NL2E+1}]"))
    for i in range(0, 16, 2): p.e(pk("mul", i, i, f"v[{64+i}:{65+i}]")) if SPC else None
    for i in range(16): p.e(f"v_exp_f32 v{128+i}, v{128+i}")
    for i in range(16): p.e(f"v_add_f32 v{128+i}, 1.0, v{128+i}")
    for i in range(16): p.e(f"v_rcp_f32 v{128+i}, v{128+i}")
    if SPC: p.e("s_nop 0")
    else:
        for i in range(0, 16, 2): p.e(pk("mul", 128+i, 64+i, f"v[{128+i}:{129+i}]"))
    if not SPC: psum()
    for i in range(0, 16, 2): p.e(f"v_pk_fma_f32 v[{i}:{i+1}], v[{i}:{i+1}], v[{128+i}:{129+i}], v[{48+i}:{49+i}]")
    for i in range(8): p.e(f"v_cvt_pk_bf16_f32 v{32+i}, v{2*i}, v{2*i+1}")
    p.e(f"""
    buffer_store_dwordx4 v[32:35], v{K_VX}, {S4(S_OUT)}, 0 offen{" sc1" if OPT.get("osc") else ""}
    buffer_store_dwordx4 v[36:39], v{K_VX}, {S4(S_OUT)}, 0 offen offset:32{" sc1" if OPT.get("osc") else ""}
    """)
    stamp(p, 11)

def gen():
    p = Prog()
    setup(p)
    layernorm(p)
    p1q(p)
    stamp(p, 2); stamp(p, 9, 1); stamp(p, 11, 5)
    srd(p, S_WO, 60, 61, 4096*1024)
    p.e("s_nop 7")
    for g in qconv(): p.e(g)
    attention(p)
    stamp(p, 4)
    oepi_head(p)
    late(p)
    stamp_flush(p, 12)
    p.label("K_END")
    p.e("s_endpgm")
    return p, slowpath()

KD = """.section .rodata,"a"
.p2align 6
.amdhsa_kernel {name}
  .amdhsa_next_free_vgpr 512
  .amdhsa_next_free_sgpr 102
  .amdhsa_accum_offset 256
  .amdhsa_group_segment_fixed_size 0
  .amdhsa_kernarg_size 96
  .amdhsa_user_sgpr_count 2
  .amdhsa_user_sgpr_kernarg_segment_ptr 1
  .amdhsa_system_sgpr_workgroup_id_x 1
.end_amdhsa_kernel
"""
HEADER = open("cdna_kernels/" + NAME + ".s.ref").read().split("; Override launch")[0]

def build(out):
    k, slow = gen()
    errs = []
    for nm, pr in (("k", k), ("slow", slow)):
        resolve(pr)
        errs += check(pr.trace(), nm)
        if nm == 'k': errs += check_tags(pr.trace())
    for e in errs[:40]: print("HAZARD", e)
    if errs: print(len(errs), "problems")
    nm = NAME + "_kernel"
    s = HEADER + f"; @launch grid=(256,1,1) block=(256,1,1) lds={LDS_TOTAL}\n"
    s += '.amdgcn_target "amdgcn-amd-amdhsa--gfx950"\n.text\n'
    s += f".globl {nm}\n.p2align 8\n.type {nm},@function\n{nm}:\n{k.text()}{slow.text()}CODE_END:\n"
    s += KD.format(name=nm)
    open(out, "w").write(s)
    return len(errs)

if __name__ == "__main__":
    out = sys.argv[1] if len(sys.argv) > 1 else "cdna_kernels/" + NAME + ".s"
    STAMPS = "stamps" in sys.argv[2:]
    for a in sys.argv[2:]:
        if "=" in a: OPT[a.split("=")[0]] = int(a.split("=")[1])
    if OPT.get("dot2") or OPT.get("pkl"): HEAD, TAIL = 28, 9
    sys.exit(1 if build(out) else 0)
```
